```python
import torch

def _softmax(x, axis=-1):
    return torch.softmax(x, dim=axis)
def _gelu(x):
    return torch.nn.functional.gelu(x, approximate="tanh")
def _silu(x):
    return torch.nn.functional.silu(x)
def _sigmoid(x):
    return torch.sigmoid(x)
def _layernorm(x, axis=-1, eps=1e-5):
    m = x.mean(dim=axis, keepdim=True)
    v = x.var(dim=axis, keepdim=True, unbiased=False)
    return (x - m) / torch.sqrt(v + eps)
def _scatter_add(tgt, idx, src, axis=0):
    return tgt.clone().index_add_(axis, idx, src)
def _segment_sum(src, seg, n):
    out = torch.zeros((n,) + src.shape[1:], dtype=src.dtype)
    return out.index_add_(0, seg, src)
def _pad(x, pw):
    flat = tuple(v for pair in reversed(pw) for v in pair)
    return torch.nn.functional.pad(x, flat)

kernel_name = 'gated_mix__ssm_conv_h3__sliding_local_dilated__prompt'

def setup_inputs():

    _w = (lambda a: (lambda t: t.to(torch.bfloat16) if t.is_floating_point() else t)(torch.as_tensor(a)))
    def _A_setup():
        B, S, D = 1, 2048, 640
        ks = 4
        return {
            "q": _w((lambda *s: torch.randn(*s, dtype=torch.bfloat16) * 0.05)(B, S, D)),
            "k": _w((lambda *s: torch.randn(*s, dtype=torch.bfloat16) * 0.8)(B, S, D)),
            "v": _w((lambda *s: torch.randn(*s, dtype=torch.bfloat16) * 0.8)(B, S, D)),
            "shift_k": _w((lambda *s: torch.randn(*s, dtype=torch.bfloat16) * 0.8)(D, ks) * 0.5),
            "ssm_k": _w((lambda *s: torch.randn(*s, dtype=torch.bfloat16) * 3.2)(D, S) * (1.0 / S ** 0.5)),
            "ssm_D": _w((lambda *s: torch.randn(*s, dtype=torch.bfloat16) * 0.8)(D)),
        }
    _A_in = _A_setup()

    def _B_setup():
        B, S, D = 1, 2048, 640
        return {
            "x": _w((lambda *s: torch.randn(*s, dtype=torch.bfloat16) * 0.05)(B, S, D)),
            "wqkv": _w((lambda *s: torch.randn(*s, dtype=torch.bfloat16) * 0.8)(D, 3 * D)),
            "wo": _w((lambda *s: torch.randn(*s, dtype=torch.bfloat16) * 0.05)(D, D)),
        }
    _B_in = _B_setup()

    return {
        "A_q": _A_in["q"],
        "A_k": _A_in["k"],
        "A_v": _A_in["v"],
        "A_shift_k": _A_in["shift_k"],
        "A_ssm_k": _A_in["ssm_k"],
        "A_ssm_D": _A_in["ssm_D"],
        "B_x": _B_in["x"],
        "B_wqkv": _B_in["wqkv"],
        "B_wo": _B_in["wo"],
        "gate_w": _w((lambda *s: torch.randn(*s, dtype=torch.bfloat16) * 0.05)(640) * 16.0),
    }

def reference(A_q, A_k, A_v, A_shift_k, A_ssm_k, A_ssm_D, B_x, B_wqkv, B_wo, gate_w):
    def _A_ref(q, k, v, shift_k, ssm_k, ssm_D):
        B, S, D = q.shape
        ks = shift_k.shape[-1]
        k_pad = _pad(k, ((0, 0), (ks - 1, 0), (0, 0)))
        k_shift = torch.zeros_like(k)
        for t in range(ks):
            k_shift = k_shift + k_pad[:, t:t + S, :] * shift_k[:, ks - 1 - t][None, None, :]
        kv = k_shift * v
        L = 2 * S
        kv_pad = _pad(kv, ((0, 0), (0, S), (0, 0)))
        kf_pad = _pad(ssm_k, ((0, 0), (0, S)))
        kv_f = (lambda x, axes=(-2,-1): torch.fft.rfft2(x.float(), dim=axes))(kv_pad[:, None, :, :], axes=(1, 2))
        kf_f = (lambda x, axes=(-2,-1): torch.fft.rfft2(x.float(), dim=axes))(kf_pad[:, None, :], axes=(1, 2))
        kf_f = (lambda x, *d: x.permute(*d))(kf_f, 1, 2, 0)
        y_f = kv_f * kf_f[None, :, :, :]
        y = (lambda x, s, axes=(-2,-1): torch.fft.irfft2(x, s=s, dim=axes).to(torch.bfloat16))(y_f, (1, L), axes=(1, 2))[:, 0, :S, :]
        y = y + kv * ssm_D[None, None, :]
        return q * y

    def _B_ref(x, wqkv, wo):
        B, S, D = x.shape
        H = 32; Dh = D // H
        W, dil = 8, 2
        qkv = (lambda x, *d: x.permute(*d))((x @ wqkv).reshape(B, S, 3, H, Dh), 2, 0, 3, 1, 4)
        q, k, v = qkv[0], qkv[1], qkv[2]
        scale = Dh ** -0.5
        pos = torch.arange(S)
        off = torch.arange(W) * dil
        idx = pos[:, None] - off[None, :]
        mask = idx >= 0
        idx_c = torch.where(mask, idx, 0).reshape(-1)
        kg = k[:, :, idx_c, :].reshape(B, H, S, W, Dh)
        vg = v[:, :, idx_c, :].reshape(B, H, S, W, Dh)
        logits = torch.einsum("bhsd,bhswd->bhsw", q, kg) * scale
        logits = torch.where(mask[None, None, :, :], logits, -1e9)
        attn = _softmax(logits, axis=-1)
        o = torch.einsum("bhsw,bhswd->bhsd", attn, vg)
        return (lambda x, *d: x.permute(*d))(o, 0, 2, 1, 3).reshape(B, S, D) @ wo

    x = A_q
    g = _sigmoid((x * gate_w).sum(-1, keepdims=True))
    a = _A_ref(x, A_k, A_v, A_shift_k, A_ssm_k, A_ssm_D)
    b = _B_ref(x, B_wqkv, B_wo)
    return g * a + (1 - g) * b
```

```python
import sys, subprocess, re
NAME = "gated_mix__ssm_conv_h3__sliding_local_dilated__prompt"
var = sys.argv[1]
opts = sys.argv[2:]
main = subprocess.run(["python3", "gen.py"] + opts, capture_output=True, text=True).stdout
m = re.search(r"; @launch (grid=\S+ block=\S+ lds=\d+)", main)
geo = m.group(1)
XOFF = 0x3000
def desc(n, vg=16):
    return (f'.section .rodata,"a"\n.p2align 6\n.amdhsa_kernel {n}\n  .amdhsa_next_free_vgpr {vg}\n  .amdhsa_next_free_sgpr 64\n  .amdhsa_accum_offset {vg}\n'
            "  .amdhsa_group_segment_fixed_size 0\n  .amdhsa_kernarg_size 104\n  .amdhsa_user_sgpr_count 2\n"
            "  .amdhsa_user_sgpr_kernarg_segment_ptr 1\n  .amdhsa_system_sgpr_workgroup_id_x 1\n.end_amdhsa_kernel\n")
tstart = f""".text
.globl tstart_kernel
.p2align 8
.type tstart_kernel,@function
tstart_kernel:
    s_memrealtime s[8:9]
    s_load_dwordx2 s[4:5], s[0:1], 96
    s_cmp_lg_u32 s2, 0
    s_cbranch_scc1 Lts_end
    s_waitcnt lgkmcnt(0)
    v_mov_b32 v1, {XOFF}
    v_mov_b32 v2, s8
    global_store_dword v1, v2, s[4:5]
Lts_end:
    s_endpgm
""" + desc("tstart_kernel")
def tspin(src):
    body = f"""    s_load_dword s10, s[4:5], {XOFF}
    s_waitcnt lgkmcnt(0)
""" if src == "tiny" else f"""    v_lshlrev_b32 v1, 4, v0
    v_add_u32 v1, {0x1000 + 1024}, v1
    global_load_dwordx4 v[4:7], v1, s[4:5]
    s_waitcnt vmcnt(0)
    v_readfirstlane_b32 s11, v4
    v_subrev_u32 v4, s11, v4
    v_subrev_u32 v5, s11, v5
    v_subrev_u32 v6, s11, v6
    v_subrev_u32 v7, s11, v7
    v_min3_i32 v4, v4, v5, v6
    v_min_i32 v4, v4, v7
    s_mov_b32 s10, 0
""" + "".join(f"    v_readlane_b32 s12, v4, {l}\n    s_nop 0\n    s_min_i32 s10, s10, s12\n" for l in range(64)) + "    s_add_u32 s10, s10, s11\n"
    return f""".text
.globl tspin_kernel
.p2align 8
.type tspin_kernel,@function
tspin_kernel:
    s_load_dwordx2 s[4:5], s[0:1], 96
    s_cmp_lg_u32 s2, 0
    s_cbranch_scc1 Lsp_end
    s_waitcnt lgkmcnt(0)
{body}    s_add_u32 s10, s10, 5000
    s_mov_b32 s14, 0
Lsp:
    s_memrealtime s[8:9]
    s_waitcnt lgkmcnt(0)
    s_add_u32 s14, s14, 1
    s_cmp_ge_u32 s14, 0x100000
    s_cbranch_scc1 Lsp_end
    s_sub_u32 s12, s8, s10
    s_cmp_lt_i32 s12, 0
    s_cbranch_scc1 Lsp
Lsp_end:
    s_endpgm
""" + desc("tspin_kernel")
K = NAME + "_kernel"
T = "grid=(1,1,1) block=(64,1,1) lds=0"
if var == "A":   L = [f"kernel=tstart_kernel {T}", f"kernel={K} {geo}", f"kernel=tspin_kernel {T}"]; extra = tstart + tspin("tiny")
elif var == "B": L = [f"kernel={K} {geo}", f"kernel=tspin_kernel {T}"]; extra = tspin("main")
elif var == "S": L = [f"kernel={K} {geo}"]; extra = ""
elif var == "T": L = [f"kernel=tstart_kernel {T}", f"kernel={K} {geo}"]; extra = tstart
elif var == "U": L = [f"kernel={K} {geo}", f"kernel=tstart_kernel {T}"]; extra = tstart
out = main.replace(m.group(0), "\n".join("; @launch " + l for l in L)) + extra
sys.stdout.write(out)
```

```python
NAME = "gated_mix__ssm_conv_h3__sliding_local_dilated__prompt"

class Asm:
    def __init__(self):
        self.lines = []
        self._lbl = 0
    def __call__(self, s):
        for l in s.split("\n"):
            self.lines.append("    " + l.strip() if l.strip() and not l.strip().endswith(":") else l.strip())
    def label(self, name):
        self.lines.append(name + ":")
    def newlabel(self, p="L"):
        self._lbl += 1
        return f"{p}_{self._lbl}"
    def text(self):
        return "\n".join(self.lines) + "\n"

def header(launch_lines):
    return "".join(f"; {l}\n" for l in launch_lines) + '.amdgcn_target "amdgcn-amd-amdhsa--gfx950"\n.text\n'

def kernel_begin(name):
    return f".globl {name}\n.p2align 8\n.type {name},@function\n{name}:\n"

def kernel_desc(name, vgpr, sgpr, accum, wgy=False):
    s = f'.section .rodata,"a"\n.p2align 6\n.amdhsa_kernel {name}\n'
    s += f"  .amdhsa_next_free_vgpr {vgpr}\n  .amdhsa_next_free_sgpr {sgpr}\n  .amdhsa_accum_offset {accum}\n"
    s += "  .amdhsa_group_segment_fixed_size 0\n  .amdhsa_kernarg_size 104\n  .amdhsa_user_sgpr_count 2\n"
    s += "  .amdhsa_user_sgpr_kernarg_segment_ptr 1\n  .amdhsa_system_sgpr_workgroup_id_x 1\n"
    if wgy: s += "  .amdhsa_system_sgpr_workgroup_id_y 1\n"
    s += ".end_amdhsa_kernel\n.text\n"
    return s

def srd(a, d, lo, hi, nbytes):
    a(f"s_mov_b32 s{d}, s{lo}")
    a(f"s_and_b32 s{d+1}, s{hi}, 0xffff")
    a(f"s_mov_b32 s{d+2}, {nbytes}")
    a(f"s_mov_b32 s{d+3}, 0x00020000")
```

```python
import re

REG = re.compile(r'\b([vsa])(\d+)\b|\b([vsa])\[(\d+):(\d+)\]|\b(vcc|exec|m0|scc)\b')
TRANS = ("v_exp_f32", "v_log_f32", "v_rcp_f32", "v_rsq_f32", "v_sqrt_f32", "v_sin_f32", "v_cos_f32", "v_rcp_iflag_f32")

def regs_of(op):
    out = set()
    for m in REG.finditer(op):
        if m.group(1): out.add((m.group(1), int(m.group(2))))
        elif m.group(3):
            for i in range(int(m.group(4)), int(m.group(5)) + 1): out.add((m.group(3), i))
        else: out.add((m.group(6), 0))
    return out

def split_ops(s):
    ops, depth, cur = [], 0, ""
    for ch in s:
        if ch == "[": depth += 1
        if ch == "]": depth -= 1
        if ch == "," and depth == 0:
            ops.append(cur.strip()); cur = ""
        else: cur += ch
    if cur.strip(): ops.append(cur.strip())
    return ops

class I:
    def __init__(self, text):
        self.text = text
        t = text.split(";")[0].strip()
        self.label = t[:-1] if t.endswith(":") else None
        self.mn = None; self.r = set(); self.w = set(); self.kind = None
        self.A = self.B = self.C = self.D = set(); self.sdata = set(); self.states = 0; self.target = None
        self.passes = 0; self.lanesel = set()
        if self.label or not t or t.startswith("."): return
        p = t.split(None, 1)
        mn = self.mn = p[0]; rest = p[1] if len(p) > 1 else ""
        ops = split_ops(rest)
        self.states = 1
        R = [regs_of(o) for o in ops]
        allr = set().union(*R) if R else set()
        if mn == "s_nop": self.states = int(ops[0], 0) + 1; self.kind = "nop"; return
        if mn.startswith("s_cbranch") or mn == "s_branch":
            self.kind = "branch"; self.target = ops[0]; return
        if mn.startswith("v_mfma"):
            self.kind = "mfma"; self.D, self.A, self.B, self.C = R[0], R[1], R[2], R[3]
            self.w = R[0]; self.r = R[1] | R[2] | R[3]
            self.passes = 8 if "32x32" in mn else 4
            return
        if mn.startswith("v_"):
            self.kind = "valu"
            if (mn.startswith("v_permlane") and "swap" in mn) or mn == "v_swap_b32":
                self.w = R[0] | R[1]; self.r = R[0] | R[1]
            elif mn.startswith(("v_add_co", "v_sub_co", "v_addc_co", "v_subb_co", "v_subrev_co")):
                self.w = R[0] | R[1]; self.r = set().union(*R[2:])
            else:
                self.w = R[0]; self.r = set().union(*R[1:]) if len(R) > 1 else set()
                if mn.startswith(("v_fmac", "v_dot2c", "v_writelane")) or "dst_unused:UNUSED_PRESERVE" in t or "_dpp" in mn: self.r |= R[0]
                if mn.startswith("v_cndmask") and len(ops) == 3: self.r.add(("vcc", 0))
            if mn.startswith(("v_readlane", "v_writelane")): self.lanesel = R[2]
            self.dotab = (R[1] | R[2]) if mn.startswith("v_dot2") else set()
            return
        if mn.startswith("ds_"):
            self.kind = "ds"
            if mn.startswith(("ds_read", "ds_bpermute", "ds_permute", "ds_swizzle")) or "_rtn" in mn:
                self.w = R[0]; self.r = set().union(*R[1:])
            else: self.r = allr
            return
        if mn.startswith(("buffer_", "global_")):
            self.kind = "vmem"
            lds = re.search(r'\blds\b', rest) is not None or "load_lds" in mn
            self.lds = lds
            if "load" in mn and not lds:
                self.w = R[0]; self.r = set().union(*R[1:])
            elif "atomic" in mn and re.search(r'\bsc0\b', rest):
                self.w = R[0]; self.r = allr
            else:
                self.r = allr
                if "store" in mn and ("x3" in mn or "x4" in mn):
                    self.sdata = R[0] if mn.startswith("buffer_") else R[1]
            if lds: self.r = self.r | {("m0", 0)}
            return
        if mn.startswith("s_"):
            self.kind = "salu"
            if mn.startswith(("s_cmp", "s_bitcmp", "s_waitcnt", "s_barrier", "s_sleep", "s_setprio", "s_endpgm", "s_setreg")):
                self.r = allr
            else:
                self.w = R[0]; self.r = set().union(*R[1:]) if len(R) > 1 else set()
            return
        raise ValueError("unknown instr " + t)

def isv(s): return {x for x in s if x[0] in "va"}
def iss(s): return {x for x in s if x[0] == "s" or x[0] == "vcc"}

def need(p, c):
    n = 0
    if p.kind == "valu":
        wv = isv(p.w); ws = iss(p.w)
        if c.kind == "mfma" and wv & c.r: n = max(n, 2)
        if c.kind == "valu":
            if wv & c.r:
                if c.mn.startswith("v_permlane") or "dpp" in c.text.split(";")[0]: n = max(n, 2)
                if c.mn.startswith(("v_readlane", "v_readfirstlane")): n = max(n, 1)
                if p.mn.startswith(TRANS) and not c.mn.startswith(TRANS): n = max(n, 1)
                if "sdwa" in p.mn or "op_sel" in p.text: n = max(n, 1)
            if p.mn.startswith("v_dot2") and (wv & (c.r | c.w)) and c.mn != p.mn: n = max(n, 3)
            if p.mn.startswith("v_dot2") and c.mn == p.mn and wv & c.dotab: n = max(n, 3)
            if ws & c.r: n = max(n, 2)
            if ws & c.lanesel: n = max(n, 4)
        if p.mn.startswith("v_dot2") and c.kind in ("mfma", "ds", "vmem") and wv & (c.r | c.w): n = max(n, 3)
        if p.mn.startswith(TRANS) and c.kind in ("ds", "vmem") and wv & c.r: n = max(n, 1)
        if c.kind == "vmem" and ws & c.r: n = max(n, 5)
    if p.kind == "mfma":
        far = {4: 8, 8: 12}[p.passes]
        if c.kind == "mfma":
            if p.D & (c.A | c.B): n = max(n, far)
            if p.D & c.C and not (p.D == c.C and p.passes == c.passes): n = max(n, far - 2)
            if p.D & c.D and not (p.D == c.C): n = max(n, far)
        elif c.kind in ("valu", "ds", "vmem"):
            if p.D & (c.r | c.w): n = max(n, far)
            if c.kind == "valu" and p.C & c.w: n = max(n, {4: 3, 8: 7}[p.passes])
            if c.kind in ("ds", "vmem") and p.C & c.w: n = max(n, {4: 3, 8: 7}[p.passes])
    if p.kind == "salu" and ("m0", 0) in p.w and c.kind == "vmem" and ("m0", 0) in c.r: n = max(n, 1)
    if p.kind == "vmem" and p.sdata and p.sdata & c.w: n = max(n, 2 if c.kind in ("valu", "mfma") else 1)
    return n

WINDOW = 14

def run(lines):
    ins = [I(l) for l in lines]
    total = 0
    def edges():
        labels = {x.label: i for i, x in enumerate(ins) if x.label}
        preds = {}
        for i, x in enumerate(ins):
            if x.kind == "branch" and x.target in labels: preds.setdefault(labels[x.target], []).append(i)
        return preds
    preds = edges()
    ci = 0
    while ci < len(ins):
        c = ins[ci]
        if not c.kind or c.kind in ("nop", "branch"):
            ci += 1; continue
        short = 0
        stack = [(ci - 1, 0, False)]; seen = set()
        while stack:
            j, dist, via_edge = stack.pop()
            while j >= 0 and dist < WINDOW:
                if (j, dist, via_edge) in seen: break
                seen.add((j, dist, via_edge))
                p = ins[j]
                if p.label:
                    for b in preds.get(j, []): stack.append((b, dist, True))
                    j -= 1; via_edge = False; continue
                if p.kind is None: j -= 1; continue
                if p.mn in ("s_branch", "s_endpgm") and not via_edge: break
                via_edge = False
                nd = need(p, c)
                if nd > dist: short = max(short, nd - dist)
                dist += p.states
                j -= 1
        if short:
            ins.insert(ci, I(f"    s_nop {short-1}"))
            total += short; ci += 1
            preds = edges()
        ci += 1
    return [x.text for x in ins], total
```

```python
import sys, math, struct
from asmlib import *
import hazard

STAMPS_ON = "stamps" in sys.argv
OPT = dict(rt=1, forceg=0, phi=2, plo=1, lastp=2, rd2=6, fpos=8, wodepth=3, bdbg=0, hprio=3, cprio=1, mat=1, pr0=1, xhi=2, pfl=7, afirst=0, gsolo=0,
           bwd=-1, lrun=2, wo3=0, pa0=1, pb0=2, pa1=2, pb1=1, bk=1, r0=0, nfirst=2, psl=0, lprio=3, bpos=1, csleep=2, pboth=0, rpg=2, fback=4, ppos=2, ltr=1, b1=4, tlb=1, wopace=0, ysleep=1, osleep=0, hat=0, hsl=1, ktr=0, cenw=30, fwait=1, gprio=1)
for x in sys.argv[1:]:
    if "=" in x:
        k, val = x.split("="); OPT[k] = int(val)
OPT_CP = {1: [(2, 4), (1, 2)], 2: [(2, 6), (1, 2)], 3: [(2, 6), (1, 4)], 4: [(1, 2)]}.get(OPT["cprio"])
KNAME = NAME + "_kernel"
NW = 12
EPOCH = 0; FSUM = 0x1000; GWS = 0x4000; FB = 0x10000; EU = 0x40000
UWS = 0x100000; YWS = 0x400000; XLW = 0x700000; STAMPS = 0xA00000; TRACE = 0xB00000
GOFF = 0xF00000
OGRP = 327680; XGRP = 0x40000; XFLG = 0x30000
NSLOT = 3; SLOT = 43008; WPART = 18432; WHALF = 12288
EX = 129024; EXT = 27 * 512; EXB = EX + 2 * EXT
YT = 0; IMG_B = 16384; IMG_A = 48128; RED_B = EX; RED_A = 10240
HC = 0; HCH = 8320; HOO = 4160
UL = 7 * HCH; ULCH = 4608; PB = UL + 7 * ULCH
KT = UL + 7 * ULCH; VT = KT + 132 * 256
FL = EXB + 4096; GOM = FL + 512; YS = GOM + 512; GW = YS + 256
LDS_BYTES = 163840
assert VT + 128 * 256 <= FL and GW + 1280 <= LDS_BYTES and PB <= IMG_A + 9 * 5120 and PB + 7 * 4096 <= IMG_A + 14 * 5120
assert IMG_A + 22 * 5120 <= FL and IMG_B + 22 * 5120 <= EX and IMG_B + 6 * 5120 >= SLOT and IMG_B + 13 * 5120 <= 2 * SLOT
F_LA = 0; F_PROG = 96; F_PQ = 128; F_PV = 160; F_MODE = 192; F_EXR = 196; F_WOL = 200; F_GRD = 208; F_YLD = 212
F_RED = 216; F_QRD = 232; F_KV = 248; F_MRG = 264; F_HRD = 312; F_CVD = F_EXR; F_YST = 276; F_UDN = 280; F_PB = 284
PB0 = FL + F_LA
NVGPR = 168
SPIN_MAX = 1 << OPT.get("smax", 20)

def seg_tables():
    J = []; INFO = []
    for cgp in range(5):
        heads = {}
        for u in range(16): heads.setdefault((16 * cgp + u) // 5, []).append(u)
        segs = [heads[h] for h in sorted(heads)]
        assert len(segs) == 4
        tiles = [None] * 4; rem = [None] * 4
        free = {t: set(range(4)) - {u & 3 for u in segs[t]} for t in range(4) if len(segs[t]) < 4}
        for t in range(4):
            if len(segs[t]) < 5: tiles[t] = list(segs[t])
        for t in range(4):
            if len(segs[t]) == 5:
                res = segs[t][0] & 3
                ts = [q for q in free if res in free[q]]
                assert len(ts) == 1
                q = ts[0]; free[q].discard(res)
                r = segs[t][0] if q < t else segs[t][4]
                tiles[t] = [u for u in segs[t] if u != r]; tiles[q].append(r); rem[t] = (q, res)
        jw = 0; iw = 0
        for t in range(4):
            assert sorted(u & 3 for u in tiles[t]) == [0, 1, 2, 3]
            for u in tiles[t]: jw |= (u >> 2) << (8 * t + 2 * (u & 3))
            own = sum(1 << (u & 3) for u in tiles[t] if u in segs[t])
            late = len(segs[t]) < 5
            assert (not late) or t in (0, 3)
            b = own | (0 if late else (rem[t][1] << 4) | ((rem[t][0] == 3) << 6)) | (late << 7)
            iw |= b << (8 * t)
        J.append(jw); INFO.append(iw)
    return J, INFO
JT, INFO = seg_tables()

a = Asm()
sX, sK, sV, sSH, sSSM, sDD, sWQ, sWO, sGW, sOUT, sDBG, sWS = 4, 6, 8, 10, 12, 14, 18, 20, 22, 24, 26, 28
sGRP, sI, sWV, sTAG, sROLE, sOR, sOC, sRB, sCG, sXM = 30, 31, 32, 33, 34, 35, 36, 37, 38, 39
sLB = 16
sMODE = 93
sT0, sT1, sT2, sT3, sSPIN = 96, 97, 98, 99, 100
vLANE, vN, vG, vFL, vT0, vT1, vT2, vT3 = 0, 1, 2, 3, 4, 5, 6, 7
vTR = 167

def v(i, n=1): return f"v{i}" if n == 1 else f"v[{i}:{i+n-1}]"
def f2u(x): return struct.unpack("<I", struct.pack("<f", x))[0]
MF = "v_mfma_f32_16x16x32_bf16"
MH = "v_mfma_f32_16x16x16_bf16"
WSP = f"s[{sWS}:{sWS+1}]"; LBP = f"s[{sLB}:{sLB+1}]"

def trace():
    if not STAMPS_ON: return
    a("s_mov_b32 s69, m0")
    a("s_mov_b32 m0, s95")
    a(f"v_writelane_b32 v{vTR}, s70, m0")
    a("s_mov_b32 m0, s69")
    a("s_mov_b32 s95, s94")
    a("s_add_u32 s94, s94, 1")
    a("s_memrealtime s[70:71]" if OPT["rt"] else "s_memtime s[70:71]")
def trace_at(i):
    if not STAMPS_ON: return
    a(f"s_mov_b32 s94, {i}")
    trace()
def finish():
    a("s_branch L_finish" if STAMPS_ON else "s_endpgm")
def spin_tail(l, sleep=0):
    if sleep: a(f"s_sleep {sleep}")
    a(f"s_add_u32 s{sSPIN}, s{sSPIN}, 1")
    a(f"s_cmp_lt_u32 s{sSPIN}, {SPIN_MAX}")
    a(f"s_cbranch_scc1 {l}")
def lds_wait(off, val, vaddr=vFL, vt=vT0, sleep=0):
    l = a.newlabel("Lw"); d = a.newlabel("Lwd")
    a(f"s_mov_b32 s{sSPIN}, 0")
    a.label(l)
    a(f"ds_read_b32 v{vt}, v{vaddr} offset:{off}")
    a("s_waitcnt lgkmcnt(0)")
    a(f"v_readfirstlane_b32 s{sT3}, v{vt}")
    a(f"s_cmp_ge_u32 s{sT3}, {val}")
    a(f"s_cbranch_scc1 {d}")
    spin_tail(l, sleep)
    a.label(d)
def prog_wait(vaddr, sval, vt=vT0):
    l = a.newlabel("Lg"); d = a.newlabel("Lgd")
    a(f"s_mov_b32 s{sSPIN}, 0")
    a.label(l)
    a(f"ds_read_b32 v{vt}, v{vaddr}")
    a("s_waitcnt lgkmcnt(0)")
    a(f"v_cmp_gt_i32 vcc, {sval}, v{vt}")
    a(f"s_cbranch_vccz {d}")
    spin_tail(l, OPT["psl"])
    a.label(d)
def mask_wait(vaddr, smask, vt=vT0, sleep=0):
    l = a.newlabel("Lm"); d = a.newlabel("Lmd")
    a(f"s_mov_b32 s{sSPIN}, 0")
    a.label(l)
    a(f"ds_read_b32 v{vt}, v{vaddr}")
    a("s_waitcnt lgkmcnt(0)")
    a(f"v_cmp_eq_u32 vcc, 0, v{vt}")
    a(f"s_and_b32 s{sT3}, vcc_lo, s{smask}")
    a(f"s_cbranch_scc0 {d}")
    spin_tail(l, sleep)
    a.label(d)
def lds_add(off, vaddr=vFL, vt=vT0, val=1):
    a(f"v_mov_b32 v{vt}, {val}\ns_mov_b64 exec, 1\nds_add_u32 v{vaddr}, v{vt} offset:{off}\ns_mov_b64 exec, -1")
def lds_set(off, val, vaddr=vFL, vt=vT0):
    a(f"v_mov_b32 v{vt}, {val}")
    a(f"ds_write_b32 v{vaddr}, v{vt} offset:{off}")
def t10(vd, qbase, sadd, vt):
    a(f"v_add_u32 v{vt}, {qbase}, v{vLANE}")
    a(f"v_mul_u32_u24 v{vd}, 6554, v{vt}")
    a(f"v_lshrrev_b32 v{vd}, 16, v{vd}")
    a(f"v_mul_u32_u24 v{vd}, 1120, v{vd}")
    a(f"v_lshl_add_u32 v{vt}, v{vt}, 4, {sadd}")
    a(f"v_add_u32 v{vd}, v{vd}, v{vt}")
def pack(dst, src):
    a(f"v_cvt_pk_bf16_f32 v{dst}, v{src}, v{src+1}")
    a(f"v_cvt_pk_bf16_f32 v{dst+1}, v{src+2}, v{src+3}")
def lds_pipe(reads, work, gate, maxfly=14, pre=0, eager=False):
    ri = pre; done = pre - 1
    for j, (needed, text) in enumerate(work):
        if eager and ri < len(reads) and gate[ri] < j and (ri - 1 - done) >= maxfly:
            a(f"s_waitcnt lgkmcnt({maxfly - 2})"); done = ri - 1 - (maxfly - 2)
        while ri < len(reads) and gate[ri] < j and (ri - 1 - done) < maxfly:
            a(reads[ri]); ri += 1
        assert ri > needed, (ri, needed, j)
        if needed > done:
            a(f"s_waitcnt lgkmcnt({ri - 1 - needed})")
            done = needed
        a(text)
    assert ri == len(reads)
def row_allreduce(r):
    for k in (8, 4, 2, 1): a(f"v_add_u32_dpp v{r}, v{r}, v{r} row_ror:{k} row_mask:0xf bank_mask:0xf")
def wave_sum_eq(r, ref=0):
    row_allreduce(r)
    for k in range(4): a(f"v_readlane_b32 s{sT0+k}, v{r}, {16*k}")
    a(f"s_add_u32 s{sT0}, s{sT0}, s{sT1}")
    a(f"s_add_u32 s{sT2}, s{sT2}, s{sT3}")
    a(f"s_add_u32 s{sT0}, s{sT0}, s{sT2}")
    a(f"s_cmp_eq_u32 s{sT0}, {ref}")
def make_tag():
    a(f"s_mul_i32 s{sTAG}, s{sTAG}, 1664525")
    a(f"s_add_u32 s{sTAG}, s{sTAG}, 1013904223")
def dual(fn):
    g = a.newlabel("Ldg"); d = a.newlabel("Ldd")
    a(f"s_cmp_lg_u32 s{sMODE}, 1")
    a(f"s_cbranch_scc1 {g}")
    fn("")
    a(f"s_branch {d}")
    a.label(g)
    fn(" sc1")
    a.label(d)
def set_mode():
    a(f"s_cmp_eq_u32 s{sMODE}, 1")
    a(f"s_cselect_b32 s{sT3}, 0, {GOFF}")
    a(f"s_add_u32 s{sLB}, s{sWS}, s{sT3}")
    a(f"s_addc_u32 s{sLB+1}, s{sWS+1}, 0")
def my_block(sd):
    a(f"s_lshl_b32 s{sd}, s{sGRP}, 5")
    a(f"s_add_u32 s{sd}, s{sd}, s{sI}")
    a(f"s_lshl_b32 s{sd}, s{sd}, 8")
    a(f"s_add_u32 s{sd}, s{sd}, {FB}")
def cell_init():
    my_block(sT0)
    a(f"v_lshl_add_u32 v{vT0}, v{vLANE}, 3, s{sT0}")
    a(f"v_mov_b32 v{vT2}, 0")
    a(f"s_and_b32 s{sT1}, s{sTAG}, 0xffffff00")
    a(f"v_mov_b32 v{vT3}, s{sT1}")
    a(f"s_getreg_b32 s{sT1}, hwreg(HW_REG_XCC_ID, 0, 4)")
    a(f"s_not_b32 s{sT2}, s{sTAG}")
    a(f"v_writelane_b32 v{vT2}, s{sTAG}, 3")
    a(f"v_writelane_b32 v{vT3}, s{sT1}, 3")
    a(f"v_writelane_b32 v{vT2}, s{sT2}, 2")
    a("s_mov_b64 exec, 0xffff")
    a(f"global_store_dwordx2 v{vT0}, {v(vT2,2)}, {WSP} sc1")
    a("s_mov_b64 exec, -1")
def census():
    a(f"s_lshl_b32 s{sT0}, s{sGRP}, 5")
    a(f"v_add_u32 v{vT0}, s{sT0}, v{vLANE}")
    for j in range(4):
        a(f"v_add_u32 v{20+j}, {64*j}, v{vT0}")
        a(f"v_and_b32 v{20+j}, 255, v{20+j}")
        a(f"v_lshlrev_b32 v{20+j}, 8, v{20+j}")
        a(f"v_add_u32 v{20+j}, {FB}, v{20+j}")
    a("v_mov_b32 v24, 0"); a("v_mov_b32 v25, 0")
    for j in range(4): a(f"s_mov_b64 s[{76+2*j}:{77+2*j}], -1")
    def rnd(tag):
        for j in range(4):
            a(f"s_mov_b64 exec, s[{76+2*j}:{77+2*j}]")
            a(f"s_cbranch_execz L_cs{tag}{j}")
            a(f"global_atomic_or_x2 {v(26+2*j,2)}, v{20+j}, v[24:25], {WSP} offset:24 sc0 sc1")
            a.label(f"L_cs{tag}{j}")
        a("s_mov_b64 exec, -1")
        a("s_waitcnt vmcnt(0)")
        for j in range(4): a(f"v_cmp_ne_u32 s[{76+2*j}:{77+2*j}], s{sTAG}, v{26+2*j}")
    a(f"s_mov_b32 s{sSPIN}, 0")
    a.label("L_cen")
    rnd("b")
    a("s_or_b64 s[62:63], s[76:77], s[78:79]")
    a("s_or_b64 vcc, s[80:81], s[82:83]")
    a("s_or_b64 vcc, vcc, s[62:63]")
    a("s_cbranch_scc0 L_cend")
    spin_tail("L_cen", OPT["csleep"])
    a.label("L_cend")
    a(f"v_readfirstlane_b32 s{sT0}, v27")
    a(f"v_cmp_ne_u32 vcc, s{sT0}, v27")
    a("s_cmp_eq_u32 vcc_lo, 0")
    a(f"s_cselect_b32 s{sT0}, {2 if OPT['forceg'] else 1}, 2")
    a(f"v_mov_b32 v24, s{sTAG}")
    a(f"v_mov_b32 v25, s{sT0}")
    a("s_mov_b64 exec, 0xffffffff")
    a(f"global_store_dwordx2 v20, v[24:25], {WSP} offset:16 sc1")
    a("s_mov_b64 exec, -1")
def mode_load():
    my_block(sT2)
    a(f"s_add_u32 s{sT2}, s{sT2}, 16")
    a(f"s_load_dwordx2 s[66:67], {WSP}, s{sT2} glc")
def mode_wait(first=False):
    l = a.newlabel("Lc"); d = a.newlabel("Lcd"); f_ = a.newlabel("Lcf")
    a(f"s_mov_b32 s{sSPIN}, 0")
    if first: a(f"s_branch {f_}")
    else:
        my_block(sT2)
        a(f"s_add_u32 s{sT2}, s{sT2}, 16")
    a.label(l)
    a(f"s_load_dwordx2 s[66:67], {WSP}, s{sT2} glc")
    a.label(f_)
    a("s_waitcnt lgkmcnt(0)")
    a(f"s_cmp_eq_u32 s66, s{sTAG}")
    a(f"s_cbranch_scc1 {d}")
    spin_tail(l, 4)
    a("s_mov_b32 s67, 2")
    a.label(d)
    lds_set(F_MODE, "s67")
def tlb_touch():
    if not OPT["tlb"]: return
    a(f"s_lshl_b32 s{sT0}, s2, 7")
    a(f"s_add_u32 s{sT0}, s{sT0}, 0x1F8000")
    a(f"v_lshl_add_u32 v{vT0}, v{vLANE}, 21, s{sT0}")
    a(f"v_mov_b32 v{vT1}, 0")
    a("s_mov_b64 exec, 0x1e")
    a(f"global_atomic_or v{vT0}, v{vT1}, {WSP} sc1")
    a(f"s_mul_i32 s{sT0}, s{sOR}, {64*1280}")
    a(f"s_mul_i32 s{sT1}, s{sOC}, 160")
    a(f"s_add_u32 s{sT0}, s{sT0}, s{sT1}")
    a("s_mov_b64 exec, 1")
    a(f"v_mov_b32 v{vT0}, s{sT0}")
    a(f"global_atomic_or v{vT0}, v{vT1}, s[{sOUT}:{sOUT+1}] sc1")
    a("s_mov_b64 exec, -1")
def pp(idn, wave, role=None):
    if OPT.get("pp") != idn: return
    lb = a.newlabel("Lpp")
    a(f"s_cmp_lg_u32 s{sWV}, {wave}")
    a(f"s_cbranch_scc1 {lb}")
    a("s_memrealtime s[76:77]")
    a("s_lshl_b32 s78, s2, 2")
    a(f"s_add_u32 s78, s78, {FSUM + 2048}")
    a(f"v_mov_b32 v{vT0}, s78")
    a("s_waitcnt lgkmcnt(0)")
    a(f"v_mov_b32 v{vT1}, s76")
    a("s_mov_b64 s[76:77], exec")
    a("s_mov_b64 exec, 1")
    a(f"global_store_dword v{vT0}, v{vT1}, {WSP} sc1")
    a("s_mov_b64 exec, s[76:77]")
    a("s_waitcnt vmcnt(0)")
    a.label(lb)

TT, SH, vJP, vSOF, vGA = 8, 144, 149, 150, 151
SRD_X, SRD_W, SRD_2 = 40, 44, 48
sSO, sCNT, sLST, sIMG = 59, 63, 57, 56
def img_setup(base):
    a(f"s_mov_b32 s{sIMG}, {base}")
    a(f"s_mul_i32 s{sT0}, s{sOC}, 160")
    for i in range(5):
        a(f"v_add_u32 v{vT0}, {64*i}, v{vLANE}")
        a(f"v_mul_u32_u24 v{vT1}, 6554, v{vT0}")
        a(f"v_lshrrev_b32 v{vT1}, 16, v{vT1}")
        a(f"v_mul_u32_u24 v{vT2}, 160, v{vT1}")
        a(f"v_lshl_add_u32 v{vT0}, v{vT0}, 4, s{sT0}")
        a(f"v_sub_u32 v{vT0}, v{vT0}, v{vT2}")
        a(f"v_and_b32 v{vT2}, 15, v{vT1}")
        a(f"v_mul_u32_u24 v{vT2}, 1280, v{vT2}")
        a(f"v_add_u32 v{TT+i}, v{vT0}, v{vT2}")
        a(f"v_lshrrev_b32 v{vT1}, 2, v{vT1}")
        a(f"v_lshlrev_b32 v{SH+i}, 1, v{vT1}")
    a(f"v_mov_b32 v{vJP}, 0x5500")
    for p in range(10):
        J = JT[p % 5]; e = p < 5
        jp = (J & 0xff) | ((J >> 24) << 8) if e else (J >> 8) & 0xffff
        a(f"s_mov_b32 exec_lo, {hex(0x21 << (p % 5 + 10 * (p // 5)))}")
        a(f"v_mov_b32 v{vJP}, {hex(jp)}")
    a("s_mov_b32 exec_lo, -1")
    a(f"v_subrev_u32 v{vT0}, 10, v{vLANE}")
    a(f"v_min_u32 v{vT0}, v{vT0}, v{vLANE}")
    a(f"v_mul_u32_u24 v{vSOF}, 81920, v{vT0}")
    a(f"s_mul_i32 s{sT0}, s{sOR}, 81920")
    a(f"v_writelane_b32 v{vSOF}, s{sT0}, 20")
    a(f"s_add_u32 s{sT0}, s{sT0}, 40960")
    a(f"v_writelane_b32 v{vSOF}, s{sT0}, 21")
    a(f"s_mov_b32 s{SRD_2+3}, 0x00020000")
    a("s_movk_i32 s58, 20480")
def img_group(dst=None):
    a(f"s_and_b32 s{sT0}, s{sLST}, 31")
    a(f"s_lshr_b32 s{sLST}, s{sLST}, 5")
    a(f"v_readlane_b32 s{sT1}, v{vJP}, s{sT0}")
    a(f"v_readlane_b32 s{sSO}, v{vSOF}, s{sT0}")
    a(f"s_cmp_ge_u32 s{sT0}, 20")
    a(f"s_cselect_b32 s{SRD_2}, s{sX}, s{sWO}")
    a(f"s_cselect_b32 s{SRD_2+1}, s{sX+1}, s{sWO+1}")
    a(f"s_cselect_b32 s{SRD_2+2}, 16, 5")
    a(f"s_and_b32 s{SRD_2+1}, s{SRD_2+1}, 0xffff")
    a(f"s_mul_i32 s{SRD_2+2}, s{SRD_2+2}, {128*1280}")
    if dst is None:
        a(f"s_mul_i32 s{sT0}, s{sT0}, 5120")
        a(f"s_add_u32 m0, s{sT0}, s{sIMG}")
    for i in range(5): a(f"v_bfe_u32 v{vGA+i}, s{sT1}, v{SH+i}, 2")
    for i in range(5): a(f"v_mad_u32_u24 v{vGA+i}, v{vGA+i}, s58, v{TT+i}")
    for i in range(5):
        if dst is None:
            a(f"buffer_load_dwordx4 v{vGA+i}, s[{SRD_2}:{SRD_2+3}], s{sSO} offen lds")
            if i < 4: a("s_add_u32 m0, m0, 1024")
        else: a(f"buffer_load_dwordx4 {v(dst+4*i,4)}, v{vGA+i}, s[{SRD_2}:{SRD_2+3}], s{sSO} offen")
def img_list(per_wave):
    for w, ps in enumerate(per_wave):
        val = 1
        for p in reversed(ps): val = (val << 5) | p
        if w == 0: a(f"s_mov_b32 s{sLST}, {hex(val)}")
        else:
            a(f"s_cmp_eq_u32 s{sWV}, {w}")
            a(f"s_cselect_b32 s{sLST}, {hex(val)}, s{sLST}")
def img_run(per_wave, depth=None, dst=None):
    img_list(per_wave)
    l = a.newlabel("Lim")
    a.label(l)
    img_group(dst)
    if depth is not None: a(f"s_waitcnt vmcnt({depth})")
    a(f"s_cmp_gt_u32 s{sLST}, 1")
    a(f"s_cbranch_scc1 {l}")

a.label("L_entry")
if STAMPS_ON:
    a("s_memrealtime s[72:73]"); a("s_memtime s[74:75]")
elif OPT.get("probe"): a("s_memrealtime s[72:73]")
a("s_load_dwordx16 s[4:19], s[0:1], 0")
a("s_load_dwordx8 s[20:27], s[0:1], 64")
a("s_load_dwordx2 s[28:29], s[0:1], 96")
a("s_cmp_ge_u32 s2, 256")
a("s_cbranch_scc1 L_end")
a(f"v_lshrrev_b32 v{vT0}, 6, v0")
a(f"v_and_b32 v{vLANE}, 63, v0")
a(f"v_readfirstlane_b32 s{sWV}, v{vT0}")
a("s_getpc_b64 s[46:47]")
a.label("L_pc")
a(f"s_lshr_b32 s{sI}, s2, 3")
a(f"s_mul_i32 s{sT0}, s{sI}, {OPT['pfl']*128}")
a(f"s_cmp_lg_u32 s{sWV}, 2")
a("s_cbranch_scc1 L_nopf")
a(f"v_lshl_add_u32 v{vT0}, v{vLANE}, 7, s{sT0}")
a(f"v_min_u32 v{vT0}, L_codeend-L_pc-4, v{vT0}")
a(f"s_mov_b64 exec, {hex((1 << OPT['pfl']) - 1)}")
a(f"global_load_dword v20, v{vT0}, s[46:47]")
a("s_mov_b64 exec, -1")
a.label("L_nopf")
a(f"v_mov_b32 v{vFL}, {FL}")
a(f"v_lshl_add_u32 v{vT1}, v{vLANE}, 3, v{vFL}")
a(f"v_mov_b32 v{vT2}, 0"); a(f"v_mov_b32 v{vT3}, 0")
a(f"ds_write_b64 v{vT1}, {v(vT2,2)}")
a(f"v_lshrrev_b32 v{vG}, 4, v{vLANE}")
a(f"v_and_b32 v{vN}, 15, v{vLANE}")
if STAMPS_ON:
    a(f"v_mov_b32 v{vTR}, 0"); a("s_mov_b32 s95, 63"); a("s_mov_b32 s94, 0"); a("s_mov_b32 s70, 0")
a(f"s_and_b32 s{sGRP}, s2, 7")
if OPT["afirst"]:
    a(f"s_add_u32 s{sI}, s{sI}, 20")
    a(f"s_and_b32 s{sI}, s{sI}, 31")
a(f"s_and_b32 s{sOC}, s{sI}, 7")
a(f"s_lshr_b32 s{sOR}, s{sI}, 3")
a(f"s_lshl2_add_u32 s{sOR}, s{sGRP}, s{sOR}")
a(f"s_cmp_ge_u32 s{sI}, 20")
a(f"s_cselect_b32 s{sROLE}, 1, 0")
a(f"s_cselect_b32 s{sT0}, 20, 0")
a(f"s_cselect_b32 s{sT1}, 5, 10")
a(f"s_sub_u32 s{sCG}, s{sI}, s{sT0}")
a(f"s_cmp_ge_u32 s{sCG}, s{sT1}")
a(f"s_cselect_b32 s{sT1}, s{sT1}, 0")
a(f"s_cselect_b32 s{sT0}, 1, 0")
a(f"s_sub_u32 s{sCG}, s{sCG}, s{sT1}")
a(f"s_lshl1_add_u32 s{sRB}, s{sGRP}, s{sT0}")
a(f"s_mul_i32 s{sXM}, s{sRB}, {128*1280}")
a("s_setprio 3")
a(f"s_cmp_lt_u32 s{sWV}, 4")
a("s_cbranch_scc1 L_service")
a(f"s_cmp_eq_u32 s{sROLE}, 0")
a("s_cbranch_scc1 L_compute")
TAP = 42
a(f"s_min_u32 s{sT3}, s{sCG}, 4")
a(f"s_lshl3_add_u32 s58, s{sT3}, s{sWV}")
a("s_sub_u32 s58, s58, 4")
a(f"s_lshl_b32 s{sT0}, s58, 7")
a(f"v_sub_u32 v{vT0}, v{vN}, v{vG}")
a(f"v_and_b32 v{vT0}, 3, v{vT0}")
a(f"v_and_or_b32 v{vT0}, v{vN}, 12, v{vT0}")
a(f"v_lshl_add_u32 v{vT0}, v{vT0}, 1, s{sT0}")
a("s_waitcnt lgkmcnt(0)")
for q in range(4): a(f"global_load_ushort v{TAP+q}, v{vT0}, s[{sSH}:{sSH+1}] offset:{32*q}")
a("s_branch L_awave")
a.label("L_service")
a(f"s_cmp_lg_u32 s{sROLE}, 0")
a("s_cbranch_scc1 L_aserv")
a(f"s_setprio {OPT['lprio']}")

vAa, vAb = 13, 14
sX1, sX2, sSL, sST = 52, 53, 54, 55
a(f"v_lshrrev_b32 v{vT0}, 3, v{vLANE}")
a(f"v_and_b32 v{vT1}, 7, v{vLANE}")
a(f"s_and_b32 s{sT0}, s{sWV}, 1")
a(f"s_cmp_ge_u32 s{sWV}, 2")
a("s_cbranch_scc1 L_lw")
vGX, vGWA, GAC, GD = 15, 17, 20, 24
def gate_setup():
    a(f"v_lshrrev_b32 v{vT1}, 1, v{vN}")
    a(f"v_xor_b32 v{vT1}, v{vT1}, v{vG}")
    a(f"v_lshlrev_b32 v{vT1}, 4, v{vT1}")
    a(f"v_lshl_add_u32 v{vT1}, v{vN}, 7, v{vT1}")
    a(f"s_lshl_b32 s{sT1}, s{sWV}, 6")
    a(f"v_xor_b32 v{vT1}, s{sT1}, v{vT1}")
    a(f"s_and_b32 s{sT0}, s{sCG}, 7")
    a(f"s_lshl_b32 s{sT0}, s{sT0}, 11")
    a(f"s_add_u32 s{sT0}, s{sT0}, 2048")
    a(f"v_add_u32 v18, s{sT0}, v{vT1}")
    a(f"s_add_u32 s{sT1}, s{sT1}, {GW}")
    a(f"v_lshl_add_u32 v{vGWA}, v{vG}, 4, s{sT1}")
    a("s_mov_b32 s64, 0")
    for r in range(GAC, GD + 8, 2): a(f"v_mov_b64 {v(r,2)}, 0")
def gate_reads():
    a(f"v_add_u32 v{vGX}, s64, v18")
    a(f"ds_read_b128 {v(GD+4,4)}, v{vGWA}")
    a(f"ds_read_b128 {v(GD,4)}, v{vGX}")
    a(f"v_add_u32 v{vGWA}, 128, v{vGWA}")
    a(f"s_add_u32 s64, s64, {SLOT}")
    a(f"s_cmp_eq_u32 s64, {3*SLOT}")
    a("s_cselect_b32 s64, 0, s64")
def gate_dot():
    a("s_waitcnt lgkmcnt(0)")
    a(f"{MF} {v(GAC,4)}, {v(GD+4,4)}, {v(GD,4)}, {v(GAC,4)}")
def loader(tag, n, issue):
    L = f"L_ld_{tag}"
    a(f"s_load_dword s{sTAG}, {WSP}, {EPOCH}")
    trace()
    if tag == "x":
        a(f"s_cmp_lg_u32 s{sWV}, 0")
        a("s_cbranch_scc1 L_nogw")
        srd(a, SRD_2, sGW, sGW + 1, 1280)
        a(f"v_lshlrev_b32 v{vT0}, 4, v{vLANE}")
        a(f"s_mov_b32 m0, {GW}")
        a(f"buffer_load_dwordx4 v{vT0}, s[{SRD_2}:{SRD_2+3}], 0 offen lds")
        a("s_mov_b64 exec, 0xffff")
        a(f"buffer_load_dwordx4 v{vT0}, s[{SRD_2}:{SRD_2+3}], 0 offen offset:1024 lds")
        a("s_mov_b64 exec, -1")
        a.label("L_nogw")
    issue()
    a(f"s_add_u32 s62, s{sSL}, {3*SLOT}")
    a(f"s_mov_b32 s61, s{sSL}")
    a(f"s_add_u32 s{sSL}, s{sSL}, {SLOT}")
    a(f"s_mov_b32 s{sST}, 1")
    img_setup(IMG_B)
    if tag == "x": gate_setup()
    a("s_waitcnt lgkmcnt(0)")
    make_tag()
    if tag == "x": a(f"s_branch {L}_i")
    a.label(L)
    if tag == "x":
        gate_reads()
        a.label(f"{L}_i")
    issue(True)
    a(f"s_add_u32 s{sSL}, s{sSL}, {SLOT}")
    a(f"s_cmp_eq_u32 s{sSL}, s62")
    a(f"s_cselect_b32 s{sSL}, s61, s{sSL}")
    a(f"s_add_u32 s{sST}, s{sST}, 1")
    trace()
    a(f"s_waitcnt vmcnt({n})" + (" lgkmcnt(0)" if STAMPS_ON else ""))
    trace()
    a("s_barrier")
    a(f"s_cmp_lt_u32 s{sST}, 10")
    a(f"s_cbranch_scc1 {L}")
def issue_x(dots=False):
    a(f"s_mov_b32 m0, s{sSL}")
    a(f"s_mov_b32 s{sSO}, s{sX1}")
    for i in range(9):
        if i == 2: a(f"s_mov_b32 s{sSO}, s{sX2}")
        a(f"buffer_load_dwordx4 v{vAa if i % 2 == 0 else vAb}, s[{SRD_X}:{SRD_X+3}], s{sSO} offen lds")
        if i < 8: a("s_add_u32 m0, m0, 1024")
        if i != 1 and i < 8: a(f"s_add_u32 s{sSO}, s{sSO}, 10240")
        if dots and i == 4: gate_dot()
    a(f"s_add_u32 s{sX1}, s{sX1}, 128")
    a(f"s_add_u32 s{sX2}, s{sX2}, 128")
def issue_w(dots=False):
    a(f"s_mov_b32 m0, s{sSL}")
    for blk in range(4):
        for sec in range(3):
            a(f"buffer_load_dwordx4 v{vAa if blk % 2 == 0 else vAb}, s[{SRD_W}:{SRD_W+3}], s{sSO} offen lds")
            if (blk, sec) != (3, 2): a("s_add_u32 m0, m0, 1024")
            a(f"s_add_u32 s{sSO}, s{sSO}, {1280 if sec < 2 else (8*3840 if blk < 3 else 40*3840) - 2560}")
a(f"v_mul_u32_u24 v{vT2}, 1280, v{vT0}")
a(f"v_xor_b32 v{vT3}, v{vT1}, v{vG}")
a(f"v_lshl_add_u32 v{vAa}, v{vT3}, 4, v{vT2}")
a(f"s_lshl_b32 s{sT1}, s{sT0}, 6")
a(f"v_xor_b32 v{vAa}, s{sT1}, v{vAa}")
a(f"v_xor_b32 v{vAb}, 64, v{vAa}")
a(f"s_sub_u32 s{sX1}, s{sXM}, {16*1280}")
a(f"s_cmp_eq_u32 s{sRB}, 0")
a(f"s_cselect_b32 s{sX1}, 0, s{sX1}")
a(f"s_add_u32 s{sT1}, s{sXM}, {7*10240}")
a(f"s_add_u32 s{sT2}, s{sXM}, {9*10240}")
a(f"s_cmp_eq_u32 s{sT0}, 0")
a(f"s_cselect_b32 s{sX1}, s{sX1}, s{sT1}")
a(f"s_cselect_b32 s{sX2}, s{sXM}, s{sT2}")
a(f"s_mul_i32 s{sSL}, s{sT0}, 9216")
a("s_waitcnt lgkmcnt(0)")
srd(a, SRD_X, sX, sX + 1, 2048 * 1280)
loader("x", 9, issue_x)
gate_reads()
gate_dot()
a("s_branch L_ld_end")
a.label("L_lw")
a(f"v_and_b32 v{vT3}, 2, v{vT0}")
a(f"v_xor_b32 v{vT3}, v{vT3}, v{vT1}")
a(f"v_mul_u32_u24 v{vT2}, 3840, v{vT0}")
a(f"v_lshl_add_u32 v{vAa}, v{vT3}, 4, v{vT2}")
a(f"s_lshl_b32 s{sT1}, s{sCG}, 7")
a(f"v_add_u32 v{vAa}, s{sT1}, v{vAa}")
a(f"v_xor_b32 v{vAb}, 64, v{vAa}")
a(f"s_mul_i32 s{sSL}, s{sT0}, {WHALF}")
a(f"s_add_u32 s{sSL}, s{sSL}, {WPART}")
a(f"s_mul_i32 s{sSO}, s{sT0}, {32*3840}")
a("s_waitcnt lgkmcnt(0)")
srd(a, SRD_W, sWQ, sWQ + 1, 640 * 3840)
loader("w", 12, issue_w)
a.label("L_ld_end")
trace_at(24)
img_run([[9], [10], [11], [12]])
a(f"s_cmp_lg_u32 s{sWV}, 2")
a("s_cbranch_scc1 L_wo_nc")
if not OPT["gsolo"]: mode_load()
a.label("L_wo_nc")
a("s_waitcnt vmcnt(5)")
a("s_barrier")
if OPT["gsolo"]: finish()
a(f"s_cmp_lg_u32 s{sWV}, 2")
a("s_cbranch_scc1 L_wo_nm")
mode_wait(first=True)
a.label("L_wo_nm")
a(f"s_cmp_ge_u32 s{sWV}, 2")
a("s_cbranch_scc1 L_wo_ng")
gate_reads()
gate_dot()
a(f"v_lshlrev_b32 v{vT1}, 2, v{vLANE}")
a(f"v_add_u32 v{vT1}, {YS}, v{vT1}")
a(f"s_cmp_eq_u32 s{sWV}, 0")
a("s_cbranch_scc1 L_wo_g0")
a(f"ds_write_b32 v{vT1}, v{GAC}")
lds_set(F_PV + 12, 1)
a("s_branch L_wo_ng")
a.label("L_wo_g0")
lds_set(F_PV + 8, 1)
lds_wait(F_PV + 12, 1)
a(f"ds_read_b32 v{GAC+1}, v{vT1}")
a("s_waitcnt lgkmcnt(0)")
a(f"v_add_f32 v{GAC}, v{GAC}, v{GAC+1}")
a(f"v_cvt_pk_bf16_f32 v{GAC}, v{GAC}, v{GAC}")
a(f"v_and_b32 v{GAC}, 0xffff0000, v{GAC}")
a(f"v_mul_f32 v{GAC}, 0xbfb8aa3b, v{GAC}")
a(f"v_exp_f32 v{GAC}, v{GAC}")
a(f"v_add_f32 v{GAC}, 1.0, v{GAC}")
a(f"v_rcp_f32 v{GAC}, v{GAC}")
a(f"v_cvt_pk_bf16_f32 v{GAC}, v{GAC}, v{GAC}")
a(f"v_and_b32 v{GAC+1}, 0xffff0000, v{GAC}")
a(f"v_mov_b32 v{GAC}, s{sTAG}")
a(f"s_lshl3_add_u32 s{sT0}, s{sRB}, s{sCG}")
a(f"s_lshl_b32 s{sT0}, s{sT0}, 7")
a(f"s_add_u32 s{sT0}, s{sT0}, {GWS}")
a(f"v_lshl_add_u32 v{vT1}, v{vN}, 3, s{sT0}")
a(f"s_cmp_ge_u32 s{sCG}, 8")
a("s_cbranch_scc1 L_wo_ng")
a("s_mov_b64 exec, 0xffff")
a(f"global_store_dwordx2 v{vT1}, {v(GAC,2)}, {WSP} sc1")
a("s_mov_b64 exec, -1")
a.label("L_wo_ng")
img_run([[6, 7], [13, 17, 8], [14, 18, 20], [15, 19, 21, 16]], OPT["bwd"] if OPT["bwd"] >= 0 else None)
trace()
a(f"v_lshl_add_u32 v19, v{vN}, 2, v{vFL}")
a(f"v_add_u32 v19, {F_PQ}, v19")
a("s_movk_i32 s62, 0xcff")
a("s_waitcnt vmcnt(0)")
lds_add(F_WOL)
trace()
mask_wait(19, 62, sleep=1)
if OPT["wo3"]: lds_wait(F_EXR, OPT["wo3"], sleep=1)
img_run([[0], [1], [2, 4], [3, 5]])
a(f"s_cmp_eq_u32 s{sWV}, 3")
a("s_cbranch_scc1 L_help")
a("s_waitcnt vmcnt(0)")
lds_add(F_WOL + 4)
trace()
a(f"s_cmp_lt_u32 s{sWV}, 2")
a("s_cbranch_scc1 L_aux")
finish()

a.label("L_help")
a(f"s_lshl_b32 s{sT0}, s{sOR}, 9")
a(f"s_add_u32 s{sT0}, s{sT0}, {GWS}")
a(f"v_lshl_add_u32 v14, v{vLANE}, 3, s{sT0}")
a(f"v_lshl_add_u32 v13, v{vLANE}, 2, v{vFL}")
a(f"s_mov_b32 s{sSPIN}, 0")
a(f"global_load_dwordx2 v[18:19], v14, {WSP} sc1")
a("s_waitcnt vmcnt(0)")
lds_add(F_WOL + 4)
a("s_branch L_gchk1")
a.label("L_gchk")
a(f"global_load_dwordx2 v[18:19], v14, {WSP} sc1")
a("s_waitcnt vmcnt(0)")
a.label("L_gchk1")
a(f"v_cmp_ne_u32 vcc, s{sTAG}, v18")
a("s_cbranch_vccz L_gok")
spin_tail("L_gchk", 8)
a.label("L_gok")
a("v_sub_f32 v18, 1.0, v19")
a(f"ds_write_b32 v13, v19 offset:{GOM - FL + 256}")
a(f"ds_write_b32 v13, v18 offset:{GOM - FL}")
lds_add(F_GRD)
trace()
a("s_cmp_lg_u32 s2, 0")
a("s_cbranch_scc1 L_th_exit")
lds_wait(F_MODE, 1, sleep=2)
a(f"v_mov_b32 v{vT0}, {EPOCH}")
a(f"v_mov_b32 v{vT1}, s{sTAG}")
a("s_mov_b64 exec, 1")
a(f"global_store_dword v{vT0}, v{vT1}, {WSP} sc1")
a("s_mov_b64 exec, -1")
if OPT.get("probe"):
    a(f"v_lshlrev_b32 v8, 4, v{vLANE}")
    a(f"v_add_u32 v8, {FSUM}, v8")
    a(f"global_load_dwordx4 v[12:15], v8, {WSP} offset:1024 sc1")
    a("s_waitcnt vmcnt(0)")
    for j in range(4): a(f"v_subrev_u32 v{12+j}, s72, v{12+j}")
    a("v_min3_i32 v16, v12, v13, v14"); a("v_min_i32 v16, v16, v15")
    a("s_mov_b32 s50, 0")
    for l in range(64):
        a(f"v_readlane_b32 s52, v16, {l}"); a("s_min_i32 s50, s50, s52")
    a("s_add_u32 s50, s50, s72")
    if OPT.get("pp"):
        a("s_add_u32 s55, s50, 2500")
        a.label("L_probe0")
        a("s_memrealtime s[52:53]"); a("s_waitcnt lgkmcnt(0)")
        a("s_sub_u32 s54, s52, s55"); a("s_cmp_lt_i32 s54, 0"); a("s_cbranch_scc1 L_probe0")
        a(f"global_load_dwordx4 v[12:15], v8, {WSP} offset:2048 sc1")
        a("s_waitcnt vmcnt(0)")
        for j in range(4): a(f"v_subrev_u32 v{12+j}, s50, v{12+j}")
        lanes = range(40, 64) if OPT.get("prole") else range(0, 40)
        if OPT.get("prole") == 2: lanes = range(64)
        if OPT.get("pmax"):
            a("v_max3_u32 v16, v12, v13, v14"); a("v_max_u32 v16, v16, v15")
        else:
            a("v_add3_u32 v16, v12, v13, v14"); a("v_add_u32 v16, v16, v15")
        a("s_mov_b32 s51, 0")
        for l in lanes:
            a(f"v_readlane_b32 s52, v16, {l}")
            a("s_max_u32 s51, s51, s52" if OPT.get("pmax") else "s_add_u32 s51, s51, s52")
        if OPT.get("pmax"): a("s_lshl_b32 s51, s51, 1")
        else:
            a(f"s_mul_i32 s51, s51, {round(65536 * 2 / (4 * len(lanes)))}"); a("s_lshr_b32 s51, s51, 16")
        a("s_min_u32 s51, s51, 10000")
        a("s_add_u32 s50, s50, s51")
    a("s_add_u32 s50, s50, 3000")
    a.label("L_probe")
    a("s_memrealtime s[52:53]"); a("s_waitcnt lgkmcnt(0)")
    a("s_sub_u32 s54, s52, s50"); a("s_cmp_lt_i32 s54, 0"); a("s_cbranch_scc1 L_probe")
a.label("L_th_exit")
finish()

a.label("L_aserv")
SRD_K, SRD_V = 84, 80
vKa = 13
a(f"v_mul_u32_u24 v{vT1}, 1280, v{vG}")
a(f"v_lshl_add_u32 v{vT0}, v{vN}, 4, v{vT1}")
a(f"s_lshl_b32 s{sT0}, s{sCG}, 8")
a(f"v_add_u32 v{vT0}, s{sT0}, v{vT0}")
a(f"s_lshl_b32 s{sT1}, s{sWV}, 6")
a(f"v_xor_b32 v{vKa}, s{sT1}, v{vT0}")
for j in range(1, 4): a(f"v_xor_b32 v{vKa+j}, {16*j}, v{vKa}")
a(f"s_mul_i32 s{sT0}, s{sWV}, {32*1280}")
a(f"s_add_u32 s52, s{sXM}, s{sT0}")
a(f"s_lshl_b32 s53, s{sWV}, 13")
a(f"s_sub_u32 s{sT0}, s{sXM}, {4*1280}")
a(f"v_xor_b32 v{vT0}, 0xf0, v{vT0}")
a(f"v_add_u32 v17, s{sT0}, v{vT0}")
a("s_waitcnt lgkmcnt(0)")
srd(a, SRD_K, sK, sK + 1, 2048 * 1280)
srd(a, SRD_V, sV, sV + 1, 2048 * 1280)
a(f"s_load_dword s{sTAG}, {WSP}, {EPOCH}")
if OPT["gsolo"]:
    a("s_barrier"); finish()
a(f"s_cmp_ge_u32 s{sCG}, 5")
a("s_cbranch_scc1 L_as_nokv")
a(f"s_cmp_lg_u32 s{sWV}, 0")
a("s_cbranch_scc1 L_as_nohalo")
a(f"s_mov_b32 m0, {KT}")
a(f"buffer_load_dwordx4 v17, s[{SRD_K}:{SRD_K+3}], 0 offen lds")
a.label("L_as_nohalo")
a(f"s_add_u32 m0, s53, {KT + 1024}")
a(f"s_mov_b32 s{sSO}, s52")
for i in range(8):
    a(f"buffer_load_dwordx4 v{vKa + i//2}, s[{SRD_K}:{SRD_K+3}], s{sSO} offen lds")
    if i < 7:
        a("s_add_u32 m0, m0, 1024")
        a(f"s_add_u32 s{sSO}, s{sSO}, 5120")
a(f"s_add_u32 m0, s53, {VT}")
for i in range(8):
    a(f"buffer_load_dwordx4 v{vKa + i//2}, s[{SRD_V}:{SRD_V+3}], s52 offen lds")
    if i < 7:
        a("s_add_u32 m0, m0, 1024")
        a("s_add_u32 s52, s52, 5120")
a.label("L_as_nokv")
trace()
a("s_waitcnt vmcnt(0) lgkmcnt(0)")
a("s_barrier")
trace()
make_tag()
sNCH = 64
a(f"s_sub_u32 s{sT0}, s{sI}, 20")
a(f"s_lshr_b32 s{sT0}, {hex(sum(1 << q for q in range(12) if q % 3 == 2))}, s{sT0}")
a(f"s_and_b32 s{sT0}, s{sT0}, 1")
a(f"s_sub_u32 s{sNCH}, 7, s{sT0}")
a(f"s_cmp_eq_u32 s{sWV}, 3")
a("s_cbranch_scc1 L_ahelp")
a("s_setprio 1")
img_setup(IMG_A)
a(f"s_mul_i32 s{sT0}, s{sWV}, {3*5120}")
a(f"s_add_u32 s{sT0}, s{sT0}, {IMG_A}")
a(f"v_lshl_add_u32 v20, v{vLANE}, 4, s{sT0}")
a("s_setprio 3")
lds_wait(F_UDN, 8, sleep=2)
a(f"s_cmp_lg_u32 s{sI}, {OPT['cenw']}")
a("s_cbranch_scc1 L_nohold")
lds_wait(F_KV, 1, sleep=8)
a.label("L_nohold")
trace()
img_run([[9, 12], [10, 13], [11]], OPT["wodepth"], dst=24)
img_run([[14, 17, 20], [15, 18, 21], [16, 19]], OPT["wodepth"])
img_list([[0, 1, 2], [3, 4, 5], [6, 7, 8]])
for k in range(3):
    img_group(24 + 20 * k)
    a(f"s_waitcnt vmcnt({OPT['wodepth']})")
a("s_waitcnt vmcnt(0)")
trace()
lds_wait(F_PB + 20, 1, sleep=8)
lds_wait(F_MRG, f"s{sNCH}", sleep=2)
img_run([[10, 13], [11, 9], [12]])
a("s_waitcnt vmcnt(0)")
lds_add(F_WOL)
trace()
lds_wait(F_CVD, 8, sleep=1)
for i in range(15):
    a(f"ds_write_b128 v20, {v(24+4*i,4)} offset:{1024*i}")
    if i >= 12: a("s_waitcnt lgkmcnt(8)")
lds_add(F_WOL + 4)
trace()
a(f"s_cmp_lt_u32 s{sWV}, 2")
a("s_cbranch_scc1 L_aux")
finish()

a.label("L_ahelp")
a(f"v_lshlrev_b32 v{vT0}, 2, v{vLANE}")
a(f"v_add_u32 v{vT0}, {YS}, v{vT0}")
a(f"v_mov_b32 v{vT1}, 0")
a(f"ds_write_b32 v{vT0}, v{vT1}")
a(f"s_sub_u32 s52, s{sI}, 20")
a(f"s_mul_i32 s{sT0}, s{sGRP}, {XGRP}")
a(f"s_mul_i32 s{sT1}, s52, {129*128}")
a(f"s_add_u32 s{sT0}, s{sT0}, s{sT1}")
a(f"s_add_u32 s{sT0}, s{sT0}, {XLW}")
a(f"v_lshl_add_u32 v15, v{vLANE}, 7, s{sT0}")
a("v_add_u32 v16, 8192, v15")
a("v_add_u32 v17, 16384, v15")
lds_wait(F_UDN, 8, sleep=2)
if OPT.get("probe"):
    a(f"s_lshl_b32 s{sT0}, s2, 2"); a(f"s_add_u32 s{sT0}, s{sT0}, {FSUM + 1024}")
    a(f"v_mov_b32 v{vT0}, s{sT0}"); a(f"v_mov_b32 v{vT1}, s72")
    a(f"global_store_dword v{vT0}, v{vT1}, {WSP} sc1"); a("s_waitcnt vmcnt(0)")
cell_init()
trace()
a(f"s_cmp_lg_u32 s{sI}, {OPT['cenw']}")
a("s_cbranch_scc1 L_nocen")
census()
lds_set(F_KV, 1)
a.label("L_nocen")
trace()
for i in range(3):
    if i == 2: a("s_mov_b64 exec, 1")
    a(f"global_load_dword v18, v{15+i}, {WSP} sc1")
a("s_mov_b64 exec, -1")
tlb_touch()
a("s_sleep 20")
mode_wait()
trace()
lds_add(F_WOL)
lds_wait(F_MRG, 1, sleep=8)
a("s_branch L_help")

a.label("L_aux")
a("s_setprio 3")
my_block(sT0)
a(f"s_lshl3_add_u32 s{sT0}, s{sWV}, s{sT0}")
a(f"s_add_u32 s40, s{sWS}, s{sT0}")
a(f"s_addc_u32 s41, s{sWS+1}, 0")
a(f"s_mul_i32 s{sT0}, s{sOC}, {80*4096}")
a(f"s_mul_i32 s{sT1}, s{sWV}, {40*4096}")
a(f"s_add_u32 s{sT0}, s{sT0}, s{sT1}")
a(f"s_lshl_b32 s{sT1}, s{sOR}, 7")
a(f"s_add_u32 s{sT0}, s{sT0}, s{sT1}")
a(f"s_add_u32 s{sT0}, s{sT0}, {YWS}")
a(f"v_lshrrev_b32 v13, 3, v{vLANE}")
a(f"v_and_b32 v12, 7, v{vLANE}")
a("v_and_b32 v15, 6, v13")
a("v_xor_b32 v15, v15, v12")
a("v_lshlrev_b32 v15, 4, v15")
a("v_lshl_add_u32 v15, v13, 7, v15")
a(f"s_mul_i32 s{sT1}, s{sWV}, 5120")
a(f"s_add_u32 s{sT1}, s{sT1}, {YT}")
a(f"v_add_u32 v15, s{sT1}, v15")
a("v_lshlrev_b32 v13, 12, v13")
a("v_lshl_add_u32 v13, v12, 4, v13")
a(f"v_add_u32 v20, s{sT0}, v13")
for i in range(1, 5): a(f"v_add_u32 v{20+i}, {8*4096*i}, v20")
a(f"s_and_b32 s44, s{sTAG}, 0xffffff00")
a("s_add_u32 s44, s44, 0x600")
a(f"s_mov_b32 s{sSPIN}, 0")
a.label("L_yp")
a("s_load_dwordx2 s[42:43], s[40:41], 0 glc")
a("s_waitcnt lgkmcnt(0)")
a("s_and_b32 s43, s43, 0xffffff00")
a("s_cmp_eq_u32 s43, s44")
a("s_cbranch_scc1 L_ypd")
spin_tail("L_yp", OPT["ysleep"])
a.label("L_ypd")
trace_at(16)
pp(9, 0)
a(f"s_mov_b32 s{sSPIN}, 0")
a.label("L_yretry")
for i in range(5): a(f"global_load_dwordx4 {v(28+4*i,4)}, v{20+i}, {WSP} sc1")
a("v_mov_b32 v16, 0")
for i in range(5):
    a(f"s_waitcnt vmcnt({4-i})")
    a(f"ds_write_b128 v15, {v(28+4*i,4)} offset:{1024*i}")
    a(f"v_add3_u32 v16, v16, v{28+4*i}, v{29+4*i}")
    a(f"v_add3_u32 v16, v16, v{30+4*i}, v{31+4*i}")
wave_sum_eq(16, "s42")
a("s_cbranch_scc1 L_yok")
spin_tail("L_yretry", 2)
a.label("L_yok")
lds_add(F_YLD)
trace()
if STAMPS_ON:
    a(f"s_add_u32 s{sSPIN}, s{sSPIN}, s72"); a(f"s_add_u32 s{sSPIN}, s{sSPIN}, 1"); a(f"v_writelane_b32 v{vTR}, s{sSPIN}, 20")
finish()

a.label("L_compute")
a("s_waitcnt lgkmcnt(0)")
a(f"s_load_dword s{sTAG}, {WSP}, {EPOCH}")


sGW_, sT, sMH, sPH, sSLOT, sINF, sCGP, sB1 = 40, 41, 42, 43, 44, 45, 46, 47
sNQ, sNV, sOWN, sRM, sSC, sFLO = 48, 49, 50, 52, 54, 55
sMT, sE = 56, 57
ACC = 8; XF = 68; WF = 108
vXB, vWB, vXA, vWA, vFA, vINC, vPW, vCNT, vFG = 132, 133, 134, 136, 137, 138, 139, 140, 141
BO, BP, MK = 144, 148, 152
vEXW, vQM, vXS, vXR, vOA, vOX, vVX, vPF, vBND, vPQ = 156, 157, 158, 159, 160, 161, 162, 163, 164, 165
NEG = 0xf149f2ca
a(f"s_setprio {OPT['phi']}")
a(f"s_sub_u32 s{sGW_}, s{sWV}, 4")
a(f"s_lshr_b32 s{sMH}, s{sGW_}, 2")
a(f"s_and_b32 s{sMT}, s{sGW_}, 3")
a(f"s_xor_b32 s{sT}, s{sMT}, s{sMH}")
a(f"s_sub_u32 s{sCGP}, s{sCG}, 5")
a(f"s_cselect_b32 s{sCGP}, s{sCG}, s{sCGP}")
a(f"s_mov_b32 s{sT0}, {hex(JT[0])}"); a(f"s_mov_b32 s{sINF}, {hex(INFO[0])}")
for c in range(1, 5):
    a(f"s_cmp_eq_u32 s{sCGP}, {c}")
    a(f"s_cselect_b32 s{sT0}, {hex(JT[c])}, s{sT0}")
    a(f"s_cselect_b32 s{sINF}, {hex(INFO[c])}, s{sINF}")
a(f"s_lshl_b32 s{sT1}, s{sT}, 3")
a(f"s_lshr_b32 s{sT0}, s{sT0}, s{sT1}")
a(f"s_lshr_b32 s{sINF}, s{sINF}, s{sT1}")
a(f"s_and_b32 s{sINF}, s{sINF}, 0xff")
a(f"v_lshrrev_b32 v{vT1}, 1, v{vN}")
a(f"v_xor_b32 v{vT1}, v{vT1}, v{vG}")
a(f"v_lshlrev_b32 v{vT1}, 4, v{vT1}")
a(f"v_lshl_add_u32 v{vXB}, v{vN}, 7, v{vT1}")
a(f"s_lshl_b32 s{sT1}, s{sMH}, 13")
a(f"v_add_u32 v{vXB}, s{sT1}, v{vXB}")
a(f"v_and_b32 v{vT0}, 3, v{vLANE}")
a(f"v_lshlrev_b32 v{vT1}, 1, v{vT0}")
a(f"v_bfe_u32 v{vT1}, s{sT0}, v{vT1}, 2")
a(f"v_bfe_u32 v{vT2}, v{vLANE}, 3, 2")
a(f"v_xor_b32 v{vT1}, v{vT1}, v{vT2}")
a(f"v_lshl_add_u32 v{vT1}, v{vT1}, 2, v{vT0}")
a(f"v_bfe_u32 v{vT2}, v{vLANE}, 2, 2")
a(f"v_mad_u32_u24 v{vT2}, v{vG}, 24, v{vT2}")
a(f"v_lshlrev_b32 v{vT2}, 7, v{vT2}")
a(f"v_lshl_add_u32 v{vWB}, v{vT1}, 3, v{vT2}")
a(f"v_add_u32 v{vWB}, {WPART}, v{vWB}")
for r in range(ACC, ACC + 60): a(f"v_mov_b32 v{r}, 0")
a(f"s_mov_b32 s{sPH}, 0")
a(f"s_mov_b32 s{sSLOT}, 0")
a(f"v_mov_b32 v{vXA}, v{vXB}")
a(f"v_xor_b32 v{vXA+1}, 64, v{vXB}")
a(f"v_mov_b32 v{vWA}, v{vWB}")
a(f"v_mov_b32 v{vT3}, {hex(NEG)}")
a(f"v_lshlrev_b32 v{vT0}, 2, v{vG}")
a(f"v_sub_u32 v{vT0}, v{vN}, v{vT0}")
for r in range(4):
    a(f"v_subrev_u32 v{vT1}, {r}, v{vT0}")
    a(f"v_and_b32 v{vT1}, 0x80000001, v{vT1}")
    a(f"v_cmp_eq_u32 vcc, 0, v{vT1}")
    a(f"v_cndmask_b32 v{BO+r}, v{vT3}, 0, vcc")
    a(f"v_cmp_eq_u32 vcc, 0x80000000, v{vT1}")
    a(f"v_cndmask_b32 v{BP+r}, v{vT3}, 0, vcc")
a(f"v_and_b32 v{vT1}, 1, v{vN}")
a(f"v_lshlrev_b32 v{vT2}, 4, v{vT1}")
a(f"v_mov_b32 v{vT3}, 0xffff")
a(f"v_lshlrev_b32 v{vT3}, v{vT2}, v{vT3}")
a(f"v_sub_u32 v{vT1}, v{vT0}, v{vT1}")
a(f"v_cmp_le_i32 vcc, 0, v{vT1}")
a(f"v_cndmask_b32 v{MK}, 0, v{vT3}, vcc")
a(f"v_cndmask_b32 v{MK+2}, v{vT3}, 0, vcc")
a(f"v_cmp_le_i32 vcc, 2, v{vT1}")
a(f"v_cndmask_b32 v{MK+1}, 0, v{vT3}, vcc")
a(f"v_cndmask_b32 v{MK+3}, v{vT3}, 0, vcc")
a(f"s_mov_b32 s{sSC}, {hex(f2u((20 ** -0.5) * math.log2(math.e)))}")
a(f"v_bfe_i32 v{vQM}, s{sINF}, v{vG}, 1")
a(f"v_cmp_ne_u32 s[{sOWN}:{sOWN+1}], 0, v{vQM}")
a(f"s_bfe_u32 s60, s{sINF}, {4 | (2 << 16)}")
a(f"v_cmp_eq_u32 s[{sRM}:{sRM+1}], s60, v{vG}")
a(f"s_bfe_u32 s61, s{sINF}, {6 | (1 << 16)}")
a(f"s_lshr_b32 s62, s{sT}, 1")
a(f"s_add_u32 s{sT0}, s{sT}, 1")
a(f"s_bfe_u32 s{sT0}, s{sT0}, {1 | (1 << 16)}")
a(f"s_xor_b32 s{sE}, s{sT0}, 1")
a(f"s_bitcmp1_b32 s{sINF}, 7")
a(f"s_cselect_b32 s63, s62, s61")
a(f"s_mul_i32 s{sT0}, s63, {EXT}")
a(f"s_lshl_b32 s{sT1}, s{sMH}, 11")
a(f"s_add_u32 s{sT0}, s{sT0}, s{sT1}")
a(f"s_add_u32 s{sT0}, s{sT0}, {EX}")
a(f"v_lshl_add_u32 v{vEXW}, v{vLANE}, 3, s{sT0}")
a(f"v_and_b32 v{vT0}, 0x33, v{vLANE}")
a(f"s_lshl_b32 s{sT1}, s60, 5")
a(f"s_add_u32 s{sT0}, s{sT0}, s{sT1}")
a(f"v_lshl_add_u32 v{vVX}, v{vT0}, 3, s{sT0}")
a(f"s_lshl_b32 s{sT0}, s{sT}, 10")
a(f"s_add_u32 s{sT0}, s{sT0}, {EXB}")
a(f"v_lshl_add_u32 v{vBND}, v{vLANE}, 3, s{sT0}")
a(f"v_min_u32 v{vT0}, 16, v{vLANE}")
a(f"v_lshl_add_u32 v{vPF}, v{vT0}, 2, v{vFL}")
a(f"v_add_u32 v{vPF}, {F_PQ}, v{vPF}")
a(f"s_lshl1_add_u32 s{sT0}, s{sT}, s{sMH}")
a(f"s_lshl_b32 s{sT0}, s{sT0}, 2")
a(f"v_add_u32 v{vPQ}, s{sT0}, v{vFL}")
a(f"s_lshl_b32 s{sT0}, s{sT}, 1")
a(f"s_lshl_b32 s{sT0}, s{sMH}, s{sT0}")
a(f"s_lshl1_add_u32 s{sT1}, s{sMH}, 1")
a(f"s_mul_i32 s{sT2}, s61, 6")
a(f"s_lshl_b32 s{sT1}, s{sT1}, s{sT2}")
a(f"s_or_b32 s{sT2}, s{sT0}, s{sT1}")
a(f"s_bitcmp1_b32 s{sINF}, 7")
a(f"s_cselect_b32 s{sNQ}, s{sT0}, s{sT2}")
a(f"s_cselect_b32 s{sNV}, s{sT0}, s{sT1}")
a(f"s_lshl_b32 s{sNV}, s{sNV}, 8")
a(f"s_or_b32 s{sNQ}, s{sNQ}, 0x10000")
a(f"s_and_b32 s64, s{sRB}, 1")
a(f"s_lshl1_add_u32 s65, s64, s{sMH}")
a(f"s_mul_i32 s{sT0}, s65, {2*40960}")
a(f"s_mul_i32 s{sT1}, s{sGRP}, {OGRP}")
a(f"s_add_u32 s{sT0}, s{sT0}, s{sT1}")
a(f"s_lshl_b32 s{sT1}, s{sCG}, 11")
a(f"s_add_u32 s{sT0}, s{sT0}, s{sT1}")
a(f"s_add_u32 s{sT0}, s{sT0}, {UWS}")
a(f"s_mul_i32 s{sT1}, s{sE}, 20480")
a(f"s_lshl3_add_u32 s{sT1}, s62, s{sT1}")
a(f"s_add_u32 s{sT1}, s{sT1}, s{sT0}")
a(f"v_lshl_add_u32 v{vOA}, v{vLANE}, 4, s{sT1}")
a(f"s_lshl_b32 s{sT1}, s60, 8")
a(f"s_lshl3_add_u32 s{sT1}, s61, s{sT1}")
a(f"s_add_u32 s{sT1}, s{sT1}, 20480")
a(f"s_add_u32 s{sT1}, s{sT1}, s{sT0}")
a(f"v_lshrrev_b32 v{vT0}, 1, v{vG}")
a(f"v_mul_u32_u24 v{vT0}, {40960 - 2048}, v{vT0}")
a(f"v_lshl_add_u32 v{vT0}, v{vG}, 10, v{vT0}")
a(f"v_lshl_add_u32 v{vT0}, v{vN}, 4, v{vT0}")
a(f"v_add_u32 v{vOX}, s{sT1}, v{vT0}")
a(f"s_mul_i32 s66, s{sGRP}, {XGRP}")
a(f"s_add_u32 s66, s66, {XLW}")
a(f"s_lshl_b32 s{sT0}, s65, 8")
a(f"s_lshl_b32 s{sT1}, s{sE}, 7")
a(f"s_add_u32 s{sT0}, s{sT0}, s{sT1}")
a(f"s_lshl1_add_u32 s{sT1}, s{sCG}, s62")
a(f"s_lshl2_add_u32 s{sT0}, s{sT1}, s{sT0}")
a(f"s_add_u32 s{sT0}, s{sT0}, s66")
a(f"s_add_u32 s{sFLO}, s{sT0}, {XFLG}")
a(f"s_cmp_ge_u32 s{sCG}, 5")
a(f"s_cselect_b32 s{sT0}, 3, -1")
a(f"s_add_u32 s{sT0}, s{sT0}, s{sCGP}")
a(f"s_add_u32 s{sT0}, s{sT0}, s62")
a(f"s_and_b32 s{sT0}, s{sT0}, 7")
a(f"s_lshl3_add_u32 s{sT0}, s64, s{sT0}")
a(f"s_lshl1_add_u32 s{sT0}, s{sT0}, s62")
a(f"s_lshl1_add_u32 s{sT0}, s{sT0}, s{sMH}")
a(f"s_xor_b32 s{sT1}, s{sT0}, 2")
a(f"s_mul_i32 s{sT0}, s{sT0}, 3072")
a(f"s_mul_i32 s{sT1}, s{sT1}, 3072")
a(f"s_add_u32 s{sT0}, s{sT0}, s66")
a(f"s_add_u32 s{sT1}, s{sT1}, s66")
a(f"v_lshl_add_u32 v{vXR}, v{vLANE}, 4, s{sT0}")
a(f"v_lshl_add_u32 v{vXS}, v{vLANE}, 4, s{sT1}")
a("s_waitcnt lgkmcnt(0)")
a(f"s_mul_i32 s{sTAG}, s{sTAG}, 1664525")
a(f"s_add_u32 s{sTAG}, s{sTAG}, 1013904223")
trace_at(0)

def gemm_loop(js, tag):
    L = f"L_gemm_{tag}"
    def reads(b):
        w = lambda s_: [f"ds_read_b64_tr_b16 {v(WF+12*b+4*s_+2*e,2)}, v{vWA} offset:{WHALF*b + 1024*s_ + 512*e}" for e in range(2)]
        x = lambda j: [f"ds_read_b128 {v(XF+20*b+4*j,4)}, v{vXA+b} offset:{2048*j}"]
        out = x(js[0]) + w(1) + w(2) + x(js[1]) + w(0)
        for j in js[2:]: out += x(j)
        return out
    def mf(b):
        out = []
        for j in js:
            for s_ in (1, 2, 0):
                if s_ == 0 and j == 0: continue
                acc = v(ACC + 20 * s_ + 4 * j, 4); w_, x_ = v(WF+12*b+4*s_, 4), v(XF+20*b+4*j, 4)
                out.append(f"{MF} {acc}, {x_ if s_ == 2 else w_}, {w_ if s_ == 2 else x_}, {acc}")
        return out
    mh = int(js[0] == 1)
    def phase(b, pend, kind):
        m = mf(b)
        gaps = [[] for _ in m]
        k = OPT["r0"]
        def lateprio():
            lp = a.newlabel("Llp")
            return [f"s_bitcmp1_b32 s{sINF}, 7", "s_setprio 3", f"s_cbranch_scc1 {lp}", "s_setprio 1", f"{lp}:"]
        if kind == 0 and b == 1:
            k = OPT["bk"]
            gaps[k] = ["s_barrier"]
            gaps[0] = [f"s_add_u32 s{sSLOT}, s{sSLOT}, {SLOT}", f"s_cmp_eq_u32 s{sSLOT}, {3*SLOT}", f"s_cselect_b32 s{sSLOT}, 0, s{sSLOT}",
                       f"v_add_u32 v{vXA}, s{sSLOT}, v{vXB}", f"v_add_u32 v{vWA}, s{sSLOT}, v{vWB}"] + gaps[0]
            gaps[k] += [f"s_setprio {OPT['pa%d' % mh]}"]
            gaps[k + 2] += [f"v_xor_b32 v{vXA+1}, 64, v{vXA}"]
            gaps[-3] += [f"s_add_u32 s{sPH}, s{sPH}, 1"]
            gaps[-2] += [f"s_cmp_lt_u32 s{sPH}, 9"]
        elif kind == 0: gaps[0] = [f"s_setprio {OPT['pb%d' % mh]}"]
        elif kind == 1: gaps[0] = lateprio() if OPT["lrun"] >= 2 else [f"s_setprio {OPT['pb%d' % mh]}"]
        elif OPT["lrun"] == 1: gaps[0] = lateprio()
        while pend:
            gaps[k] += pend[:OPT["rpg"]]; pend = pend[OPT["rpg"]:]; k += 1
        if kind == 0 and b == 1: gaps[-1] += [f"s_cbranch_scc1 {L}"]
        a("s_waitcnt lgkmcnt(0)")
        for k in range(len(m)):
            a(m[k])
            if b == 1 and k == 8 and OPT["ltr"]: trace()
            for x in gaps[k]: a(x)
    a.label(f"{L}0")
    a("s_barrier")
    trace()
    for r in reads(0): a(r)
    if mh and not OPT["gsolo"]:
        a(f"s_cmp_lg_u32 s{sWV}, 11")
        a(f"s_cbranch_scc1 {L}")
        if OPT.get("probe"):
            a(f"s_lshl_b32 s{sT0}, s2, 2"); a(f"s_add_u32 s{sT0}, s{sT0}, {FSUM + 1024}")
            a(f"v_mov_b32 v{vT0}, s{sT0}"); a(f"v_mov_b32 v{vT1}, s72")
            a(f"global_store_dword v{vT0}, v{vT1}, {WSP} sc1"); a("s_waitcnt vmcnt(0)")
        cell_init()
        tlb_touch()
    a.label(L)
    phase(0, reads(1), 0)
    phase(1, reads(0), 0)
    phase(0, reads(1), 1)
    phase(1, [], 2)
    if not mh: a("s_branch L_gdone")
a(f"s_cmp_lg_u32 s{sMH}, 0")
a("s_cbranch_scc1 L_gemm_40")
gemm_loop([0, 1, 2, 3, 4], "5")
gemm_loop([1, 2, 3, 4], "4")
a.label("L_gdone")
trace()
if OPT["gsolo"]: finish()
pp(2, 8)
QOP, KOP, VM, VXX, XG, BF = 68, 84, 104, 114, 124, 136
SO, SP = 8, 24
XR, M, PP, OM, OX, OPK, XP = 68, 80, 84, 8, 24, 40, 100
AQ, AK, AV = ACC, ACC + 20, ACC + 40
LR = [XG, XG+1, XG+2, XG+4, XG+5, XG+6, XG+8, XG+9]
LA = [LR[2*h] for h in range(4)]; LB = [LR[2*h+1] for h in range(4)]
def bf_setup():
    a(f"s_or_b32 s{sT0}, s{sRB}, s{sMH}")
    a(f"s_cmp_eq_u32 s{sT0}, 0")
    a(f"s_cselect_b32 s{sT0}, {hex(NEG)}, 0")
    for r in range(4): a(f"v_add_f32 v{BF+r}, s{sT0}, v{BP+r}")
def select(h):
    a(f"v_max3_f32 v{LA[h]}, v{SO+4*h}, v{SO+4*h+1}, v{SP+4*h}")
    a(f"v_max3_f32 v{LB[h]}, v{SO+4*h+2}, v{SO+4*h+3}, v{SP+4*h+2}")
    a(f"v_max_f32 v{LA[h]}, v{LA[h]}, v{SP+4*h+1}")
    a(f"v_max_f32 v{LB[h]}, v{LB[h]}, v{SP+4*h+3}")
def get_mode(vt=vT0):
    a(f"v_readlane_b32 s{sMODE}, v{vt}, 16")
    set_mode()
a(f"s_bitcmp0_b32 s{sINF}, 7")
a("s_cbranch_scc1 L_full")
a("s_setprio 3")
for j in (4, 3, 2, 1):
    pack(KOP + 4 * j, AK + 4 * j)
    a(f"ds_write_b64 v{vEXW}, {v(KOP+4*j,2)} offset:{(9+j)*512}")
a(f"s_cmp_lg_u32 s{sMH}, 0")
a("s_cbranch_scc1 L_l_nk0")
pack(KOP, AK)
a(f"ds_write_b64 v{vEXW}, {v(KOP,2)} offset:{9*512}")
a.label("L_l_nk0")
for i in range(4):
    pack(QOP + 4 * i, AQ + 4 * (i + 1))
    a(f"ds_write_b64 v{vEXW}, {v(QOP+4*i,2)} offset:{(i+1)*512}")
lds_set(F_PQ, 1, vaddr=vPQ, vt=vT1)
for i in range(4):
    for e in range(2): a(f"v_and_b32 v{QOP+4*i+e}, v{vQM}, v{QOP+4*i+e}")
for i in (3, 2, 1, 0):
    a(f"{MH} {v(SO+4*i,4)}, {v(KOP+4*(i+1),2)}, {v(QOP+4*i,2)}, {v(BO,4)}")
    if i: a(f"{MH} {v(SP+4*i,4)}, {v(KOP+4*i,2)}, {v(QOP+4*i,2)}, {v(BP,4)}")
bf_setup()
mask_wait(vPF, sNQ)
get_mode()
a(f"s_cmp_eq_u32 s{sMH}, 0")
a("s_cbranch_scc1 L_l_k0")
a(f"ds_read_b64 {v(KOP,2)}, v{vEXW} offset:{9*512}")
a.label("L_l_k0")
for r in (3, 7, 11): a(f"v_mov_b32 v{XG+r}, s{sTAG}")
for h in (3, 2): select(h)
a("s_waitcnt lgkmcnt(0)")
a(f"{MH} {v(SP,4)}, {v(KOP,2)}, {v(QOP,2)}, {v(BF,4)}")
select(1)
pack(VM, AV + 16)
a(f"ds_write_b64 v{vEXW}, {v(VM,2)} offset:{(18+4)*512}")
select(0)
dual(lambda f: [a(f"global_store_dwordx4 v{vXS}, {v(XG+4*q,4)}, {LBP} offset:{1024*q}{f}") for q in (2, 1, 0)])
trace()
for j in (3, 2, 1):
    pack(VM + 2 * (4 - j), AV + 4 * j)
    a(f"ds_write_b64 v{vEXW}, {v(VM+2*(4-j),2)} offset:{(18+j)*512}")
a(f"s_cmp_lg_u32 s{sMH}, 0")
a("s_cbranch_scc1 L_l_nv0")
pack(VM + 8, AV)
a(f"ds_write_b64 v{vEXW}, {v(VM+8,2)} offset:{18*512}")
lds_set(F_PV, 1, vaddr=vPQ, vt=vT1)
a("s_branch L_l_v0")
a.label("L_l_nv0")
lds_set(F_PV, 1, vaddr=vPQ, vt=vT1)
mask_wait(vPF, sNV)
a(f"ds_read_b64 {v(VM+8,2)}, v{vEXW} offset:{18*512}")
a.label("L_l_v0")
a(f"s_mov_b32 s{sSPIN}, 0")
a.label("L_xp")
for q in range(3): a(f"global_load_dwordx4 {v(XR+4*q,4)}, v{vXR}, {LBP} offset:{1024*q} sc1")
a("s_waitcnt vmcnt(0)")
a(f"v_cmp_ne_u32 vcc, s{sTAG}, v{XR+3}")
a(f"v_cmp_ne_u32 s[60:61], s{sTAG}, v{XR+7}")
a(f"v_cmp_ne_u32 s[62:63], s{sTAG}, v{XR+11}")
a("s_or_b64 vcc, vcc, s[60:61]")
a("s_or_b64 vcc, vcc, s[62:63]")
a("s_cbranch_scc0 L_xpd")
spin_tail("L_xp")
a.label("L_xpd")
trace()
for r in LR: a(f"v_add_f32 v{r}, v{r}, v{r - XG + XR}")
a("s_branch L_soft")
a.label("L_full")
pack(KOP + 16, AK + 16); pack(VM, AV + 16)
a(f"s_cmp_lg_u32 s{sMH}, 0")
a("s_cbranch_scc1 L_f_nb")
a(f"ds_write_b64 v{vBND}, {v(KOP+16,2)}")
a(f"ds_write_b64 v{vBND}, {v(VM,2)} offset:512")
pack(KOP, AK); pack(VM + 8, AV)
a.label("L_f_nb")
lds_set(F_PQ, 1, vaddr=vPQ, vt=vT1)
for i in range(4):
    pack(QOP + 4 * i, AQ + 4 * (i + 1))
    a(f"v_mov_b32 v{QOP+4*i+2}, 0"); a(f"v_mov_b32 v{QOP+4*i+3}, 0")
for j in (1, 2, 3): pack(KOP + 4 * j, AK + 4 * j)
bf_setup()
mask_wait(vPF, sNQ)
get_mode()
trace()
a(f"s_cmp_eq_u32 s{sMH}, 0")
a("s_cbranch_scc1 L_f_nr")
a(f"ds_read_b64 {v(KOP,2)}, v{vBND}")
a(f"ds_read_b64 {v(VM+8,2)}, v{vBND} offset:512")
a.label("L_f_nr")
a(f"s_mov_b64 exec, s[{sRM}:{sRM+1}]")
for i in range(4): a(f"ds_read_b64 {v(QOP+4*i+2,2)}, v{vEXW} offset:{(i+1)*512}")
a("s_mov_b64 exec, -1")
for j in range(5): a(f"ds_read_b64 {v(KOP+4*j+2,2)}, v{vEXW} offset:{(9+j)*512}")
for j in (1, 2, 3): pack(VM + 2 * (4 - j), AV + 4 * j)
for i in range(4):
    a(f"s_waitcnt lgkmcnt({3-i})")
    a(f"{MF} {v(SO+4*i,4)}, {v(KOP+4*(i+1),4)}, {v(QOP+4*i,4)}, {v(BO,4)}")
    a(f"{MF} {v(SP+4*i,4)}, {v(KOP+4*i,4)}, {v(QOP+4*i,4)}, {v(BF if i == 0 else BP,4)}")
mask_wait(vPF, sNV)
for j in range(5): a(f"ds_read_b64 {v(VXX+2*(4-j),2)}, v{vVX} offset:{(18+j)*512}")
for h in range(4): select(h)
trace()
a.label("L_soft")
for h in range(4): a(f"v_max_f32 v{M+h}, v{LA[h]}, v{LB[h]}")
def xreduce(op, mid):
    a(f"v_permlane32_swap_b32 v{M}, v{M+1}")
    a(f"v_permlane32_swap_b32 v{M+2}, v{M+3}")
    a(f"{op} v{M}, v{M}, v{M+1}")
    a(f"{op} v{M+2}, v{M+2}, v{M+3}")
    a(f"v_permlane16_swap_b32 v{M}, v{M+2}")
    a(f"{op} v{M}, v{M}, v{M+2}")
    mid(M)
    a(f"v_mov_b32 v{M+2}, v{M}")
    a(f"v_permlane16_swap_b32 v{M}, v{M+2}")
    a(f"v_mov_b32 v{M+1}, v{M}")
    a(f"v_mov_b32 v{M+3}, v{M+2}")
    a(f"v_permlane32_swap_b32 v{M}, v{M+1}")
    a(f"v_permlane32_swap_b32 v{M+2}, v{M+3}")
xreduce("v_max_f32", lambda r: a(f"v_mul_f32 v{r}, s{sSC}, v{r}"))
for h in range(4):
    a(f"v_fma_f32 v{LA[h]}, v{LA[h]}, s{sSC}, -v{M+h}")
    a(f"v_fma_f32 v{LB[h]}, v{LB[h]}, s{sSC}, -v{M+h}")
for h in range(4):
    a(f"v_exp_f32 v{LA[h]}, v{LA[h]}")
    a(f"v_exp_f32 v{LB[h]}, v{LB[h]}")
for h in range(4): a(f"v_add_f32 v{M+h}, v{LA[h]}, v{LB[h]}")
xreduce("v_add_f32", lambda r: a(f"v_rcp_f32 v{r}, v{r}"))
a("s_waitcnt lgkmcnt(0)")
lds_add(F_EXR)
for h in range(4):
    a(f"v_mul_f32 v{LA[h]}, v{LA[h]}, v{M+h}")
    a(f"v_mul_f32 v{LB[h]}, v{LB[h]}, v{M+h}")
    a(f"v_cvt_pk_bf16_f32 v{LA[h]}, v{LA[h]}, v{LA[h]}")
    a(f"v_cvt_pk_bf16_f32 v{LB[h]}, v{LB[h]}, v{LB[h]}")
    a(f"v_and_b32 v{PP+4*h}, v{LA[h]}, v{MK}")
    a(f"v_and_b32 v{PP+4*h+1}, v{LB[h]}, v{MK+1}")
    a(f"v_and_b32 v{PP+4*h+2}, v{LA[h]}, v{MK+2}")
    a(f"v_and_b32 v{PP+4*h+3}, v{LB[h]}, v{MK+3}")
    if h > 0: a(f"{MF} {v(OM+4*(h-1),4)}, {v(VM+2*(4-h),4)}, {v(PP+4*(h-1),4)}, 0")
a(f"v_add_u32 v{vEXW}, 40960, v{vOA}")
a(f"{MF} {v(OM+12,4)}, {v(VM,4)}, {v(PP+12,4)}, 0")
a(f"s_bitcmp1_b32 s{sINF}, 7")
a("s_cbranch_scc1 L_norem")
for i in range(4): a(f"{MF} {v(OX+4*i,4)}, {v(VXX+2*(3-i),4)}, {v(PP+4*i,4)}, 0")
a.label("L_norem")
for i in range(4): pack(OPK + 2 * i, OM + 4 * i)
a(f"s_mov_b64 exec, s[{sOWN}:{sOWN+1}]")
dual(lambda f: [a(f"global_store_dwordx2 v{vOA if i < 2 else vEXW}, {v(OPK+2*i,2)}, {LBP} offset:{1024*(i&1)}{f}") for i in range(4)])
a("s_mov_b64 exec, -1")
a(f"s_bitcmp1_b32 s{sINF}, 7")
a("s_cbranch_scc1 L_norem2")
pack(XP, OX)
a("s_mov_b32 exec_lo, 0xffff0000")
pack(XP, OX + 4)
a("s_mov_b32 exec_lo, 0")
pack(XP, OX + 8)
a("s_mov_b32 exec_hi, 0xffff0000")
pack(XP, OX + 12)
a("s_mov_b64 exec, -1")
dual(lambda f: a(f"global_store_dwordx2 v{vOX}, {v(XP,2)}, {LBP}{f}"))
a.label("L_norem2")
trace_at(16)
pp(3, 4)

ACCB, OF, WB, GQ = 8, 28, 68, 128
NB = 15
vWM, vO4, vPL, vRD, vFM, vGAD, vSTG = 148, 158, 159, 160, 161, 162, 164
vOUT = [165, 166, vT3]
sOP = 60
vWF = 149
def tail_setup(img, red):
    a(f"v_bfe_u32 v{vT1}, v{vLANE}, 2, 2")
    a(f"v_lshl_add_u32 v{vT1}, v{vG}, 2, v{vT1}")
    a(f"v_mul_u32_u24 v{vT1}, 160, v{vT1}")
    a(f"v_and_b32 v{vT2}, 3, v{vLANE}")
    a(f"v_lshl_add_u32 v{vT1}, v{vT2}, 3, v{vT1}")
    a(f"s_mul_i32 s{sT0}, s{sE}, 51200")
    a(f"s_sub_u32 s{sT0}, {img + 51200}, s{sT0}")
    a(f"v_add_u32 v{vWM}, s{sT0}, v{vT1}")
    a(f"s_mul_i32 s59, s{sMT}, 2560")
    a(f"s_add_u32 s59, s59, {img + 20*5120}")
    a(f"s_lshl_b32 s{sT0}, s{sE}, 2")
    a(f"v_add_u32 v{vWF}, s{sT0}, v{vFL}")
    a(f"s_and_b32 s{sT2}, s{sOR}, 3")
    a(f"s_lshr_b32 s{sT0}, s{sMT}, 1")
    a(f"s_lshl1_add_u32 s{sT0}, s{sT2}, s{sT0}")
    a(f"s_lshl1_add_u32 s{sT0}, s{sT0}, s{sE}")
    a(f"s_mul_i32 s{sT0}, s{sT0}, 20480")
    a(f"s_and_b32 s{sT1}, s{sMT}, 1")
    a(f"s_lshl_b32 s{sT1}, s{sT1}, 10")
    a(f"s_add_u32 s{sT0}, s{sT0}, s{sT1}")
    a(f"s_mul_i32 s{sT1}, s{sGRP}, {OGRP}")
    a(f"s_add_u32 s{sT0}, s{sT0}, s{sT1}")
    a(f"s_add_u32 s{sT0}, s{sT0}, {UWS + 4096}")
    a(f"v_lshl_add_u32 v{vO4}, v{vLANE}, 4, s{sT0}")
    for q in range(1, 3):
        a(f"s_add_u32 s{sOP+2*q}, s{sLB}, {8192*q}")
        a(f"s_addc_u32 s{sOP+2*q+1}, s{sLB+1}, 0")
    a(f"s_mul_i32 s{sT0}, s{sGRP}, {XGRP}")
    a(f"s_lshl_b32 s{sT2}, s{sT2}, 8")
    a(f"s_add_u32 s{sT0}, s{sT0}, s{sT2}")
    a(f"s_add_u32 s{sT0}, s{sT0}, {XLW + XFLG}")
    a(f"v_lshl_add_u32 v{vPL}, v{vLANE}, 2, s{sT0}")
    a(f"s_mul_i32 s58, s{sMT}, 5120")
    a(f"s_add_u32 s58, s58, {red}")
    a(f"v_lshl_add_u32 v{vRD}, v{vLANE}, 4, s58")
    a(f"s_lshl_b32 s{sT0}, s{sMT}, 2")
    a(f"v_add_u32 v{vFM}, s{sT0}, v{vFL}")
    a(f"v_mul_u32_u24 v{vSTG}, 160, v{vN}")
    a(f"v_lshl_add_u32 v{vSTG}, v{vG}, 3, v{vSTG}")
tail_setup(IMG_B, RED_B)
a(f"v_mov_b32 v{vT0}, s{sFLO}")
a(f"v_mov_b32 v{vT1}, s{sTAG}")
a("s_mov_b64 exec, 1")
a("s_waitcnt vmcnt(0)")
dual(lambda f: a(f"global_store_dword v{vT0}, v{vT1}, {LBP}{f}"))
a("s_mov_b64 exec, -1")
a.label("L_tail")
trace_at(20)
a(f"s_lshl2_add_u32 s{sT0}, s{sOR}, s{sMT}")
a(f"s_mul_i32 s{sT0}, s{sT0}, {16*1280}")
a(f"s_mul_i32 s{sT1}, s{sOC}, 160")
a(f"s_add_u32 s{sT0}, s{sT0}, s{sT1}")
for i in range(3): t10(vOUT[i], 64 * i, f"s{sT0}", vT1)
loads = [f"global_load_dwordx4 {v(OF+4*c,4)}, v{vO4}, {LBP if c < 4 else 's[%d:%d]' % (sOP+2*(c//4), sOP+2*(c//4)+1)} offset:{2048*(c%4) - 4096} sc1" for c in range(10)]
reads, gate, work, users = [], [], [], []
fc = 0
for c in range(10):
    for T in range(5):
        b = WB + 4 * (fc % NB)
        g = users[fc - NB] if fc >= NB else -1
        for e in range(2):
            reads.append(f"ds_read_b64_tr_b16 {v(b+2*e,2)}, v{vWM} offset:{5120*c + 2560*e + 32*T}"); gate.append(g)
        txt = f"{MF} {v(ACCB+4*T,4)}, {v(b,4)}, {v(OF+4*c,4)}, {v(ACCB+4*T,4) if c else 0}"
        if T == 0: txt = f"s_waitcnt vmcnt({9 - c})\n" + txt
        users.append(len(work)); work.append((len(reads) - 1, txt)); fc += 1
lds_wait(F_WOL, 4, vaddr=vWF, sleep=1)
trace()
PRE = 2 * NB
for i in range(PRE):
    a(reads[i])
    if i >= 12 and i % 4 == 0: a("s_waitcnt lgkmcnt(8)")
a(f"s_mul_i32 exec_hi, s{sE}, 0xfffff")
a("s_mov_b32 exec_lo, 0xfffff")
a(f"s_mov_b32 s{sSPIN}, 0")
a.label("L_op")
a(f"global_load_dword v{vT0}, v{vPL}, {LBP} sc1")
a("s_waitcnt vmcnt(0)")
a(f"v_cmp_ne_u32 vcc, s{sTAG}, v{vT0}")
a("s_cbranch_vccz L_opd")
spin_tail("L_op", OPT["osleep"])
a.label("L_opd")
a("s_mov_b64 exec, -1")
for x in loads: a(x)
trace()
pp(7, 4)
a(f"s_lshl_b32 s{sT0}, s{sMT}, 6")
a(f"s_add_u32 s{sT0}, s{sT0}, {GOM}")
a(f"v_lshl_add_u32 v{vT1}, v{vN}, 2, s{sT0}")
lds_wait(F_GRD, 1)
a(f"ds_read2st64_b32 {v(vGAD,2)}, v{vT1} offset0:0 offset1:1")
a(f"s_cmp_lg_u32 s{sE}, 0")
a("s_cbranch_scc1 L_nogq")
a(f"v_add_u32 v{vT1}, s59, v{vSTG}")
for T in range(5): a(f"ds_read_b64 {v(ACCB+2*T,2)}, v{vT1} offset:{32*T}")
for i in range(10):
    if i % 2 == 0: a(f"s_waitcnt lgkmcnt({4 - i//2})")
    a(f"v_lshlrev_b32 v{GQ+2*i}, 16, v{ACCB+i}")
    a(f"v_and_b32 v{GQ+2*i+1}, 0xffff0000, v{ACCB+i}")
    a(f"v_mul_f32 v{GQ+2*i}, v{vGAD+1}, v{GQ+2*i}")
    a(f"v_mul_f32 v{GQ+2*i+1}, v{vGAD+1}, v{GQ+2*i+1}")
a.label("L_nogq")
a("s_waitcnt lgkmcnt(0)")
a(f"v_add_u32 v{vSTG}, s58, v{vSTG}")
lds_pipe(reads, work, gate, maxfly=14, pre=PRE, eager=True)
trace()
pp(8, 4)
a(f"s_cmp_lg_u32 s{sE}, 0")
a("s_cbranch_scc1 L_noy")
a(f"v_bfe_u32 v{vT1}, v{vLANE}, 2, 3")
a(f"v_and_b32 v{vT1}, 6, v{vT1}")
a(f"v_bfe_u32 v{vT2}, v{vLANE}, 1, 1")
a(f"s_lshl_b32 s{sT0}, s{sMT}, 1")
a(f"v_or_b32 v{vT2}, s{sT0}, v{vT2}")
a(f"v_xor_b32 v{vT1}, v{vT1}, v{vT2}")
a(f"v_lshlrev_b32 v{vT1}, 4, v{vT1}")
a(f"v_lshrrev_b32 v{vT2}, 2, v{vLANE}")
a(f"v_lshl_add_u32 v{vT1}, v{vT2}, 7, v{vT1}")
a(f"v_and_b32 v{vT2}, 1, v{vLANE}")
a(f"v_lshl_add_u32 v{vT1}, v{vT2}, 3, v{vT1}")
for r in range(20): a(f"v_mul_f32 v{ACCB+r}, v{vGAD}, v{ACCB+r}")
a(f"v_mov_b32 v{vGAD}, 1.0")
lds_wait(F_YLD, 2)
trace()
for T in range(5): a(f"ds_read_b64_tr_b16 {v(48+2*T,2)}, v{vT1} offset:{YT + 2048*T}")
for i in range(10):
    if i % 2 == 0: a(f"s_waitcnt lgkmcnt({4 - i//2})")
    a(f"v_lshlrev_b32 v58, 16, v{48+i}")
    a(f"v_and_b32 v59, 0xffff0000, v{48+i}")
    a(f"v_fmac_f32 v{ACCB+2*i}, v58, v{GQ+2*i}")
    a(f"v_fmac_f32 v{ACCB+2*i+1}, v59, v{GQ+2*i+1}")
a.label("L_noy")
QQ = 28
a(f"v_mov_b32 v{vT0}, 1")
a("s_mov_b64 exec, 1")
a(f"ds_add_rtn_u32 v{vT0}, v{vFM}, v{vT0} offset:{F_RED}")
a("s_mov_b64 exec, -1")
a(f"s_mov_b32 s{sSPIN}, 0")
a.label("L_fb")
a(f"ds_read_b32 v{vT1}, v{vFM} offset:{F_QRD}")
for T in range(5): a(f"ds_read_b128 {v(QQ+4*T,4)}, v{vRD} offset:{1024*T}")
a("s_waitcnt lgkmcnt(5)")
a(f"v_readfirstlane_b32 s{sT2}, v{vT0}")
a(f"v_readfirstlane_b32 s{sT0}, v{vT1}")
a(f"s_cmp_eq_u32 s{sT2}, 0")
a("s_cbranch_scc1 L_first")
a(f"s_cmp_lg_u32 s{sT0}, 0")
a("s_cbranch_scc1 L_fin")
a("s_waitcnt lgkmcnt(0)")
spin_tail("L_fb", 1)
a.label("L_fin")
trace_at(26)
for T in range(5):
    a(f"s_waitcnt lgkmcnt({4-T})")
    for r in range(4): a(f"v_fmac_f32 v{QQ+4*T+r}, v{vGAD}, v{ACCB+4*T+r}")
    pack(48 + 2 * T, QQ + 4 * T)
for T in range(5): a(f"ds_write_b64 v{vSTG}, {v(48+2*T,2)} offset:{32*T}")
for i in range(3): a(f"ds_read_b128 {v(72+4*i,4)}, v{vRD} offset:{1024*i}")
for i in range(3):
    a(f"s_waitcnt lgkmcnt({2-i})")
    if i == 2: a("s_mov_b64 exec, 0xffffffff")
    a(f"global_store_dwordx4 v{vOUT[i]}, {v(72+4*i,4)}, s[{sOUT}:{sOUT+1}]")
trace()
finish()
a.label("L_first")
for r in range(20): a(f"v_mul_f32 v{ACCB+r}, v{vGAD}, v{ACCB+r}")
lds_wait(F_EXR, 8)
for T in range(5): a(f"ds_write_b128 v{vRD}, {v(ACCB+4*T,4)} offset:{1024*T}")
lds_set(F_QRD, 1, vaddr=vFM)
trace_at(28)
finish()

a.label("L_awave")
if OPT["gsolo"]:
    a("s_waitcnt lgkmcnt(0)"); a("s_barrier"); finish()
SRD_H = 48
sA, sC0, sHB, sUB, sNST, sAIN, sBIN, sOWNR, sDV = 40, 41, 42, 43, 44, 46, 47, 52, 53
a(f"s_sub_u32 s{sA}, s{sWV}, 4")
if OPT["ktr"]: trace()
a(f"s_load_dword s{sTAG}, {WSP}, {EPOCH}")
a("s_setprio 2")
a(f"s_and_b32 s{sMT}, s{sA}, 3")
a(f"s_lshr_b32 s{sE}, s{sA}, 2")
a(f"s_sub_u32 s{sT0}, s{sI}, 20")
a(f"s_mul_i32 s{sT1}, s{sT0}, 43")
a(f"s_lshr_b32 s{sT1}, s{sT1}, 7")
a(f"s_mul_i32 s{sC0}, s{sT0}, 7")
a(f"s_sub_u32 s{sC0}, s{sC0}, s{sT1}")
a(f"s_mul_i32 s{sT1}, s{sT1}, 3")
a(f"s_sub_u32 s{sT1}, s{sT0}, s{sT1}")
a(f"s_cmp_eq_u32 s{sT1}, 2")
a(f"s_cselect_b32 s{sNCH}, 6, 7")
a(f"s_mul_i32 s{sT1}, s{sGRP}, 80")
a(f"s_add_u32 s{sC0}, s{sC0}, s{sT1}")
a(f"s_cmp_lt_u32 s{sA}, s{sNCH}")
a(f"s_cselect_b32 s{sOWNR}, 1, 0")
a(f"s_cselect_b32 s{sT2}, s{sA}, 0")
a(f"s_cselect_b32 s{sNST}, 7, s{sNCH}")
a(f"s_cselect_b32 s54, 0, {7*64}")
a(f"s_add_u32 s{sC0}, s{sC0}, s{sT2}")
a(f"s_mul_i32 s{sHB}, s{sT2}, {HCH}")
a(f"s_mul_i32 s{sUB}, s{sT2}, {ULCH}")
a(f"s_add_u32 s{sUB}, s{sUB}, {UL}")
a(f"s_lshl_b32 s55, s{sC0}, 12")
a(f"s_add_u32 s{SRD_H}, s{sSSM}, s55")
a(f"s_addc_u32 s{SRD_H+1}, s{sSSM+1}, 0")
a(f"s_and_b32 s{SRD_H+1}, s{SRD_H+1}, 0xffff")
a(f"s_mov_b32 s{SRD_H+2}, 4096")
a(f"s_mov_b32 s{SRD_H+3}, 0x00020000")
vL16, vKA, vVA, vUW, vUR, vUG, vEE, vEP = 8, 9, 11, 12, 13, 14, 148, 149
vUS, vUD, vHW, vYG, vYS, vCEL, vPBA, vPBF = 150, 151, 152, 153, 159, 160, 161, 162
AB, vBB = 154, 158
CACC, CA, CB0, CB1, AD, SEL = 16, 48, 80, 112, 144, 164
WK = 16
a(f"s_lshr_b32 s{sT0}, s{sC0}, 1")
a(f"s_lshl_b32 s{sT0}, s{sT0}, 2")
a(f"s_load_dword s{sDV}, s[{sDD}:{sDD+1}], s{sT0}")
a(f"v_lshlrev_b32 v{vL16}, 4, v{vLANE}")
a(f"v_lshl_add_u32 v{vT1}, v{vN}, 3, v{vG}")
a(f"v_lshlrev_b32 v{vT1}, 8, v{vT1}")
a(f"v_add_u32 v{vT1}, {KT}, v{vT1}")
a(f"s_lshl_b32 s{sT0}, s{sA}, 1")
a(f"v_xor_b32 v{vT2}, s{sT0}, v{vN}")
a(f"v_lshl_add_u32 v{vKA}, v{vT2}, 4, v{vT1}")
a(f"v_add_u32 v{vT2}, 15, v{vN}")
a(f"v_and_b32 v{vT2}, 15, v{vT2}")
a(f"v_xor_b32 v{vT2}, s{sT0}, v{vT2}")
a(f"v_lshl_add_u32 v{vKA+2}, v{vT2}, 4, v{vT1}")
a(f"v_xor_b32 v{vKA+1}, 16, v{vKA}")
a(f"v_xor_b32 v{vKA+3}, 16, v{vKA+2}")
a(f"s_lshl_b32 s{sT0}, s58, 16")
a(f"s_lshl_b32 s{sT1}, s{sRB}, 8")
a(f"s_add_u32 s{sT0}, s{sT0}, s{sT1}")
a(f"s_add_u32 s{sT0}, s{sT0}, {UWS}")
a(f"v_lshlrev_b32 v{vT1}, 12, v{vG}")
a(f"v_lshl_add_u32 v{vT1}, v{vN}, 4, v{vT1}")
a(f"v_add_u32 v{vUG}, s{sT0}, v{vT1}")
for q in range(1, 4):
    a(f"s_add_u32 s{58+2*q}, s{sWS}, {16384*q}") if q != 3 else a(f"s_add_u32 s66, s{sWS}, {16384*q}")
    a(f"s_addc_u32 s{59+2*q}, s{sWS+1}, 0") if q != 3 else a(f"s_addc_u32 s67, s{sWS+1}, 0")
UBASE = [WSP, "s[60:61]", "s[62:63]", "s[66:67]"]
a(f"s_lshl4_add_u32 s{sT0}, s58, s{sRB}")
a(f"s_lshl_b32 s{sT0}, s{sT0}, 7")
a(f"s_add_u32 s{sT0}, s{sT0}, {EU}")
a(f"v_add_u32 v{vT1}, v{vN}, v{vG}")
a(f"v_lshl_add_u32 v{vEE}, v{vT1}, 3, s{sT0}")
a(f"s_lshr_b32 s{sT0}, s{sC0}, 4")
a(f"s_lshl_b32 s{sT0}, s{sT0}, 11")
a(f"s_and_b32 s{sT1}, s{sC0}, 15")
a(f"s_lshl3_add_u32 s{sT0}, s{sT1}, s{sT0}")
a(f"s_add_u32 s{sT0}, s{sT0}, {EU}")
a(f"v_lshl_add_u32 v{vEP}, v{vN}, 7, s{sT0}")
SRD_U = 76
a(f"s_add_u32 s{sT0}, s55, {UWS}")
a(f"s_add_u32 s{SRD_U}, s{sWS}, s{sT0}")
a(f"s_addc_u32 s{SRD_U+1}, s{sWS+1}, 0")
a(f"s_and_b32 s{SRD_U+1}, s{SRD_U+1}, 0xffff")
a(f"s_mov_b32 s{SRD_U+2}, 4096")
a(f"s_mov_b32 s{SRD_U+3}, 0x00020000")
a(f"s_add_u32 s{sT0}, s{sHB}, {HC + 4080 - 3072}")
a(f"v_sub_u32 v{vHW}, s{sT0}, v{vL16}")
a(f"v_sub_u32 v{vT1}, 2031, v{vN}")
a(f"v_and_b32 v{vT2}, 1, v{vT1}")
a(f"v_lshrrev_b32 v{vT1}, 1, v{vT1}")
a(f"v_lshl_add_u32 v{vT1}, v{vG}, 2, v{vT1}")
a(f"v_lshlrev_b32 v{vT1}, 2, v{vT1}")
a(f"v_mul_u32_u24 v{vT2}, {HOO}, v{vT2}")
a(f"s_sub_u32 s{sT0}, s{sHB}, s54")
a(f"v_add3_u32 v{vT1}, v{vT1}, v{vT2}, s{sT0}")
for j in range(4): a(f"v_subrev_u32 v{AB+j}, {512*7 - 1024*j - HC}, v{vT1}")
a(f"v_lshlrev_b32 v{vT1}, 5, v{vN}")
a(f"v_lshl_add_u32 v{vT1}, v{vG}, 4, v{vT1}")
a(f"s_sub_u32 s{sT0}, s{sUB}, s54")
a(f"s_add_u32 s{sT0}, s{sT0}, 480")
a(f"v_add_u32 v{vBB}, s{sT0}, v{vT1}")
a(f"v_and_b32 v{vT1}, 1, v{vG}")
a(f"v_lshlrev_b32 v{vT1}, 9, v{vT1}")
a(f"v_lshl_add_u32 v{vT1}, v{vN}, 5, v{vT1}")
a(f"v_lshrrev_b32 v{vT2}, 1, v{vG}")
a(f"v_lshl_add_u32 v{vT1}, v{vT2}, 4, v{vT1}")
a(f"s_add_u32 s{sT0}, s55, {YWS}")
a(f"v_add_u32 v{vYG}, s{sT0}, v{vT1}")
a(f"v_and_b32 v{vT1}, 1, v{vN}")
a(f"v_lshl_add_u32 v{vT1}, v{vT1}, 2, v{vG}")
a(f"v_lshrrev_b32 v{vT2}, 2, v{vN}")
a(f"v_lshl_add_u32 v{vT1}, v{vT1}, 2, v{vT2}")
a(f"v_lshlrev_b32 v{vT1}, 2, v{vT1}")
a(f"v_add_u32 v{vYS}, {YS}, v{vT1}")
a(f"s_cmp_ge_u32 s{sI}, 26")
a(f"s_cselect_b32 s{sT0}, 8, 0")
a(f"s_lshl_b32 s{sT1}, s{sGRP}, 8")
a(f"s_add_u32 s{sT0}, s{sT0}, s{sT1}")
a(f"s_add_u32 s{sT0}, s{sT0}, {FB}")
a(f"v_and_b32 v{vT1}, 31, v{vLANE}")
a(f"v_lshl_add_u32 v{vCEL}, v{vT1}, 11, s{sT0}")
a(f"s_lshl_b32 s{sT0}, s{sT2}, 12")
a(f"s_add_u32 s{sT0}, s{sT0}, {PB}")
a(f"v_add_u32 v{vPBA}, s{sT0}, v{vL16}")
a(f"s_lshl_b32 s{sT0}, s{sT2}, 2")
a(f"v_add_u32 v{vPBF}, s{sT0}, v{vFL}")
a(f"v_and_b32 v{vT1}, 1, v{vN}")
a(f"v_lshlrev_b32 v{vT1}, 4, v{vT1}")
a(f"v_mov_b32 v{vT2}, 0x3f80")
a(f"v_lshlrev_b32 v{vT2}, v{vT1}, v{vT2}")
a(f"v_lshrrev_b32 v{vT3}, 1, v{vN}")
a(f"v_lshlrev_b32 v{vT0}, 1, v{vG}")
a(f"v_sub_u32 v{vT0}, v{vT3}, v{vT0}")
for j in range(2):
    a(f"v_cmp_eq_u32 vcc, {j}, v{vT0}")
    a(f"v_cndmask_b32 v{SEL+j}, 0, v{vT2}, vcc")
a("s_waitcnt lgkmcnt(0)")
make_tag()
a(f"s_lshl_b32 s{sT0}, s{sC0}, 4")
a(f"s_lshr_b32 s{sDV}, s{sDV}, s{sT0}")
a(f"s_and_b32 s{sDV}, s{sDV}, 0xffff")
a(f"v_lshlrev_b32 v{vT2}, v{vT1}, s{sDV}")
a(f"v_lshlrev_b32 v{vT0}, 2, v{vG}")
a(f"v_sub_u32 v{vT0}, v{vT3}, v{vT0}")
for j in range(4):
    a(f"v_cmp_eq_u32 vcc, {j-8}, v{vT0}")
    a(f"v_cndmask_b32 v{AD+j}, 0, v{vT2}, vcc")
SV = 40
a(f"v_bfe_u32 v{vT1}, v{vN}, 2, 1")
a(f"v_lshlrev_b32 v{vT1}, 4, v{vT1}")
a(f"v_and_b32 v{vT2}, 3, v{vN}")
a(f"v_lshrrev_b32 v{vT3}, 3, v{vN}")
a(f"v_mov_b32 v{vT0}, 0x3f80")
a(f"v_lshlrev_b32 v{vT0}, v{vT1}, v{vT0}")
a(f"v_cmp_eq_u32 vcc, v{vT2}, v{vG}")
a(f"v_cndmask_b32 v{vT0}, 0, v{vT0}, vcc")
a(f"v_cmp_eq_u32 vcc, 0, v{vT3}")
a(f"v_cndmask_b32 v{SV}, 0, v{vT0}, vcc")
a(f"v_cndmask_b32 v{SV+1}, v{vT0}, 0, vcc")
a(f"v_or_b32 v{vT0}, 2, v{vT3}")
a(f"v_cmp_ge_u32 vcc, v{vT2}, v{vG}")
a(f"v_cndmask_b32 v{vT3}, v{vT3}, v{vT0}, vcc")
if OPT["ktr"]: trace()
a("s_waitcnt vmcnt(0)")
if OPT["ktr"]:
    a("s_waitcnt lgkmcnt(0)"); trace()
for q in range(4): a(f"v_lshlrev_b32 v{TAP+q}, v{vT1}, v{TAP+q}")
for r in range(4):
    a(f"v_cmp_eq_u32 vcc, {r}, v{vT3}")
    for q in range(4):
        a(f"v_cndmask_b32 v{WK+6*q+r}, 0, v{TAP+q}, vcc")
        if r < 2: a(f"v_cndmask_b32 v{WK+6*q+4+r}, 0, v{TAP+q}, vcc")
HN, HM, HE, HOD = 128, 112, 80, 96
def h_loads():
    lb = a.newlabel("Lnh")
    a(f"s_cmp_eq_u32 s{sOWNR}, 0")
    a(f"s_cbranch_scc1 {lb}")
    for c in range(4): a(f"buffer_load_dwordx4 {v(HN+4*c,4)}, v{vL16}, s[{SRD_H}:{SRD_H+3}], 0 offen offset:{1024*c}")
    a.label(lb)
if OPT["hat"] == 0:
    a(f"s_sleep {OPT['hsl']}")
    h_loads()
trace()
a("s_barrier")
trace()
a(f"s_cmp_ge_u32 s{sCG}, 5")
a("s_cbranch_scc1 L_nokv")
KD = [48, 68]
KS = [88, 48]; VF = 104; UO = [120, 68]; CS = 76
for o in range(2):
    a(f"ds_read_b128 {v(KD[o],4)}, v{vKA+2+o}")
    a(f"ds_read_b128 {v(KD[o]+4,4)}, v{vKA+o} offset:1024")
    a(f"ds_read_b128 {v(KD[o]+8,4)}, v{vKA+o} offset:2048")
    for e in range(2): a(f"ds_read_b128 {v(KD[o]+12+4*e,4)}, v{vKA+o} offset:{VT - KT + 1024*e}")
if OPT["hat"] == 1: h_loads()
def kv_k(o):
    d = KD[o]
    a(f"s_waitcnt lgkmcnt({8 - 5*o})")
    for r in range(2): a(f"v_swap_b32 v{d+2+r}, v{d+4+r}")
    for hi in range(2): a(f"{MF} {v(KS[o]+8*hi,4)}, {v(WK+6*(2*o+hi),4)}, {v(d+4*hi,4)}, 0")
    a(f"s_waitcnt lgkmcnt({7 - 5*o})")
    for hi in range(2): a(f"v_mov_b64 {v(d+4*hi,2)}, {v(d+8+2*hi,2)}")
    for hi in range(2): a(f"{MF} {v(KS[o]+8*hi+4,4)}, {v(WK+6*(2*o+hi)+2,4)}, {v(d+4*hi,4)}, 0")
def kv_v(o):
    a(f"s_waitcnt lgkmcnt({5 - 5*o})")
    for hi in range(2):
        for e in range(2): a(f"{MH} {v(VF+8*hi+4*e,4)}, {v(SV,2)}, {v(KD[o]+12+4*e+2*hi,2)}, 0")
def kv_mul(o):
    for r in range(0, 16, 2): a(f"v_pk_mul_f32 {v(KS[o]+r,2)}, {v(KS[o]+r,2)}, {v(VF+r,2)}")
def kv_out(o):
    for hi in range(2):
        u = UO[o] + 4 * hi
        for r in range(4): a(f"v_cvt_pk_bf16_f32 v{u+r}, v{KS[o]+8*hi+2*r}, v{KS[o]+8*hi+2*r+1}")
        a(f"global_store_dwordx4 v{vUG}, {v(u,4)}, {UBASE[2*o+hi]} sc1")
    for hi in range(2):
        u = UO[o] + 4 * hi
        a(f"v_add_u32 v{CS+2*o+hi}, v{u}, v{u+1}")
        a(f"v_add3_u32 v{CS+2*o+hi}, v{CS+2*o+hi}, v{u+2}, v{u+3}")
kv_k(0); kv_v(0); kv_k(1); kv_mul(0); kv_v(1); kv_out(0); kv_mul(1); kv_out(1)
for r in range(2): a(f"v_add_u32_dpp v{CS+4+r}, v{CS+r}, v{CS+r} row_ror:8 row_mask:0xf bank_mask:0xf")
for r in range(2): a(f"v_add_u32_dpp v{CS+4+r}, v{CS+2+r}, v{CS+2+r} row_ror:8 row_mask:0xf bank_mask:0xc")
a(f"v_mov_b32 v{CS}, s{sTAG}")
a(f"v_add_u32_dpp v{CS+1}, v{CS+4}, v{CS+4} row_half_mirror row_mask:0xf bank_mask:0xf")
a(f"v_add_u32_dpp v{CS+1}, v{CS+5}, v{CS+5} row_half_mirror row_mask:0xf bank_mask:0xa")
for qp in ("[1,0,3,2]", "[2,3,0,1]"): a(f"v_add_u32_dpp v{CS+1}, v{CS+1}, v{CS+1} quad_perm:{qp} row_mask:0xf bank_mask:0xf")
a("s_mov_b32 exec_lo, 0x11111111"); a("s_mov_b32 exec_hi, 0x11111111")
a(f"global_store_dwordx2 v{vEE}, {v(CS,2)}, {WSP} sc1")
a("s_mov_b64 exec, -1")
trace()
pp(10, 8)
if OPT["hat"] == 2:
    h_loads(); a("s_waitcnt vmcnt(0)")
else: a("s_waitcnt vmcnt(5)")
a("s_branch L_kvd")
a.label("L_nokv")
if OPT["hat"]:
    a("s_sleep 24")
    h_loads()
a("s_waitcnt vmcnt(0)")
a.label("L_kvd")
def cb(st, z): return (CB1 if st else CB0) + 4 * z
def rdA(m):
    j, b = (7 - m) // 2, (7 - m) % 2
    return [f"ds_read2_b32 {v(CA+4*m+2*e,2)}, v{AB+j} offset0:{128*b+2*e} offset1:{128*b+2*e+1}" for e in range(2)]
def rdB(st, z): return f"ds_read_b128 {v(cb(st,z),4)}, v{vBB} offset:{512*z}"
def PRE_A():
    n = 0
    for m in range(8):
        for x in rdA(m):
            a(x); n += 1
            if n == 12: a("s_waitcnt lgkmcnt(6)")
a(f"s_cmp_lg_u32 s{sOWNR}, 0")
a("s_cbranch_scc1 L_owner")
a("s_waitcnt vmcnt(0)")
lds_add(F_UDN)
a(f"s_cmp_lg_u32 s{sA}, 7")
a("s_cbranch_scc1 L_cdone")
lds_wait(F_HRD, 1)
PRE_A()
a("s_setprio 3")
a(f"v_mov_b32 v{vT1}, 1")
lds_wait(F_UDN, 8)
for z in range(8): a(rdB(0, z))
a("s_waitcnt lgkmcnt(0)")
trace_at(12)
a(f"s_setprio {OPT['hprio']}")
a("s_branch L_hloop")
a.label("L_owner")
a(f"s_mov_b32 s{sT2}, 0xffff")
for c in range(3): a(f"v_readlane_b32 s{60+c}, v{HN+4*c+3}, 63")
for c in range(4): a(f"v_mov_b32_dpp v{HM+c}, v{HN+4*c+3} wave_shr:1 row_mask:0xf bank_mask:0xf")
a(f"v_writelane_b32 v{HM}, 0, 0")
for c in range(3): a(f"v_writelane_b32 v{HM+1+c}, s{60+c}, 0")
for c in range(4):
    for d in range(4):
        src = HN + 4 * c + 3 - d
        a(f"v_alignbit_b32 v{HE+4*c+d}, v{src}, v{src}, 16")
        lower = (HN + 4 * c + 2 - d) if d < 3 else (HM + c)
        a(f"v_bfi_b32 v{HOD+4*c+d}, s{sT2}, v{src}, v{lower}")
    a(f"ds_write_b128 v{vHW}, {v(HE+4*c,4)} offset:{1024*(3-c)}")
    a(f"ds_write_b128 v{vHW}, {v(HOD+4*c,4)} offset:{1024*(3-c)+HOO}")
a(f"v_mov_b32 v44, 0"); a(f"v_mov_b32 v45, 0")
a(f"v_lshl_add_u32 v{vT1}, v{vN}, 2, s{sHB}")
a(f"ds_write_b32 v{vT1}, v44 offset:{HC+4096}")
a(f"ds_write_b32 v{vT1}, v44 offset:{HC+4096+HOO}")
lds_set(F_HRD, 1, vaddr=vPBF)
a(f"v_lshl_add_u32 v{vT1}, v{vLANE}, 3, s{sUB}")
a(f"ds_write_b64 v{vT1}, v[44:45]")
PRE_A()
trace()
a("s_mov_b64 exec, 0xffff")
a(f"s_mov_b32 s{sSPIN}, 0")
a.label("L_ep")
a(f"global_atomic_or_x2 v[46:47], v{vEP}, v[44:45], {WSP} sc0 sc1")
a("s_waitcnt vmcnt(0)")
a(f"v_cmp_ne_u32 vcc, s{sTAG}, v46")
a("s_cbranch_vccz L_epd")
a("s_mov_b64 exec, vcc")
spin_tail("L_ep")
a.label("L_epd")
a("s_mov_b64 exec, -1")
a("s_setprio 3")
trace()
a(f"s_mov_b32 s{sSPIN}, 0")
a(f"s_add_u32 m0, s{sUB}, 512")
def u_loads():
    for c in range(4): a(f"buffer_load_dwordx4 v{vL16}, s[{SRD_U}:{SRD_U+3}], 0 offen offset:{1024*c} sc1 lds")
u_loads()
row_allreduce(47)
a("v_readfirstlane_b32 s60, v47")
a.label("L_uretry")
a("s_waitcnt vmcnt(0) lgkmcnt(0)")
if OPT["ktr"]: trace()
for z in range(7, -1, -1): a(rdB(0, z))
for t in range(7, -1, -1):
    a(f"s_waitcnt lgkmcnt({t})")
    a(f"{MF} {v(CACC+4*t,4)}, {v(AD,4)}, {v(cb(0,t),4)}, 0")
    b = cb(0, t)
    a(f"v_add3_u32 v9, v9, v{b}, v{b+1}" if t < 7 else f"v_add_u32 v9, v{b}, v{b+1}")
    a(f"v_add3_u32 v9, v9, v{b+2}, v{b+3}")
row_allreduce(9)
a(f"v_readlane_b32 s{sT0}, v9, 32")
a(f"v_readlane_b32 s{sT1}, v9, 48")
a(f"v_mov_b32 v{vT0}, 1")
a(f"s_add_u32 s{sT0}, s{sT0}, s{sT1}")
a(f"s_cmp_eq_u32 s{sT0}, s60")
a("s_cbranch_scc1 L_uok")
u_loads()
spin_tail("L_uretry")
a.label("L_uok")
a("s_mov_b64 exec, 1")
a(f"ds_add_u32 v{vFL}, v{vT0} offset:{F_UDN}")
a("s_mov_b64 exec, -1")
trace_at(12)
pp(5, 8)
PR0 = OPT["pr0"]
XSET = [(m, t) for t in range(2 * PR0) for m in range(t + 1)] + [(7, 7), (6, 7), (6, 6), (5, 7), (5, 6), (5, 5)][:OPT["xhi"]]
def conv_loop(helper):
    P = "L_h" if helper else "L_c"
    seq = []
    def dump(pr):
        b = 8 + 4 * (pr & 1)
        txt = [f"v_cvt_pk_bf16_f32 v{b+r}, v{CACC+8*pr+2*r}, v{CACC+8*pr+2*r+1}" for r in range(4)]
        return [("v", x) for x in txt] + [("r", f"ds_write_b128 v{vPBA}, {v(b,4)} offset:{1024*pr}", ("W", pr))]
    for st in range(2):
        seq.append(("adv", st))
        pend = [("r", rdB(1 - st, z), ("B", z, 1 - st)) for z in range(7, -1, -1)]
        side = []
        for m in range(8):
            for k_, t in enumerate(range(7, m - 1, -1)):
                if helper and (m, t) in XSET: continue
                c = "0" if helper and m == 0 else v(CACC+4*t, 4)
                seq.append(("m", f"{MF} {v(CACC+4*t,4)}, {v(CA+4*m,4)}, {v(cb(st,t-m),4)}, {c}", [("A", m, st), ("B", t - m, st)]))
                if pend and k_ % 2 == 1: seq.append(pend.pop(0))
                if side and k_ >= 2: seq += side[:2]; side = side[2:]
            seq += side; side = []
            if not helper or any((m, t) not in XSET for t in range(m, 8)): pend = [("r", x, ("A", m, 1 - st)) for x in rdA(m)] + pend
            if m >= 5:
                while pend: seq.append(pend.pop(0))
            if helper and m in (1, 3) and m // 2 >= PR0: side = dump(m // 2)
        assert not pend
        if helper:
            seq += dump(2) + dump(3)
            seq.append(("r", f"ds_write_b32 v{vPBF}, v{vT1} offset:{F_PB}", ("F",)))
            seq += [("v", f"v_add_u32 v{vPBA}, 4096, v{vPBA}"), ("v", f"v_add_u32 v{vPBF}, 4, v{vPBF}")]
        seq.append(("chk", st))
    n = len(seq)
    a.label(f"{P}loop")
    out_cnt = 99
    for i, it in enumerate(seq):
        if it[0] == "v": a(it[1]); continue
        if it[0] == "adv":
            if it[1] == 0 and OPT["cprio"] and not helper:
                lb = a.newlabel("Lcp")
                for k, th in OPT_CP:
                    a(f"s_setprio {k}")
                    a(f"s_cmp_gt_u32 s{sNST}, {th}")
                    a(f"s_cbranch_scc1 {lb}")
                a("s_setprio 0")
                a.label(lb)
            for j in range(4): a(f"v_add_u32 v{AB+j}, {HCH}, v{AB+j}" if helper else f"v_subrev_u32 v{AB+j}, 64, v{AB+j}")
            a(f"v_add_u32 v{vBB}, {ULCH}, v{vBB}" if helper else f"v_subrev_u32 v{vBB}, 64, v{vBB}")
            continue
        if it[0] == "chk":
            a(f"s_sub_u32 s{sNST}, s{sNST}, 1")
            if it[1] == 1 and not helper:
                a(f"s_cmp_lg_u32 s{sNST}, {OPT['mat']}")
                a("s_cbranch_scc1 L_cloop")
                lds_wait(F_PB, 1, vaddr=vPBF)
                MT = [8, 12, 144, 148]
                for q in range(PR0, 4): a(f"ds_read_b128 {v(MT[q],4)}, v{vPBA} offset:{1024*q}")
                for t in range(2 * PR0, 8):
                    if t % 2 == 0: a(f"s_waitcnt lgkmcnt({3 - t//2})")
                    a(f"{MH} {v(CACC+4*t,4)}, {v(SEL,2)}, {v(MT[t//2]+2*(t&1),2)}, {v(CACC+4*t,4)}")
                lds_add(F_MRG)
                a("s_branch L_cloop")
            else:
                a(f"s_cmp_eq_u32 s{sNST}, 0")
                a(f"s_cbranch_scc1 {P}exit" if it[1] == 0 else f"s_cbranch_scc0 {P}loop")
            continue
        if it[0] == "r":
            if out_cnt >= 14:
                a("s_waitcnt lgkmcnt(12)"); out_cnt = 12
            a(it[1]); out_cnt += 1
            continue
        best = None; cnt = 0
        for back in range(1, n + 1):
            p = seq[(i - back) % n]
            if p[0] == "r":
                if p[2] in it[2]:
                    best = cnt; break
                cnt += 1
        assert best is not None
        if best < out_cnt:
            w = min(best, 15)
            a(f"s_waitcnt lgkmcnt({w})"); out_cnt = w
        a(it[1])
conv_loop(False)
a.label("L_cexit")
trace_at(13)
a("s_setprio 3")
a("s_waitcnt lgkmcnt(0)")
for m, t in XSET: a(f"{MF} {v(CACC+4*t,4)}, {v(CA+4*m,4)}, {v(cb(1,t-m),4)}, {v(CACC+4*t,4)}")
for pr in (1, 2, 0, 3):
    b = CB0 + 4 * pr
    pack(b, CACC + 8 * pr)
    pack(b + 2, CACC + 8 * pr + 4)
    a(f"v_permlane16_swap_b32 v{b}, v{b+2}")
    a(f"v_permlane16_swap_b32 v{b+1}, v{b+3}")
    a(f"global_store_dwordx4 v{vYG}, {v(b,4)}, {WSP} offset:{1024*pr} sc1")
TS = 96
for pr in range(4): a(f"v_add_u32 v{TS+pr}, v{CB0+4*pr}, v{CB0+4*pr+1}")
for pr in range(4): a(f"v_add3_u32 v{TS+pr}, v{TS+pr}, v{CB0+4*pr+2}, v{CB0+4*pr+3}")
a(f"v_permlane32_swap_b32 v{TS}, v{TS+1}")
a(f"v_permlane32_swap_b32 v{TS+2}, v{TS+3}")
a(f"v_add_u32 v{TS}, v{TS}, v{TS+1}")
a(f"v_add_u32 v{TS+2}, v{TS+2}, v{TS+3}")
for qp in ("[1,0,3,2]", "[2,3,0,1]"):
    for r in (TS, TS + 2): a(f"v_add_u32_dpp v{r}, v{r}, v{r} quad_perm:{qp} row_mask:0xf bank_mask:0xf")
a("s_mov_b32 exec_lo, 0x22222222"); a("s_mov_b32 exec_hi, 0x22222222")
a(f"v_mov_b32 v{TS}, v{TS+2}")
a("s_mov_b32 exec_lo, 0x33333333"); a("s_mov_b32 exec_hi, 0x33333333")
a(f"ds_add_u32 v{vYS}, v{TS}")
a(f"v_mov_b32 v{vT0}, 1")
a("s_mov_b64 exec, 1")
a(f"ds_add_u32 v{vFL}, v{vT0} offset:{F_CVD}")
a(f"ds_add_rtn_u32 v{vT0}, v{vFL}, v{vT0} offset:{F_YST}")
a("s_mov_b64 exec, -1")
a(f"v_lshlrev_b32 v{vT1}, 2, v{vLANE}")
a(f"v_add_u32 v{vT1}, {YS}, v{vT1}")
cRET, cVAL = 28, 30
a(f"ds_read_b32 v{cVAL}, v{vT1}")
a(f"v_mov_b32 v{cVAL+1}, 0x100")
a("s_waitcnt lgkmcnt(0)")
a(f"v_readfirstlane_b32 s{sT2}, v{vT0}")
a(f"s_add_u32 s{sT2}, s{sT2}, 1")
a(f"s_cmp_lg_u32 s{sT2}, s{sNCH}")
a("s_cbranch_scc1 L_ynf")
a("s_mov_b64 exec, 0xffffffff")
a(f"s_mov_b32 s{sSPIN}, 0")
a(f"s_and_b32 s60, s{sTAG}, 0xffffff00")
a.label("L_ca")
a(f"global_atomic_add_x2 {v(cRET,2)}, v{vCEL}, {v(cVAL,2)}, {WSP} sc0 sc1")
a("s_waitcnt vmcnt(0)")
a(f"v_subrev_u32 v{cRET}, s60, v{cRET+1}")
a(f"v_cmp_le_u32 vcc, 0x600, v{cRET}")
a("s_cbranch_vccz L_cad")
a("s_mov_b64 exec, vcc")
spin_tail("L_ca", 8)
a.label("L_cad")
a("s_mov_b64 exec, -1")
a.label("L_ynf")
trace_at(14)
pp(6, 8)
a("s_branch L_cjoin")
conv_loop(True)
a.label("L_hexit")
trace_at(13)
a.label("L_cdone")
a("s_waitcnt lgkmcnt(0)")
lds_add(F_CVD)
a("s_setprio 0")
lds_wait(F_CVD, 4, sleep=6)
a.label("L_cjoin")
a("s_setprio 2")
lds_wait(F_MODE, 1)
a(f"s_mov_b32 s{sMODE}, s{sT3}")
set_mode()
tail_setup(IMG_A, RED_A)
a("s_branch L_tail")
if STAMPS_ON:
    a.label("L_finish")
    a("s_mov_b64 exec, -1")
    a("s_waitcnt lgkmcnt(0)")
    a("s_mov_b32 m0, s95")
    a(f"v_writelane_b32 v{vTR}, s70, m0")
    a("s_memtime s[76:77]")
    a("s_memrealtime s[78:79]")
    a(f"s_mul_i32 s{sT0}, s2, {NW}")
    a(f"s_add_u32 s{sT0}, s{sT0}, s{sWV}")
    a(f"s_lshl_b32 s{sT1}, s{sT0}, 8")
    a(f"s_add_u32 s{sT1}, s{sT1}, {TRACE}")
    a(f"v_lshl_add_u32 v{vT0}, v{vLANE}, 2, s{sT1}")
    a(f"global_store_dword v{vT0}, v{vTR}, {WSP}")
    a(f"s_lshl_b32 s{sT1}, s{sT0}, 7")
    a(f"s_add_u32 s{sT1}, s{sT1}, {STAMPS}")
    a("s_mov_b64 exec, 1")
    a(f"v_mov_b32 v{vT0}, s{sT1}")
    a("s_waitcnt lgkmcnt(0)")
    for j in range(8): a(f"v_mov_b32 v{8+j}, s{72+j}")
    a(f"global_store_dwordx4 v{vT0}, v[8:11], {WSP}")
    a(f"global_store_dwordx4 v{vT0}, v[12:15], {WSP} offset:16")
a.label("L_end")
a("s_endpgm")
a.label("L_codeend")

lines, nn = hazard.run(a.lines)
hdr = open("/code/" + NAME + ".s.ref").read().split("; Override launch geometry")[0]
sys.stdout.write(hdr + header([f"@launch grid=(256,1,1) block=({64*NW},1,1) lds={LDS_BYTES}"]) + kernel_begin(KNAME) + "\n".join(lines) + "\n"
                 + kernel_desc(KNAME, NVGPR, 102, NVGPR).replace(".end_amdhsa_kernel\n.text\n", ".end_amdhsa_kernel\n"))
sys.stderr.write(f"instructions: {len(lines)}, nop states inserted: {nn}\n")
```

```python
import sys, math, struct
from asmlib import *
import hazard

STAMPS_ON = "stamps" in sys.argv
OPT = dict(rt=1, forceg=0, phi=2, plo=1, lastp=2, rd2=6, fpos=8, wodepth=8, bdbg=0, hprio=3, cprio=1, mat=1, pr0=1, xhi=4, pfl=7, afirst=0, gsolo=0,
           rg=5, rc=4, bwd=-1, lrun=2, wo3=0, pa0=1, pb0=2, pa1=2, pb1=1, bk=1, r0=0, nfirst=2, psl=0, lprio=3, bpos=1, csleep=2, pboth=0, rpg=2, fback=4, ppos=2, ltr=1, b1=4, tlb=1, wopace=0, ysleep=1, osleep=0, hat=0, hsl=1, ktr=0, cenw=30, fwait=1, gprio=1)
for x in sys.argv[1:]:
    if "=" in x:
        k, val = x.split("="); OPT[k] = int(val)
OPT_CP = {1: [(2, 4), (1, 2)], 2: [(2, 6), (1, 2)], 3: [(2, 6), (1, 4)], 4: [(1, 2)]}.get(OPT["cprio"])
KNAME = NAME + "_kernel"
NW = 12
EPOCH = 0; FSUM = 0x1000; GWS = 0x4000; FB = 0x10000; EU = 0x40000
UWS = 0x100000; YWS = 0x400000; XLW = 0x700000; STAMPS = 0xA00000; TRACE = 0xB00000
GOFF = 0xF00000
OGRP = 327680; XGRP = 0x40000; XFLG = 0x30000
NSLOT = 3; SLOT = 43008; WPART = 18432; WHALF = 12288
EX = 129024; EXT = 27 * 512; EXB = EX + 2 * EXT
YT = 0; IMG_B = 16384; IMG_A = 48128; RED_B = EX; RED_A = 10240
HC = 0; HCH = 8320; HOO = 4160
UL = 7 * HCH; ULCH = 4608; PB = UL + 7 * ULCH
KT = UL + 7 * ULCH; VT = KT + 132 * 256
FL = EXB + 4096; GOM = FL + 512; YS = GOM + 512; GW = YS + 256
LDS_BYTES = 163840
assert VT + 128 * 256 <= FL and GW + 1280 <= LDS_BYTES and PB <= IMG_A + 9 * 5120 and PB + 7 * 4096 <= IMG_A + 14 * 5120
assert IMG_A + 22 * 5120 <= FL and IMG_B + 22 * 5120 <= EX and IMG_B + 6 * 5120 >= SLOT and IMG_B + 13 * 5120 <= 2 * SLOT
F_LA = 0; F_PROG = 96; F_PQ = 128; F_PV = 160; F_MODE = 192; F_EXR = 196; F_WOL = 200; F_GRD = 208; F_YLD = 212
F_RED = 216; F_QRD = 232; F_KV = 248; F_MRG = 264; F_HRD = 312; F_CVD = F_EXR; F_YST = 276; F_UDN = 280; F_PB = 284
PB0 = FL + F_LA
NVGPR = 168
SPIN_MAX = 1 << OPT.get("smax", 20)

def seg_tables():
    J = []; INFO = []
    for cgp in range(5):
        heads = {}
        for u in range(16): heads.setdefault((16 * cgp + u) // 5, []).append(u)
        segs = [heads[h] for h in sorted(heads)]
        assert len(segs) == 4
        tiles = [None] * 4; rem = [None] * 4
        free = {t: set(range(4)) - {u & 3 for u in segs[t]} for t in range(4) if len(segs[t]) < 4}
        for t in range(4):
            if len(segs[t]) < 5: tiles[t] = list(segs[t])
        for t in range(4):
            if len(segs[t]) == 5:
                res = segs[t][0] & 3
                ts = [q for q in free if res in free[q]]
                assert len(ts) == 1
                q = ts[0]; free[q].discard(res)
                r = segs[t][0] if q < t else segs[t][4]
                tiles[t] = [u for u in segs[t] if u != r]; tiles[q].append(r); rem[t] = (q, res)
        jw = 0; iw = 0
        for t in range(4):
            assert sorted(u & 3 for u in tiles[t]) == [0, 1, 2, 3]
            for u in tiles[t]: jw |= (u >> 2) << (8 * t + 2 * (u & 3))
            own = sum(1 << (u & 3) for u in tiles[t] if u in segs[t])
            late = len(segs[t]) < 5
            assert (not late) or t in (0, 3)
            b = own | (0 if late else (rem[t][1] << 4) | ((rem[t][0] == 3) << 6)) | (late << 7)
            iw |= b << (8 * t)
        J.append(jw); INFO.append(iw)
    return J, INFO
JT, INFO = seg_tables()

a = Asm()
sX, sK, sV, sSH, sSSM, sDD, sWQ, sWO, sGW, sOUT, sDBG, sWS = 4, 6, 8, 10, 12, 14, 18, 20, 22, 24, 26, 28
sGRP, sI, sWV, sTAG, sROLE, sOR, sOC, sRB, sCG, sXM = 30, 31, 32, 33, 34, 35, 36, 37, 38, 39
sLB = 16
sMODE = 93
sT0, sT1, sT2, sT3, sSPIN = 96, 97, 98, 99, 100
vLANE, vN, vG, vFL, vT0, vT1, vT2, vT3 = 0, 1, 2, 3, 4, 5, 6, 7
vTR = 167

def v(i, n=1): return f"v{i}" if n == 1 else f"v[{i}:{i+n-1}]"
def f2u(x): return struct.unpack("<I", struct.pack("<f", x))[0]
MF = "v_mfma_f32_16x16x32_bf16"
MH = "v_mfma_f32_16x16x16_bf16"
WSP = f"s[{sWS}:{sWS+1}]"; LBP = f"s[{sLB}:{sLB+1}]"

def trace():
    if not STAMPS_ON: return
    a("s_mov_b32 s69, m0")
    a("s_mov_b32 m0, s95")
    a(f"v_writelane_b32 v{vTR}, s70, m0")
    a("s_mov_b32 m0, s69")
    a("s_mov_b32 s95, s94")
    a("s_add_u32 s94, s94, 1")
    a("s_memrealtime s[70:71]" if OPT["rt"] else "s_memtime s[70:71]")
def trace_at(i):
    if not STAMPS_ON: return
    a(f"s_mov_b32 s94, {i}")
    trace()
def finish():
    a("s_branch L_finish" if STAMPS_ON else "s_endpgm")
def spin_tail(l, sleep=0):
    if sleep: a(f"s_sleep {sleep}")
    a(f"s_add_u32 s{sSPIN}, s{sSPIN}, 1")
    a(f"s_cmp_lt_u32 s{sSPIN}, {SPIN_MAX}")
    a(f"s_cbranch_scc1 {l}")
def lds_wait(off, val, vaddr=vFL, vt=vT0, sleep=0):
    l = a.newlabel("Lw"); d = a.newlabel("Lwd")
    a(f"s_mov_b32 s{sSPIN}, 0")
    a.label(l)
    a(f"ds_read_b32 v{vt}, v{vaddr} offset:{off}")
    a("s_waitcnt lgkmcnt(0)")
    a(f"v_readfirstlane_b32 s{sT3}, v{vt}")
    a(f"s_cmp_ge_u32 s{sT3}, {val}")
    a(f"s_cbranch_scc1 {d}")
    spin_tail(l, sleep)
    a.label(d)
def prog_wait(vaddr, sval, vt=vT0):
    l = a.newlabel("Lg"); d = a.newlabel("Lgd")
    a(f"s_mov_b32 s{sSPIN}, 0")
    a.label(l)
    a(f"ds_read_b32 v{vt}, v{vaddr}")
    a("s_waitcnt lgkmcnt(0)")
    a(f"v_cmp_gt_i32 vcc, {sval}, v{vt}")
    a(f"s_cbranch_vccz {d}")
    spin_tail(l, OPT["psl"])
    a.label(d)
def mask_wait(vaddr, smask, vt=vT0, sleep=0):
    l = a.newlabel("Lm"); d = a.newlabel("Lmd")
    a(f"s_mov_b32 s{sSPIN}, 0")
    a.label(l)
    a(f"ds_read_b32 v{vt}, v{vaddr}")
    a("s_waitcnt lgkmcnt(0)")
    a(f"v_cmp_eq_u32 vcc, 0, v{vt}")
    a(f"s_and_b32 s{sT3}, vcc_lo, s{smask}")
    a(f"s_cbranch_scc0 {d}")
    spin_tail(l, sleep)
    a.label(d)
def lds_add(off, vaddr=vFL, vt=vT0, val=1):
    a(f"v_mov_b32 v{vt}, {val}\ns_mov_b64 exec, 1\nds_add_u32 v{vaddr}, v{vt} offset:{off}\ns_mov_b64 exec, -1")
def lds_set(off, val, vaddr=vFL, vt=vT0):
    a(f"v_mov_b32 v{vt}, {val}")
    a(f"ds_write_b32 v{vaddr}, v{vt} offset:{off}")
def t10(vd, qbase, sadd, vt):
    a(f"v_add_u32 v{vt}, {qbase}, v{vLANE}")
    a(f"v_mul_u32_u24 v{vd}, 6554, v{vt}")
    a(f"v_lshrrev_b32 v{vd}, 16, v{vd}")
    a(f"v_mul_u32_u24 v{vd}, 1120, v{vd}")
    a(f"v_lshl_add_u32 v{vt}, v{vt}, 4, {sadd}")
    a(f"v_add_u32 v{vd}, v{vd}, v{vt}")
def pack(dst, src):
    a(f"v_cvt_pk_bf16_f32 v{dst}, v{src}, v{src+1}")
    a(f"v_cvt_pk_bf16_f32 v{dst+1}, v{src+2}, v{src+3}")
def lds_pipe(reads, work, gate, maxfly=14, pre=0, eager=False):
    ri = pre; done = pre - 1
    for j, (needed, text) in enumerate(work):
        if eager and ri < len(reads) and gate[ri] < j and (ri - 1 - done) >= maxfly:
            a(f"s_waitcnt lgkmcnt({maxfly - 2})"); done = ri - 1 - (maxfly - 2)
        while ri < len(reads) and gate[ri] < j and (ri - 1 - done) < maxfly:
            a(reads[ri]); ri += 1
        assert ri > needed, (ri, needed, j)
        if needed > done:
            a(f"s_waitcnt lgkmcnt({ri - 1 - needed})")
            done = needed
        a(text)
    assert ri == len(reads)
def row_allreduce(r):
    for k in (8, 4, 2, 1): a(f"v_add_u32_dpp v{r}, v{r}, v{r} row_ror:{k} row_mask:0xf bank_mask:0xf")
def wave_sum_eq(r, ref=0):
    row_allreduce(r)
    for k in range(4): a(f"v_readlane_b32 s{sT0+k}, v{r}, {16*k}")
    a(f"s_add_u32 s{sT0}, s{sT0}, s{sT1}")
    a(f"s_add_u32 s{sT2}, s{sT2}, s{sT3}")
    a(f"s_add_u32 s{sT0}, s{sT0}, s{sT2}")
    a(f"s_cmp_eq_u32 s{sT0}, {ref}")
def make_tag():
    a(f"s_mul_i32 s{sTAG}, s{sTAG}, 1664525")
    a(f"s_add_u32 s{sTAG}, s{sTAG}, 1013904223")
def dual(fn):
    g = a.newlabel("Ldg"); d = a.newlabel("Ldd")
    a(f"s_cmp_lg_u32 s{sMODE}, 1")
    a(f"s_cbranch_scc1 {g}")
    fn("")
    a(f"s_branch {d}")
    a.label(g)
    fn(" sc1")
    a.label(d)
def set_mode():
    a(f"s_cmp_eq_u32 s{sMODE}, 1")
    a(f"s_cselect_b32 s{sT3}, 0, {GOFF}")
    a(f"s_add_u32 s{sLB}, s{sWS}, s{sT3}")
    a(f"s_addc_u32 s{sLB+1}, s{sWS+1}, 0")
def my_block(sd):
    a(f"s_lshl_b32 s{sd}, s{sGRP}, 5")
    a(f"s_add_u32 s{sd}, s{sd}, s{sI}")
    a(f"s_lshl_b32 s{sd}, s{sd}, 8")
    a(f"s_add_u32 s{sd}, s{sd}, {FB}")
def cell_init():
    my_block(sT0)
    a(f"v_lshl_add_u32 v{vT0}, v{vLANE}, 3, s{sT0}")
    a(f"v_mov_b32 v{vT2}, 0")
    a(f"s_and_b32 s{sT1}, s{sTAG}, 0xffffff00")
    a(f"v_mov_b32 v{vT3}, s{sT1}")
    a(f"s_getreg_b32 s{sT1}, hwreg(HW_REG_XCC_ID, 0, 4)")
    a(f"s_not_b32 s{sT2}, s{sTAG}")
    a(f"v_writelane_b32 v{vT2}, s{sTAG}, 3")
    a(f"v_writelane_b32 v{vT3}, s{sT1}, 3")
    a(f"v_writelane_b32 v{vT2}, s{sT2}, 2")
    a("s_mov_b64 exec, 0xffff")
    a(f"global_store_dwordx2 v{vT0}, {v(vT2,2)}, {WSP} sc1")
    a("s_mov_b64 exec, -1")
def census():
    a(f"s_lshl_b32 s{sT0}, s{sGRP}, 5")
    a(f"v_add_u32 v{vT0}, s{sT0}, v{vLANE}")
    for j in range(4):
        a(f"v_add_u32 v{20+j}, {64*j}, v{vT0}")
        a(f"v_and_b32 v{20+j}, 255, v{20+j}")
        a(f"v_lshlrev_b32 v{20+j}, 8, v{20+j}")
        a(f"v_add_u32 v{20+j}, {FB}, v{20+j}")
    a("v_mov_b32 v24, 0"); a("v_mov_b32 v25, 0")
    for j in range(4): a(f"s_mov_b64 s[{76+2*j}:{77+2*j}], -1")
    def rnd(tag):
        for j in range(4):
            a(f"s_mov_b64 exec, s[{76+2*j}:{77+2*j}]")
            a(f"s_cbranch_execz L_cs{tag}{j}")
            a(f"global_atomic_or_x2 {v(26+2*j,2)}, v{20+j}, v[24:25], {WSP} offset:24 sc0 sc1")
            a.label(f"L_cs{tag}{j}")
        a("s_mov_b64 exec, -1")
        a("s_waitcnt vmcnt(0)")
        for j in range(4): a(f"v_cmp_ne_u32 s[{76+2*j}:{77+2*j}], s{sTAG}, v{26+2*j}")
    a(f"s_mov_b32 s{sSPIN}, 0")
    a.label("L_cen")
    rnd("b")
    a("s_or_b64 s[62:63], s[76:77], s[78:79]")
    a("s_or_b64 vcc, s[80:81], s[82:83]")
    a("s_or_b64 vcc, vcc, s[62:63]")
    a("s_cbranch_scc0 L_cend")
    spin_tail("L_cen", OPT["csleep"])
    a.label("L_cend")
    a(f"v_readfirstlane_b32 s{sT0}, v27")
    a(f"v_cmp_ne_u32 vcc, s{sT0}, v27")
    a("s_cmp_eq_u32 vcc_lo, 0")
    a(f"s_cselect_b32 s{sT0}, {2 if OPT['forceg'] else 1}, 2")
    a(f"v_mov_b32 v24, s{sTAG}")
    a(f"v_mov_b32 v25, s{sT0}")
    a("s_mov_b64 exec, 0xffffffff")
    a(f"global_store_dwordx2 v20, v[24:25], {WSP} offset:16 sc1")
    a("s_mov_b64 exec, -1")
def mode_load():
    my_block(sT2)
    a(f"s_add_u32 s{sT2}, s{sT2}, 16")
    a(f"s_load_dwordx2 s[66:67], {WSP}, s{sT2} glc")
def mode_wait(first=False):
    l = a.newlabel("Lc"); d = a.newlabel("Lcd"); f_ = a.newlabel("Lcf")
    a(f"s_mov_b32 s{sSPIN}, 0")
    if first: a(f"s_branch {f_}")
    else:
        my_block(sT2)
        a(f"s_add_u32 s{sT2}, s{sT2}, 16")
    a.label(l)
    a(f"s_load_dwordx2 s[66:67], {WSP}, s{sT2} glc")
    a.label(f_)
    a("s_waitcnt lgkmcnt(0)")
    a(f"s_cmp_eq_u32 s66, s{sTAG}")
    a(f"s_cbranch_scc1 {d}")
    spin_tail(l, 4)
    a("s_mov_b32 s67, 2")
    a.label(d)
    lds_set(F_MODE, "s67")
def tlb_touch():
    if not OPT["tlb"]: return
    a(f"s_lshl_b32 s{sT0}, s2, 7")
    a(f"s_add_u32 s{sT0}, s{sT0}, 0x1F8000")
    a(f"v_lshl_add_u32 v{vT0}, v{vLANE}, 21, s{sT0}")
    a(f"v_mov_b32 v{vT1}, 0")
    a("s_mov_b64 exec, 0x1e")
    a(f"global_atomic_or v{vT0}, v{vT1}, {WSP} sc1")
    a(f"s_mul_i32 s{sT0}, s{sOR}, {64*1280}")
    a(f"s_mul_i32 s{sT1}, s{sOC}, 160")
    a(f"s_add_u32 s{sT0}, s{sT0}, s{sT1}")
    a("s_mov_b64 exec, 1")
    a(f"v_mov_b32 v{vT0}, s{sT0}")
    a(f"global_atomic_or v{vT0}, v{vT1}, s[{sOUT}:{sOUT+1}] sc1")
    a("s_mov_b64 exec, -1")
def pp(idn, wave, role=None):
    if OPT.get("pp") != idn: return
    lb = a.newlabel("Lpp")
    a(f"s_cmp_lg_u32 s{sWV}, {wave}")
    a(f"s_cbranch_scc1 {lb}")
    a("s_memrealtime s[76:77]")
    a("s_lshl_b32 s78, s2, 2")
    a(f"s_add_u32 s78, s78, {FSUM + 2048}")
    a(f"v_mov_b32 v{vT0}, s78")
    a("s_waitcnt lgkmcnt(0)")
    a(f"v_mov_b32 v{vT1}, s76")
    a("s_mov_b64 s[76:77], exec")
    a("s_mov_b64 exec, 1")
    a(f"global_store_dword v{vT0}, v{vT1}, {WSP} sc1")
    a("s_mov_b64 exec, s[76:77]")
    a("s_waitcnt vmcnt(0)")
    a.label(lb)

TT, SH, vJP, vSOF, vGA = 8, 144, 149, 150, 151
SRD_X, SRD_W, SRD_2 = 40, 44, 48
sSO, sCNT, sLST, sIMG = 59, 63, 57, 56
def img_setup(base):
    a(f"s_mov_b32 s{sIMG}, {base}")
    a(f"s_mul_i32 s{sT0}, s{sOC}, 160")
    for i in range(5):
        a(f"v_add_u32 v{vT0}, {64*i}, v{vLANE}")
        a(f"v_mul_u32_u24 v{vT1}, 6554, v{vT0}")
        a(f"v_lshrrev_b32 v{vT1}, 16, v{vT1}")
        a(f"v_mul_u32_u24 v{vT2}, 160, v{vT1}")
        a(f"v_lshl_add_u32 v{vT0}, v{vT0}, 4, s{sT0}")
        a(f"v_sub_u32 v{vT0}, v{vT0}, v{vT2}")
        a(f"v_and_b32 v{vT2}, 15, v{vT1}")
        a(f"v_mul_u32_u24 v{vT2}, 1280, v{vT2}")
        a(f"v_add_u32 v{TT+i}, v{vT0}, v{vT2}")
        a(f"v_lshrrev_b32 v{vT1}, 2, v{vT1}")
        a(f"v_lshlrev_b32 v{SH+i}, 1, v{vT1}")
    a(f"v_mov_b32 v{vJP}, 0x5500")
    for p in range(10):
        J = JT[p % 5]; e = p < 5
        jp = (J & 0xff) | ((J >> 24) << 8) if e else (J >> 8) & 0xffff
        a(f"s_mov_b32 exec_lo, {hex(0x21 << (p % 5 + 10 * (p // 5)))}")
        a(f"v_mov_b32 v{vJP}, {hex(jp)}")
    a("s_mov_b32 exec_lo, -1")
    a(f"v_subrev_u32 v{vT0}, 10, v{vLANE}")
    a(f"v_min_u32 v{vT0}, v{vT0}, v{vLANE}")
    a(f"v_mul_u32_u24 v{vSOF}, 81920, v{vT0}")
    a(f"s_mul_i32 s{sT0}, s{sOR}, 81920")
    a(f"v_writelane_b32 v{vSOF}, s{sT0}, 20")
    a(f"s_add_u32 s{sT0}, s{sT0}, 40960")
    a(f"v_writelane_b32 v{vSOF}, s{sT0}, 21")
    a(f"s_mov_b32 s{SRD_2+3}, 0x00020000")
    a("s_movk_i32 s58, 20480")
def img_group(dst=None):
    a(f"s_and_b32 s{sT0}, s{sLST}, 31")
    a(f"s_lshr_b32 s{sLST}, s{sLST}, 5")
    a(f"v_readlane_b32 s{sT1}, v{vJP}, s{sT0}")
    a(f"v_readlane_b32 s{sSO}, v{vSOF}, s{sT0}")
    a(f"s_cmp_ge_u32 s{sT0}, 20")
    a(f"s_cselect_b32 s{SRD_2}, s{sX}, s{sWO}")
    a(f"s_cselect_b32 s{SRD_2+1}, s{sX+1}, s{sWO+1}")
    a(f"s_cselect_b32 s{SRD_2+2}, 16, 5")
    a(f"s_and_b32 s{SRD_2+1}, s{SRD_2+1}, 0xffff")
    a(f"s_mul_i32 s{SRD_2+2}, s{SRD_2+2}, {128*1280}")
    if dst is None:
        a(f"s_mul_i32 s{sT0}, s{sT0}, 5120")
        a(f"s_add_u32 m0, s{sT0}, s{sIMG}")
    for i in range(5): a(f"v_bfe_u32 v{vGA+i}, s{sT1}, v{SH+i}, 2")
    for i in range(5): a(f"v_mad_u32_u24 v{vGA+i}, v{vGA+i}, s58, v{TT+i}")
    for i in range(5):
        if dst is None:
            a(f"buffer_load_dwordx4 v{vGA+i}, s[{SRD_2}:{SRD_2+3}], s{sSO} offen lds")
            if i < 4: a("s_add_u32 m0, m0, 1024")
        else: a(f"buffer_load_dwordx4 {v(dst+4*i,4)}, v{vGA+i}, s[{SRD_2}:{SRD_2+3}], s{sSO} offen")
def img_list(per_wave):
    for w, ps in enumerate(per_wave):
        val = 1
        for p in reversed(ps): val = (val << 5) | p
        if w == 0: a(f"s_mov_b32 s{sLST}, {hex(val)}")
        else:
            a(f"s_cmp_eq_u32 s{sWV}, {w}")
            a(f"s_cselect_b32 s{sLST}, {hex(val)}, s{sLST}")
def img_run(per_wave, depth=None, dst=None):
    img_list(per_wave)
    l = a.newlabel("Lim")
    a.label(l)
    img_group(dst)
    if depth is not None: a(f"s_waitcnt vmcnt({depth})")
    a(f"s_cmp_gt_u32 s{sLST}, 1")
    a(f"s_cbranch_scc1 {l}")

a.label("L_entry")
if STAMPS_ON:
    a("s_memrealtime s[72:73]"); a("s_memtime s[74:75]")
elif OPT.get("probe"): a("s_memrealtime s[72:73]")
a("s_load_dwordx16 s[4:19], s[0:1], 0")
a("s_load_dwordx8 s[20:27], s[0:1], 64")
a("s_load_dwordx2 s[28:29], s[0:1], 96")
a("s_cmp_ge_u32 s2, 256")
a("s_cbranch_scc1 L_end")
a(f"v_lshrrev_b32 v{vT0}, 6, v0")
a(f"v_and_b32 v{vLANE}, 63, v0")
a(f"v_readfirstlane_b32 s{sWV}, v{vT0}")
a("s_getpc_b64 s[46:47]")
a.label("L_pc")
a(f"s_lshr_b32 s{sI}, s2, 3")
a(f"s_mul_i32 s{sT0}, s{sI}, {OPT['pfl']*128}")
a(f"s_cmp_lg_u32 s{sWV}, 2")
a("s_cbranch_scc1 L_nopf")
a(f"v_lshl_add_u32 v{vT0}, v{vLANE}, 7, s{sT0}")
a(f"v_min_u32 v{vT0}, L_codeend-L_pc-4, v{vT0}")
a(f"s_mov_b64 exec, {hex((1 << OPT['pfl']) - 1)}")
a(f"global_load_dword v20, v{vT0}, s[46:47]")
a("s_mov_b64 exec, -1")
a.label("L_nopf")
a(f"v_mov_b32 v{vFL}, {FL}")
a(f"v_lshl_add_u32 v{vT1}, v{vLANE}, 3, v{vFL}")
a(f"v_mov_b32 v{vT2}, 0"); a(f"v_mov_b32 v{vT3}, 0")
a(f"ds_write_b64 v{vT1}, {v(vT2,2)}")
a(f"v_lshrrev_b32 v{vG}, 4, v{vLANE}")
a(f"v_and_b32 v{vN}, 15, v{vLANE}")
if STAMPS_ON:
    a(f"v_mov_b32 v{vTR}, 0"); a("s_mov_b32 s95, 63"); a("s_mov_b32 s94, 0"); a("s_mov_b32 s70, 0")
a(f"s_and_b32 s{sGRP}, s2, 7")
if OPT["afirst"]:
    a(f"s_add_u32 s{sI}, s{sI}, 20")
    a(f"s_and_b32 s{sI}, s{sI}, 31")
a(f"s_and_b32 s{sOC}, s{sI}, 7")
a(f"s_lshr_b32 s{sOR}, s{sI}, 3")
a(f"s_lshl2_add_u32 s{sOR}, s{sGRP}, s{sOR}")
a(f"s_cmp_ge_u32 s{sI}, 20")
a(f"s_cselect_b32 s{sROLE}, 1, 0")
a(f"s_cselect_b32 s{sT0}, 20, 0")
a(f"s_cselect_b32 s{sT1}, 5, 10")
a(f"s_sub_u32 s{sCG}, s{sI}, s{sT0}")
a(f"s_cmp_ge_u32 s{sCG}, s{sT1}")
a(f"s_cselect_b32 s{sT1}, s{sT1}, 0")
a(f"s_cselect_b32 s{sT0}, 1, 0")
a(f"s_sub_u32 s{sCG}, s{sCG}, s{sT1}")
a(f"s_lshl1_add_u32 s{sRB}, s{sGRP}, s{sT0}")
a(f"s_mul_i32 s{sXM}, s{sRB}, {128*1280}")
a("s_setprio 3")
a(f"s_cmp_lt_u32 s{sWV}, 4")
a("s_cbranch_scc1 L_service")
a(f"s_cmp_eq_u32 s{sROLE}, 0")
a("s_cbranch_scc1 L_compute")
TAP = 42
a(f"s_min_u32 s{sT3}, s{sCG}, 4")
a(f"s_lshl3_add_u32 s58, s{sT3}, s{sWV}")
a("s_sub_u32 s58, s58, 4")
a(f"s_lshl_b32 s{sT0}, s58, 7")
a(f"v_sub_u32 v{vT0}, v{vN}, v{vG}")
a(f"v_and_b32 v{vT0}, 3, v{vT0}")
a(f"v_and_or_b32 v{vT0}, v{vN}, 12, v{vT0}")
a(f"v_lshl_add_u32 v{vT0}, v{vT0}, 1, s{sT0}")
a("s_waitcnt lgkmcnt(0)")
for q in range(4): a(f"global_load_ushort v{TAP+q}, v{vT0}, s[{sSH}:{sSH+1}] offset:{32*q}")
a("s_branch L_awave")
a.label("L_service")
a(f"s_cmp_lg_u32 s{sROLE}, 0")
a("s_cbranch_scc1 L_aserv")
a(f"s_setprio {OPT['lprio']}")

vAa, vAb = 13, 14
sX1, sX2, sSL, sST = 52, 53, 54, 55
a(f"v_lshrrev_b32 v{vT0}, 3, v{vLANE}")
a(f"v_and_b32 v{vT1}, 7, v{vLANE}")
sRS = 65
a(f"s_mul_i32 s{sRS}, s{sGRP}, {OPT['rg']}")
a(f"s_lshr_b32 s{sRS}, s{sRS}, 2")
a(f"s_mul_i32 s{sT0}, s{sCG}, {OPT['rc']}")
a(f"s_lshr_b32 s{sT0}, s{sT0}, 2")
a(f"s_add_u32 s{sRS}, s{sRS}, s{sT0}")
a(f"s_sub_u32 s{sT0}, s{sRS}, 10")
a(f"s_cselect_b32 s{sRS}, s{sRS}, s{sT0}")
a(f"s_and_b32 s{sT0}, s{sWV}, 1")
a(f"s_cmp_ge_u32 s{sWV}, 2")
a("s_cbranch_scc1 L_lw")
vGX, vGWA, GAC, GD = 15, 17, 20, 24
def gate_setup():
    a(f"v_lshrrev_b32 v{vT1}, 1, v{vN}")
    a(f"v_xor_b32 v{vT1}, v{vT1}, v{vG}")
    a(f"v_lshlrev_b32 v{vT1}, 4, v{vT1}")
    a(f"v_lshl_add_u32 v{vT1}, v{vN}, 7, v{vT1}")
    a(f"s_lshl_b32 s{sT1}, s{sWV}, 6")
    a(f"v_xor_b32 v{vT1}, s{sT1}, v{vT1}")
    a(f"s_and_b32 s{sT0}, s{sCG}, 7")
    a(f"s_lshl_b32 s{sT0}, s{sT0}, 11")
    a(f"s_add_u32 s{sT0}, s{sT0}, 2048")
    a(f"v_add_u32 v18, s{sT0}, v{vT1}")
    a(f"s_add_u32 s{sT1}, s{sT1}, {GW}")
    a(f"v_lshl_add_u32 v{vGWA}, v{vG}, 4, s{sT1}")
    a("s_mov_b32 s64, 0")
    for r in range(GAC, GD + 8, 2): a(f"v_mov_b64 {v(r,2)}, 0")
def gate_reads():
    a(f"v_add_u32 v{vGX}, s64, v18")
    a(f"v_add_u32 v{vGX+1}, s68, v{vGWA}")
    a(f"ds_read_b128 {v(GD,4)}, v{vGX}")
    a(f"ds_read_b128 {v(GD+4,4)}, v{vGX+1}")
    a("s_add_u32 s68, s68, 128")
    a("s_cmp_eq_u32 s68, 1280")
    a("s_cselect_b32 s68, 0, s68")
    a(f"s_add_u32 s64, s64, {SLOT}")
    a(f"s_cmp_eq_u32 s64, {3*SLOT}")
    a("s_cselect_b32 s64, 0, s64")
def gate_dot():
    a("s_waitcnt lgkmcnt(0)")
    a(f"{MF} {v(GAC,4)}, {v(GD+4,4)}, {v(GD,4)}, {v(GAC,4)}")
def loader(tag, n, issue):
    L = f"L_ld_{tag}"
    a(f"s_load_dword s{sTAG}, {WSP}, {EPOCH}")
    trace()
    if tag == "x":
        a(f"s_cmp_lg_u32 s{sWV}, 0")
        a("s_cbranch_scc1 L_nogw")
        srd(a, SRD_2, sGW, sGW + 1, 1280)
        a(f"v_lshlrev_b32 v{vT0}, 4, v{vLANE}")
        a(f"s_mov_b32 m0, {GW}")
        a(f"buffer_load_dwordx4 v{vT0}, s[{SRD_2}:{SRD_2+3}], 0 offen lds")
        a("s_mov_b64 exec, 0xffff")
        a(f"buffer_load_dwordx4 v{vT0}, s[{SRD_2}:{SRD_2+3}], 0 offen offset:1024 lds")
        a("s_mov_b64 exec, -1")
        a.label("L_nogw")
    issue()
    a(f"s_add_u32 s62, s{sSL}, {3*SLOT}")
    a(f"s_mov_b32 s61, s{sSL}")
    a(f"s_add_u32 s{sSL}, s{sSL}, {SLOT}")
    a(f"s_mov_b32 s{sST}, 1")
    img_setup(IMG_B)
    if tag == "x": gate_setup()
    a("s_waitcnt lgkmcnt(0)")
    make_tag()
    if tag == "x": a(f"s_branch {L}_i")
    a.label(L)
    if tag == "x":
        gate_reads()
        a.label(f"{L}_i")
    issue(True)
    a(f"s_add_u32 s{sSL}, s{sSL}, {SLOT}")
    a(f"s_cmp_eq_u32 s{sSL}, s62")
    a(f"s_cselect_b32 s{sSL}, s61, s{sSL}")
    a(f"s_add_u32 s{sST}, s{sST}, 1")
    trace()
    a(f"s_waitcnt vmcnt({n})" + (" lgkmcnt(0)" if STAMPS_ON else ""))
    trace()
    a("s_barrier")
    a(f"s_cmp_lt_u32 s{sST}, 10")
    a(f"s_cbranch_scc1 {L}")
def issue_x(dots=False):
    a(f"s_mov_b32 m0, s{sSL}")
    a(f"s_mov_b32 s{sSO}, s{sX1}")
    for i in range(9):
        if i == 2: a(f"s_mov_b32 s{sSO}, s{sX2}")
        a(f"buffer_load_dwordx4 v{vAa if i % 2 == 0 else vAb}, s[{SRD_X}:{SRD_X+3}], s{sSO} offen lds")
        if i < 8: a("s_add_u32 m0, m0, 1024")
        if i != 1 and i < 8: a(f"s_add_u32 s{sSO}, s{sSO}, 10240")
        if dots and i == 4: gate_dot()
    a(f"s_add_u32 s{sRS}, s{sRS}, 1")
    a(f"s_cmp_eq_u32 s{sRS}, 10")
    a(f"s_cselect_b32 s{sSO}, -9, 1")
    a(f"s_lshl_b32 s{sSO}, s{sSO}, 7")
    a(f"s_add_u32 s{sX1}, s{sX1}, s{sSO}")
    a(f"s_add_u32 s{sX2}, s{sX2}, s{sSO}")
def issue_w(dots=False):
    a(f"s_mov_b32 m0, s{sSL}")
    for blk in range(4):
        for sec in range(3):
            a(f"buffer_load_dwordx4 v{vAa if blk % 2 == 0 else vAb}, s[{SRD_W}:{SRD_W+3}], s{sSO} offen lds")
            if (blk, sec) != (3, 2): a("s_add_u32 m0, m0, 1024")
            a(f"s_add_u32 s{sSO}, s{sSO}, {1280 if sec < 2 else (8*3840 if blk < 3 else 40*3840) - 2560}")
    a(f"s_sub_u32 s{sT0}, s{sSO}, {640*3840}")
    a(f"s_cselect_b32 s{sSO}, s{sSO}, s{sT0}")
a(f"v_mul_u32_u24 v{vT2}, 1280, v{vT0}")
a(f"v_xor_b32 v{vT3}, v{vT1}, v{vG}")
a(f"v_lshl_add_u32 v{vAa}, v{vT3}, 4, v{vT2}")
a(f"s_lshl_b32 s{sT1}, s{sT0}, 6")
a(f"v_xor_b32 v{vAa}, s{sT1}, v{vAa}")
a(f"v_xor_b32 v{vAb}, 64, v{vAa}")
a(f"s_sub_u32 s{sX1}, s{sXM}, {16*1280}")
a(f"s_cmp_eq_u32 s{sRB}, 0")
a(f"s_cselect_b32 s{sX1}, 0, s{sX1}")
a(f"s_add_u32 s{sT1}, s{sXM}, {7*10240}")
a(f"s_add_u32 s{sT2}, s{sXM}, {9*10240}")
a(f"s_cmp_eq_u32 s{sT0}, 0")
a(f"s_cselect_b32 s{sX1}, s{sX1}, s{sT1}")
a(f"s_cselect_b32 s{sX2}, s{sXM}, s{sT2}")
a(f"s_mul_i32 s{sSL}, s{sT0}, 9216")
a(f"s_lshl_b32 s68, s{sRS}, 7")
a(f"s_add_u32 s{sX1}, s{sX1}, s68")
a(f"s_add_u32 s{sX2}, s{sX2}, s68")
a("s_waitcnt lgkmcnt(0)")
srd(a, SRD_X, sX, sX + 1, 2048 * 1280)
loader("x", 9, issue_x)
gate_reads()
gate_dot()
a("s_branch L_ld_end")
a.label("L_lw")
a(f"v_and_b32 v{vT3}, 2, v{vT0}")
a(f"v_xor_b32 v{vT3}, v{vT3}, v{vT1}")
a(f"v_mul_u32_u24 v{vT2}, 3840, v{vT0}")
a(f"v_lshl_add_u32 v{vAa}, v{vT3}, 4, v{vT2}")
a(f"s_lshl_b32 s{sT1}, s{sCG}, 7")
a(f"v_add_u32 v{vAa}, s{sT1}, v{vAa}")
a(f"v_xor_b32 v{vAb}, 64, v{vAa}")
a(f"s_mul_i32 s{sSL}, s{sT0}, {WHALF}")
a(f"s_add_u32 s{sSL}, s{sSL}, {WPART}")
a(f"s_lshl1_add_u32 s{sSO}, s{sRS}, s{sT0}")
a(f"s_mul_i32 s{sSO}, s{sSO}, {32*3840}")
a("s_waitcnt lgkmcnt(0)")
srd(a, SRD_W, sWQ, sWQ + 1, 640 * 3840)
loader("w", 12, issue_w)
a.label("L_ld_end")
trace_at(24)
img_run([[9], [10], [11], [12]])
a(f"s_cmp_lg_u32 s{sWV}, 2")
a("s_cbranch_scc1 L_wo_nc")
if not OPT["gsolo"]: mode_load()
a.label("L_wo_nc")
a("s_waitcnt vmcnt(5)")
a("s_barrier")
if OPT["gsolo"]: finish()
a(f"s_cmp_lg_u32 s{sWV}, 2")
a("s_cbranch_scc1 L_wo_nm")
mode_wait(first=True)
a.label("L_wo_nm")
a(f"s_cmp_ge_u32 s{sWV}, 2")
a("s_cbranch_scc1 L_wo_ng")
gate_reads()
gate_dot()
a(f"v_lshlrev_b32 v{vT1}, 2, v{vLANE}")
a(f"v_add_u32 v{vT1}, {YS}, v{vT1}")
a(f"s_cmp_eq_u32 s{sWV}, 0")
a("s_cbranch_scc1 L_wo_g0")
a(f"ds_write_b32 v{vT1}, v{GAC}")
lds_set(F_PV + 12, 1)
a("s_branch L_wo_ng")
a.label("L_wo_g0")
lds_set(F_PV + 8, 1)
lds_wait(F_PV + 12, 1)
a(f"ds_read_b32 v{GAC+1}, v{vT1}")
a("s_waitcnt lgkmcnt(0)")
a(f"v_add_f32 v{GAC}, v{GAC}, v{GAC+1}")
a(f"v_cvt_pk_bf16_f32 v{GAC}, v{GAC}, v{GAC}")
a(f"v_and_b32 v{GAC}, 0xffff0000, v{GAC}")
a(f"v_mul_f32 v{GAC}, 0xbfb8aa3b, v{GAC}")
a(f"v_exp_f32 v{GAC}, v{GAC}")
a(f"v_add_f32 v{GAC}, 1.0, v{GAC}")
a(f"v_rcp_f32 v{GAC}, v{GAC}")
a(f"v_cvt_pk_bf16_f32 v{GAC}, v{GAC}, v{GAC}")
a(f"v_and_b32 v{GAC+1}, 0xffff0000, v{GAC}")
a(f"v_mov_b32 v{GAC}, s{sTAG}")
a(f"s_lshl3_add_u32 s{sT0}, s{sRB}, s{sCG}")
a(f"s_lshl_b32 s{sT0}, s{sT0}, 7")
a(f"s_add_u32 s{sT0}, s{sT0}, {GWS}")
a(f"v_lshl_add_u32 v{vT1}, v{vN}, 3, s{sT0}")
a(f"s_cmp_ge_u32 s{sCG}, 8")
a("s_cbranch_scc1 L_wo_ng")
a("s_mov_b64 exec, 0xffff")
a(f"global_store_dwordx2 v{vT1}, {v(GAC,2)}, {WSP} sc1")
a("s_mov_b64 exec, -1")
a.label("L_wo_ng")
img_run([[6, 7], [13, 17, 8], [14, 18, 20], [15, 19, 21, 16]], OPT["bwd"] if OPT["bwd"] >= 0 else None)
trace()
a(f"v_lshl_add_u32 v19, v{vN}, 2, v{vFL}")
a(f"v_add_u32 v19, {F_PQ}, v19")
a("s_movk_i32 s62, 0xcff")
a("s_waitcnt vmcnt(0)")
lds_add(F_WOL)
trace()
mask_wait(19, 62, sleep=1)
if OPT["wo3"]: lds_wait(F_EXR, OPT["wo3"], sleep=1)
img_run([[0], [1], [2, 4], [3, 5]])
a(f"s_cmp_eq_u32 s{sWV}, 3")
a("s_cbranch_scc1 L_help")
a("s_waitcnt vmcnt(0)")
lds_add(F_WOL + 4)
trace()
a(f"s_cmp_lt_u32 s{sWV}, 2")
a("s_cbranch_scc1 L_aux")
finish()

a.label("L_help")
a(f"s_lshl_b32 s{sT0}, s{sOR}, 9")
a(f"s_add_u32 s{sT0}, s{sT0}, {GWS}")
a(f"v_lshl_add_u32 v14, v{vLANE}, 3, s{sT0}")
a(f"v_lshl_add_u32 v13, v{vLANE}, 2, v{vFL}")
a(f"s_mov_b32 s{sSPIN}, 0")
a(f"global_load_dwordx2 v[18:19], v14, {WSP} sc1")
a("s_waitcnt vmcnt(0)")
lds_add(F_WOL + 4)
a("s_branch L_gchk1")
a.label("L_gchk")
a(f"global_load_dwordx2 v[18:19], v14, {WSP} sc1")
a("s_waitcnt vmcnt(0)")
a.label("L_gchk1")
a(f"v_cmp_ne_u32 vcc, s{sTAG}, v18")
a("s_cbranch_vccz L_gok")
spin_tail("L_gchk", 8)
a.label("L_gok")
a("v_sub_f32 v18, 1.0, v19")
a(f"ds_write_b32 v13, v19 offset:{GOM - FL + 256}")
a(f"ds_write_b32 v13, v18 offset:{GOM - FL}")
lds_add(F_GRD)
trace()
a("s_cmp_lg_u32 s2, 0")
a("s_cbranch_scc1 L_th_exit")
lds_wait(F_MODE, 1, sleep=2)
a(f"v_mov_b32 v{vT0}, {EPOCH}")
a(f"v_mov_b32 v{vT1}, s{sTAG}")
a("s_mov_b64 exec, 1")
a(f"global_store_dword v{vT0}, v{vT1}, {WSP} sc1")
a("s_mov_b64 exec, -1")
if OPT.get("probe"):
    a(f"v_lshlrev_b32 v8, 4, v{vLANE}")
    a(f"v_add_u32 v8, {FSUM}, v8")
    a(f"global_load_dwordx4 v[12:15], v8, {WSP} offset:1024 sc1")
    a("s_waitcnt vmcnt(0)")
    for j in range(4): a(f"v_subrev_u32 v{12+j}, s72, v{12+j}")
    a("v_min3_i32 v16, v12, v13, v14"); a("v_min_i32 v16, v16, v15")
    a("s_mov_b32 s50, 0")
    for l in range(64):
        a(f"v_readlane_b32 s52, v16, {l}"); a("s_min_i32 s50, s50, s52")
    a("s_add_u32 s50, s50, s72")
    if OPT.get("pp"):
        a("s_add_u32 s55, s50, 2500")
        a.label("L_probe0")
        a("s_memrealtime s[52:53]"); a("s_waitcnt lgkmcnt(0)")
        a("s_sub_u32 s54, s52, s55"); a("s_cmp_lt_i32 s54, 0"); a("s_cbranch_scc1 L_probe0")
        a(f"global_load_dwordx4 v[12:15], v8, {WSP} offset:2048 sc1")
        a("s_waitcnt vmcnt(0)")
        for j in range(4): a(f"v_subrev_u32 v{12+j}, s50, v{12+j}")
        lanes = range(40, 64) if OPT.get("prole") else range(0, 40)
        if OPT.get("prole") == 2: lanes = range(64)
        if OPT.get("pmax"):
            a("v_max3_u32 v16, v12, v13, v14"); a("v_max_u32 v16, v16, v15")
        else:
            a("v_add3_u32 v16, v12, v13, v14"); a("v_add_u32 v16, v16, v15")
        a("s_mov_b32 s51, 0")
        for l in lanes:
            a(f"v_readlane_b32 s52, v16, {l}")
            a("s_max_u32 s51, s51, s52" if OPT.get("pmax") else "s_add_u32 s51, s51, s52")
        if OPT.get("pmax"): a("s_lshl_b32 s51, s51, 1")
        else:
            a(f"s_mul_i32 s51, s51, {round(65536 * 2 / (4 * len(lanes)))}"); a("s_lshr_b32 s51, s51, 16")
        a("s_min_u32 s51, s51, 10000")
        a("s_add_u32 s50, s50, s51")
    a("s_add_u32 s50, s50, 3000")
    a.label("L_probe")
    a("s_memrealtime s[52:53]"); a("s_waitcnt lgkmcnt(0)")
    a("s_sub_u32 s54, s52, s50"); a("s_cmp_lt_i32 s54, 0"); a("s_cbranch_scc1 L_probe")
a.label("L_th_exit")
finish()

a.label("L_aserv")
SRD_K, SRD_V = 84, 80
vKa = 13
a(f"v_mul_u32_u24 v{vT1}, 1280, v{vG}")
a(f"v_lshl_add_u32 v{vT0}, v{vN}, 4, v{vT1}")
a(f"s_lshl_b32 s{sT0}, s{sCG}, 8")
a(f"v_add_u32 v{vT0}, s{sT0}, v{vT0}")
a(f"s_lshl_b32 s{sT1}, s{sWV}, 6")
a(f"v_xor_b32 v{vKa}, s{sT1}, v{vT0}")
for j in range(1, 4): a(f"v_xor_b32 v{vKa+j}, {16*j}, v{vKa}")
a(f"s_mul_i32 s{sT0}, s{sWV}, {32*1280}")
a(f"s_add_u32 s52, s{sXM}, s{sT0}")
a(f"s_lshl_b32 s53, s{sWV}, 13")
a(f"s_sub_u32 s{sT0}, s{sXM}, {4*1280}")
a(f"v_xor_b32 v{vT0}, 0xf0, v{vT0}")
a(f"v_add_u32 v17, s{sT0}, v{vT0}")
a("s_waitcnt lgkmcnt(0)")
srd(a, SRD_K, sK, sK + 1, 2048 * 1280)
srd(a, SRD_V, sV, sV + 1, 2048 * 1280)
a(f"s_load_dword s{sTAG}, {WSP}, {EPOCH}")
if OPT["gsolo"]:
    a("s_barrier"); finish()
a(f"s_cmp_ge_u32 s{sCG}, 5")
a("s_cbranch_scc1 L_as_nokv")
a(f"s_cmp_lg_u32 s{sWV}, 0")
a("s_cbranch_scc1 L_as_nohalo")
a(f"s_mov_b32 m0, {KT}")
a(f"buffer_load_dwordx4 v17, s[{SRD_K}:{SRD_K+3}], 0 offen lds")
a.label("L_as_nohalo")
a(f"s_add_u32 m0, s53, {KT + 1024}")
a(f"s_mov_b32 s{sSO}, s52")
for i in range(8):
    a(f"buffer_load_dwordx4 v{vKa + i//2}, s[{SRD_K}:{SRD_K+3}], s{sSO} offen lds")
    if i < 7:
        a("s_add_u32 m0, m0, 1024")
        a(f"s_add_u32 s{sSO}, s{sSO}, 5120")
a(f"s_add_u32 m0, s53, {VT}")
for i in range(8):
    a(f"buffer_load_dwordx4 v{vKa + i//2}, s[{SRD_V}:{SRD_V+3}], s52 offen lds")
    if i < 7:
        a("s_add_u32 m0, m0, 1024")
        a("s_add_u32 s52, s52, 5120")
a.label("L_as_nokv")
trace()
a("s_waitcnt vmcnt(0) lgkmcnt(0)")
a("s_barrier")
trace()
make_tag()
sNCH = 64
a(f"s_sub_u32 s{sT0}, s{sI}, 20")
a(f"s_lshr_b32 s{sT0}, {hex(sum(1 << q for q in range(12) if q % 3 == 2))}, s{sT0}")
a(f"s_and_b32 s{sT0}, s{sT0}, 1")
a(f"s_sub_u32 s{sNCH}, 7, s{sT0}")
a(f"s_cmp_eq_u32 s{sWV}, 3")
a("s_cbranch_scc1 L_ahelp")
a("s_setprio 1")
img_setup(IMG_A)
a(f"s_mul_i32 s{sT0}, s{sWV}, {3*5120}")
a(f"s_add_u32 s{sT0}, s{sT0}, {IMG_A}")
a(f"v_lshl_add_u32 v20, v{vLANE}, 4, s{sT0}")
a("s_setprio 3")
lds_wait(F_UDN, 8, sleep=2)
a(f"s_cmp_lg_u32 s{sI}, {OPT['cenw']}")
a("s_cbranch_scc1 L_nohold")
lds_wait(F_KV, 1, sleep=8)
a.label("L_nohold")
trace()
img_run([[9, 12], [10, 13], [11]], OPT["wodepth"], dst=24)
img_run([[14, 17, 20], [15, 18, 21], [16, 19]], OPT["wodepth"])
img_list([[0, 1, 2], [3, 4, 5], [6, 7, 8]])
for k in range(3):
    img_group(24 + 20 * k)
    a(f"s_waitcnt vmcnt({OPT['wodepth']})")
a("s_waitcnt vmcnt(0)")
trace()
lds_wait(F_PB + 20, 1, sleep=8)
lds_wait(F_MRG, f"s{sNCH}", sleep=2)
img_run([[10, 13], [11, 9], [12]])
a("s_waitcnt vmcnt(0)")
lds_add(F_WOL)
trace()
lds_wait(F_CVD, 8, sleep=1)
for i in range(15):
    a(f"ds_write_b128 v20, {v(24+4*i,4)} offset:{1024*i}")
    if i >= 12: a("s_waitcnt lgkmcnt(8)")
lds_add(F_WOL + 4)
trace()
a(f"s_cmp_lt_u32 s{sWV}, 2")
a("s_cbranch_scc1 L_aux")
finish()

a.label("L_ahelp")
a(f"v_lshlrev_b32 v{vT0}, 2, v{vLANE}")
a(f"v_add_u32 v{vT0}, {YS}, v{vT0}")
a(f"v_mov_b32 v{vT1}, 0")
a(f"ds_write_b32 v{vT0}, v{vT1}")
a(f"s_sub_u32 s52, s{sI}, 20")
a(f"s_mul_i32 s{sT0}, s{sGRP}, {XGRP}")
a(f"s_mul_i32 s{sT1}, s52, {129*128}")
a(f"s_add_u32 s{sT0}, s{sT0}, s{sT1}")
a(f"s_add_u32 s{sT0}, s{sT0}, {XLW}")
a(f"v_lshl_add_u32 v15, v{vLANE}, 7, s{sT0}")
a("v_add_u32 v16, 8192, v15")
a("v_add_u32 v17, 16384, v15")
lds_wait(F_UDN, 8, sleep=2)
if OPT.get("probe"):
    a(f"s_lshl_b32 s{sT0}, s2, 2"); a(f"s_add_u32 s{sT0}, s{sT0}, {FSUM + 1024}")
    a(f"v_mov_b32 v{vT0}, s{sT0}"); a(f"v_mov_b32 v{vT1}, s72")
    a(f"global_store_dword v{vT0}, v{vT1}, {WSP} sc1"); a("s_waitcnt vmcnt(0)")
cell_init()
trace()
a(f"s_cmp_lg_u32 s{sI}, {OPT['cenw']}")
a("s_cbranch_scc1 L_nocen")
census()
lds_set(F_KV, 1)
a.label("L_nocen")
trace()
for i in range(3):
    if i == 2: a("s_mov_b64 exec, 1")
    a(f"global_load_dword v18, v{15+i}, {WSP} sc1")
a("s_mov_b64 exec, -1")
tlb_touch()
a("s_sleep 20")
mode_wait()
trace()
lds_add(F_WOL)
lds_wait(F_MRG, 1, sleep=8)
a("s_branch L_help")

a.label("L_aux")
a("s_setprio 3")
my_block(sT0)
a(f"s_lshl3_add_u32 s{sT0}, s{sWV}, s{sT0}")
a(f"s_add_u32 s40, s{sWS}, s{sT0}")
a(f"s_addc_u32 s41, s{sWS+1}, 0")
a(f"s_mul_i32 s{sT0}, s{sOC}, {80*4096}")
a(f"s_mul_i32 s{sT1}, s{sWV}, {40*4096}")
a(f"s_add_u32 s{sT0}, s{sT0}, s{sT1}")
a(f"s_lshl_b32 s{sT1}, s{sOR}, 7")
a(f"s_add_u32 s{sT0}, s{sT0}, s{sT1}")
a(f"s_add_u32 s{sT0}, s{sT0}, {YWS}")
a(f"v_lshrrev_b32 v13, 3, v{vLANE}")
a(f"v_and_b32 v12, 7, v{vLANE}")
a("v_and_b32 v15, 6, v13")
a("v_xor_b32 v15, v15, v12")
a("v_lshlrev_b32 v15, 4, v15")
a("v_lshl_add_u32 v15, v13, 7, v15")
a(f"s_mul_i32 s{sT1}, s{sWV}, 5120")
a(f"s_add_u32 s{sT1}, s{sT1}, {YT}")
a(f"v_add_u32 v15, s{sT1}, v15")
a("v_lshlrev_b32 v13, 12, v13")
a("v_lshl_add_u32 v13, v12, 4, v13")
a(f"v_add_u32 v20, s{sT0}, v13")
for i in range(1, 5): a(f"v_add_u32 v{20+i}, {8*4096*i}, v20")
a(f"s_and_b32 s44, s{sTAG}, 0xffffff00")
a("s_add_u32 s44, s44, 0x600")
a(f"s_mov_b32 s{sSPIN}, 0")
a.label("L_yp")
a("s_load_dwordx2 s[42:43], s[40:41], 0 glc")
a("s_waitcnt lgkmcnt(0)")
a("s_and_b32 s43, s43, 0xffffff00")
a("s_cmp_eq_u32 s43, s44")
a("s_cbranch_scc1 L_ypd")
spin_tail("L_yp", OPT["ysleep"])
a.label("L_ypd")
trace_at(16)
pp(9, 0)
a(f"s_mov_b32 s{sSPIN}, 0")
a.label("L_yretry")
for i in range(5): a(f"global_load_dwordx4 {v(28+4*i,4)}, v{20+i}, {WSP} sc1")
a("v_mov_b32 v16, 0")
for i in range(5):
    a(f"s_waitcnt vmcnt({4-i})")
    a(f"ds_write_b128 v15, {v(28+4*i,4)} offset:{1024*i}")
    a(f"v_add3_u32 v16, v16, v{28+4*i}, v{29+4*i}")
    a(f"v_add3_u32 v16, v16, v{30+4*i}, v{31+4*i}")
wave_sum_eq(16, "s42")
a("s_cbranch_scc1 L_yok")
spin_tail("L_yretry", 2)
a.label("L_yok")
lds_add(F_YLD)
trace()
if STAMPS_ON:
    a(f"s_add_u32 s{sSPIN}, s{sSPIN}, s72"); a(f"s_add_u32 s{sSPIN}, s{sSPIN}, 1"); a(f"v_writelane_b32 v{vTR}, s{sSPIN}, 20")
finish()

a.label("L_compute")
a("s_waitcnt lgkmcnt(0)")
a(f"s_load_dword s{sTAG}, {WSP}, {EPOCH}")


sGW_, sT, sMH, sPH, sSLOT, sINF, sCGP, sB1 = 40, 41, 42, 43, 44, 45, 46, 47
sNQ, sNV, sOWN, sRM, sSC, sFLO = 48, 49, 50, 52, 54, 55
sMT, sE = 56, 57
ACC = 8; XF = 68; WF = 108
vXB, vWB, vXA, vWA, vFA, vINC, vPW, vCNT, vFG = 132, 133, 134, 136, 137, 138, 139, 140, 141
BO, BP, MK = 144, 148, 152
vEXW, vQM, vXS, vXR, vOA, vOX, vVX, vPF, vBND, vPQ = 156, 157, 158, 159, 160, 161, 162, 163, 164, 165
NEG = 0xf149f2ca
a(f"s_setprio {OPT['phi']}")
a(f"s_sub_u32 s{sGW_}, s{sWV}, 4")
a(f"s_lshr_b32 s{sMH}, s{sGW_}, 2")
a(f"s_and_b32 s{sMT}, s{sGW_}, 3")
a(f"s_xor_b32 s{sT}, s{sMT}, s{sMH}")
a(f"s_sub_u32 s{sCGP}, s{sCG}, 5")
a(f"s_cselect_b32 s{sCGP}, s{sCG}, s{sCGP}")
a(f"s_mov_b32 s{sT0}, {hex(JT[0])}"); a(f"s_mov_b32 s{sINF}, {hex(INFO[0])}")
for c in range(1, 5):
    a(f"s_cmp_eq_u32 s{sCGP}, {c}")
    a(f"s_cselect_b32 s{sT0}, {hex(JT[c])}, s{sT0}")
    a(f"s_cselect_b32 s{sINF}, {hex(INFO[c])}, s{sINF}")
a(f"s_lshl_b32 s{sT1}, s{sT}, 3")
a(f"s_lshr_b32 s{sT0}, s{sT0}, s{sT1}")
a(f"s_lshr_b32 s{sINF}, s{sINF}, s{sT1}")
a(f"s_and_b32 s{sINF}, s{sINF}, 0xff")
a(f"v_lshrrev_b32 v{vT1}, 1, v{vN}")
a(f"v_xor_b32 v{vT1}, v{vT1}, v{vG}")
a(f"v_lshlrev_b32 v{vT1}, 4, v{vT1}")
a(f"v_lshl_add_u32 v{vXB}, v{vN}, 7, v{vT1}")
a(f"s_lshl_b32 s{sT1}, s{sMH}, 13")
a(f"v_add_u32 v{vXB}, s{sT1}, v{vXB}")
a(f"v_and_b32 v{vT0}, 3, v{vLANE}")
a(f"v_lshlrev_b32 v{vT1}, 1, v{vT0}")
a(f"v_bfe_u32 v{vT1}, s{sT0}, v{vT1}, 2")
a(f"v_bfe_u32 v{vT2}, v{vLANE}, 3, 2")
a(f"v_xor_b32 v{vT1}, v{vT1}, v{vT2}")
a(f"v_lshl_add_u32 v{vT1}, v{vT1}, 2, v{vT0}")
a(f"v_bfe_u32 v{vT2}, v{vLANE}, 2, 2")
a(f"v_mad_u32_u24 v{vT2}, v{vG}, 24, v{vT2}")
a(f"v_lshlrev_b32 v{vT2}, 7, v{vT2}")
a(f"v_lshl_add_u32 v{vWB}, v{vT1}, 3, v{vT2}")
a(f"v_add_u32 v{vWB}, {WPART}, v{vWB}")
for r in range(ACC, ACC + 60): a(f"v_mov_b32 v{r}, 0")
a(f"s_mov_b32 s{sPH}, 0")
a(f"s_mov_b32 s{sSLOT}, 0")
a(f"v_mov_b32 v{vXA}, v{vXB}")
a(f"v_xor_b32 v{vXA+1}, 64, v{vXB}")
a(f"v_mov_b32 v{vWA}, v{vWB}")
a(f"v_mov_b32 v{vT3}, {hex(NEG)}")
a(f"v_lshlrev_b32 v{vT0}, 2, v{vG}")
a(f"v_sub_u32 v{vT0}, v{vN}, v{vT0}")
for r in range(4):
    a(f"v_subrev_u32 v{vT1}, {r}, v{vT0}")
    a(f"v_and_b32 v{vT1}, 0x80000001, v{vT1}")
    a(f"v_cmp_eq_u32 vcc, 0, v{vT1}")
    a(f"v_cndmask_b32 v{BO+r}, v{vT3}, 0, vcc")
    a(f"v_cmp_eq_u32 vcc, 0x80000000, v{vT1}")
    a(f"v_cndmask_b32 v{BP+r}, v{vT3}, 0, vcc")
a(f"v_and_b32 v{vT1}, 1, v{vN}")
a(f"v_lshlrev_b32 v{vT2}, 4, v{vT1}")
a(f"v_mov_b32 v{vT3}, 0xffff")
a(f"v_lshlrev_b32 v{vT3}, v{vT2}, v{vT3}")
a(f"v_sub_u32 v{vT1}, v{vT0}, v{vT1}")
a(f"v_cmp_le_i32 vcc, 0, v{vT1}")
a(f"v_cndmask_b32 v{MK}, 0, v{vT3}, vcc")
a(f"v_cndmask_b32 v{MK+2}, v{vT3}, 0, vcc")
a(f"v_cmp_le_i32 vcc, 2, v{vT1}")
a(f"v_cndmask_b32 v{MK+1}, 0, v{vT3}, vcc")
a(f"v_cndmask_b32 v{MK+3}, v{vT3}, 0, vcc")
a(f"s_mov_b32 s{sSC}, {hex(f2u((20 ** -0.5) * math.log2(math.e)))}")
a(f"v_bfe_i32 v{vQM}, s{sINF}, v{vG}, 1")
a(f"v_cmp_ne_u32 s[{sOWN}:{sOWN+1}], 0, v{vQM}")
a(f"s_bfe_u32 s60, s{sINF}, {4 | (2 << 16)}")
a(f"v_cmp_eq_u32 s[{sRM}:{sRM+1}], s60, v{vG}")
a(f"s_bfe_u32 s61, s{sINF}, {6 | (1 << 16)}")
a(f"s_lshr_b32 s62, s{sT}, 1")
a(f"s_add_u32 s{sT0}, s{sT}, 1")
a(f"s_bfe_u32 s{sT0}, s{sT0}, {1 | (1 << 16)}")
a(f"s_xor_b32 s{sE}, s{sT0}, 1")
a(f"s_bitcmp1_b32 s{sINF}, 7")
a(f"s_cselect_b32 s63, s62, s61")
a(f"s_mul_i32 s{sT0}, s63, {EXT}")
a(f"s_lshl_b32 s{sT1}, s{sMH}, 11")
a(f"s_add_u32 s{sT0}, s{sT0}, s{sT1}")
a(f"s_add_u32 s{sT0}, s{sT0}, {EX}")
a(f"v_lshl_add_u32 v{vEXW}, v{vLANE}, 3, s{sT0}")
a(f"v_and_b32 v{vT0}, 0x33, v{vLANE}")
a(f"s_lshl_b32 s{sT1}, s60, 5")
a(f"s_add_u32 s{sT0}, s{sT0}, s{sT1}")
a(f"v_lshl_add_u32 v{vVX}, v{vT0}, 3, s{sT0}")
a(f"s_lshl_b32 s{sT0}, s{sT}, 10")
a(f"s_add_u32 s{sT0}, s{sT0}, {EXB}")
a(f"v_lshl_add_u32 v{vBND}, v{vLANE}, 3, s{sT0}")
a(f"v_min_u32 v{vT0}, 16, v{vLANE}")
a(f"v_lshl_add_u32 v{vPF}, v{vT0}, 2, v{vFL}")
a(f"v_add_u32 v{vPF}, {F_PQ}, v{vPF}")
a(f"s_lshl1_add_u32 s{sT0}, s{sT}, s{sMH}")
a(f"s_lshl_b32 s{sT0}, s{sT0}, 2")
a(f"v_add_u32 v{vPQ}, s{sT0}, v{vFL}")
a(f"s_lshl_b32 s{sT0}, s{sT}, 1")
a(f"s_lshl_b32 s{sT0}, s{sMH}, s{sT0}")
a(f"s_lshl1_add_u32 s{sT1}, s{sMH}, 1")
a(f"s_mul_i32 s{sT2}, s61, 6")
a(f"s_lshl_b32 s{sT1}, s{sT1}, s{sT2}")
a(f"s_or_b32 s{sT2}, s{sT0}, s{sT1}")
a(f"s_bitcmp1_b32 s{sINF}, 7")
a(f"s_cselect_b32 s{sNQ}, s{sT0}, s{sT2}")
a(f"s_cselect_b32 s{sNV}, s{sT0}, s{sT1}")
a(f"s_lshl_b32 s{sNV}, s{sNV}, 8")
a(f"s_or_b32 s{sNQ}, s{sNQ}, 0x10000")
a(f"s_and_b32 s64, s{sRB}, 1")
a(f"s_lshl1_add_u32 s65, s64, s{sMH}")
a(f"s_mul_i32 s{sT0}, s65, {2*40960}")
a(f"s_mul_i32 s{sT1}, s{sGRP}, {OGRP}")
a(f"s_add_u32 s{sT0}, s{sT0}, s{sT1}")
a(f"s_lshl_b32 s{sT1}, s{sCG}, 11")
a(f"s_add_u32 s{sT0}, s{sT0}, s{sT1}")
a(f"s_add_u32 s{sT0}, s{sT0}, {UWS}")
a(f"s_mul_i32 s{sT1}, s{sE}, 20480")
a(f"s_lshl3_add_u32 s{sT1}, s62, s{sT1}")
a(f"s_add_u32 s{sT1}, s{sT1}, s{sT0}")
a(f"v_lshl_add_u32 v{vOA}, v{vLANE}, 4, s{sT1}")
a(f"s_lshl_b32 s{sT1}, s60, 8")
a(f"s_lshl3_add_u32 s{sT1}, s61, s{sT1}")
a(f"s_add_u32 s{sT1}, s{sT1}, 20480")
a(f"s_add_u32 s{sT1}, s{sT1}, s{sT0}")
a(f"v_lshrrev_b32 v{vT0}, 1, v{vG}")
a(f"v_mul_u32_u24 v{vT0}, {40960 - 2048}, v{vT0}")
a(f"v_lshl_add_u32 v{vT0}, v{vG}, 10, v{vT0}")
a(f"v_lshl_add_u32 v{vT0}, v{vN}, 4, v{vT0}")
a(f"v_add_u32 v{vOX}, s{sT1}, v{vT0}")
a(f"s_mul_i32 s66, s{sGRP}, {XGRP}")
a(f"s_add_u32 s66, s66, {XLW}")
a(f"s_lshl_b32 s{sT0}, s65, 8")
a(f"s_lshl_b32 s{sT1}, s{sE}, 7")
a(f"s_add_u32 s{sT0}, s{sT0}, s{sT1}")
a(f"s_lshl1_add_u32 s{sT1}, s{sCG}, s62")
a(f"s_lshl2_add_u32 s{sT0}, s{sT1}, s{sT0}")
a(f"s_add_u32 s{sT0}, s{sT0}, s66")
a(f"s_add_u32 s{sFLO}, s{sT0}, {XFLG}")
a(f"s_cmp_ge_u32 s{sCG}, 5")
a(f"s_cselect_b32 s{sT0}, 3, -1")
a(f"s_add_u32 s{sT0}, s{sT0}, s{sCGP}")
a(f"s_add_u32 s{sT0}, s{sT0}, s62")
a(f"s_and_b32 s{sT0}, s{sT0}, 7")
a(f"s_lshl3_add_u32 s{sT0}, s64, s{sT0}")
a(f"s_lshl1_add_u32 s{sT0}, s{sT0}, s62")
a(f"s_lshl1_add_u32 s{sT0}, s{sT0}, s{sMH}")
a(f"s_xor_b32 s{sT1}, s{sT0}, 2")
a(f"s_mul_i32 s{sT0}, s{sT0}, 3072")
a(f"s_mul_i32 s{sT1}, s{sT1}, 3072")
a(f"s_add_u32 s{sT0}, s{sT0}, s66")
a(f"s_add_u32 s{sT1}, s{sT1}, s66")
a(f"v_lshl_add_u32 v{vXR}, v{vLANE}, 4, s{sT0}")
a(f"v_lshl_add_u32 v{vXS}, v{vLANE}, 4, s{sT1}")
a("s_waitcnt lgkmcnt(0)")
a(f"s_mul_i32 s{sTAG}, s{sTAG}, 1664525")
a(f"s_add_u32 s{sTAG}, s{sTAG}, 1013904223")
trace_at(0)

def gemm_loop(js, tag):
    L = f"L_gemm_{tag}"
    def reads(b):
        w = lambda s_: [f"ds_read_b64_tr_b16 {v(WF+12*b+4*s_+2*e,2)}, v{vWA} offset:{WHALF*b + 1024*s_ + 512*e}" for e in range(2)]
        x = lambda j: [f"ds_read_b128 {v(XF+20*b+4*j,4)}, v{vXA+b} offset:{2048*j}"]
        out = x(js[0]) + w(1) + w(2) + x(js[1]) + w(0)
        for j in js[2:]: out += x(j)
        return out
    def mf(b):
        out = []
        for j in js:
            for s_ in (1, 2, 0):
                if s_ == 0 and j == 0: continue
                acc = v(ACC + 20 * s_ + 4 * j, 4); w_, x_ = v(WF+12*b+4*s_, 4), v(XF+20*b+4*j, 4)
                out.append(f"{MF} {acc}, {x_ if s_ == 2 else w_}, {w_ if s_ == 2 else x_}, {acc}")
        return out
    mh = int(js[0] == 1)
    def phase(b, pend, kind):
        m = mf(b)
        gaps = [[] for _ in m]
        k = OPT["r0"]
        def lateprio():
            lp = a.newlabel("Llp")
            return [f"s_bitcmp1_b32 s{sINF}, 7", "s_setprio 3", f"s_cbranch_scc1 {lp}", "s_setprio 1", f"{lp}:"]
        if kind == 0 and b == 1:
            k = OPT["bk"]
            gaps[k] = ["s_barrier"]
            gaps[0] = [f"s_add_u32 s{sSLOT}, s{sSLOT}, {SLOT}", f"s_cmp_eq_u32 s{sSLOT}, {3*SLOT}", f"s_cselect_b32 s{sSLOT}, 0, s{sSLOT}",
                       f"v_add_u32 v{vXA}, s{sSLOT}, v{vXB}", f"v_add_u32 v{vWA}, s{sSLOT}, v{vWB}"] + gaps[0]
            gaps[k] += [f"s_setprio {OPT['pa%d' % mh]}"]
            gaps[k + 2] += [f"v_xor_b32 v{vXA+1}, 64, v{vXA}"]
            gaps[-3] += [f"s_add_u32 s{sPH}, s{sPH}, 1"]
            gaps[-2] += [f"s_cmp_lt_u32 s{sPH}, 9"]
        elif kind == 0: gaps[0] = [f"s_setprio {OPT['pb%d' % mh]}"]
        elif kind == 1: gaps[0] = lateprio() if OPT["lrun"] >= 2 else [f"s_setprio {OPT['pb%d' % mh]}"]
        elif OPT["lrun"] == 1: gaps[0] = lateprio()
        while pend:
            gaps[k] += pend[:OPT["rpg"]]; pend = pend[OPT["rpg"]:]; k += 1
        if kind == 0 and b == 1: gaps[-1] += [f"s_cbranch_scc1 {L}"]
        a("s_waitcnt lgkmcnt(0)")
        for k in range(len(m)):
            a(m[k])
            if b == 1 and k == 8 and OPT["ltr"]: trace()
            for x in gaps[k]: a(x)
    a.label(f"{L}0")
    a("s_barrier")
    trace()
    for r in reads(0): a(r)
    if mh and not OPT["gsolo"]:
        a(f"s_cmp_lg_u32 s{sWV}, 11")
        a(f"s_cbranch_scc1 {L}")
        if OPT.get("probe"):
            a(f"s_lshl_b32 s{sT0}, s2, 2"); a(f"s_add_u32 s{sT0}, s{sT0}, {FSUM + 1024}")
            a(f"v_mov_b32 v{vT0}, s{sT0}"); a(f"v_mov_b32 v{vT1}, s72")
            a(f"global_store_dword v{vT0}, v{vT1}, {WSP} sc1"); a("s_waitcnt vmcnt(0)")
        cell_init()
        tlb_touch()
    a.label(L)
    phase(0, reads(1), 0)
    phase(1, reads(0), 0)
    phase(0, reads(1), 1)
    phase(1, [], 2)
    if not mh: a("s_branch L_gdone")
a(f"s_cmp_lg_u32 s{sMH}, 0")
a("s_cbranch_scc1 L_gemm_40")
gemm_loop([0, 1, 2, 3, 4], "5")
gemm_loop([1, 2, 3, 4], "4")
a.label("L_gdone")
trace()
if OPT["gsolo"]: finish()
pp(2, 8)
QOP, KOP, VM, VXX, XG, BF = 68, 84, 104, 114, 124, 136
SO, SP = 8, 24
XR, M, PP, OM, OX, OPK, XP = 68, 80, 84, 8, 24, 40, 100
AQ, AK, AV = ACC, ACC + 20, ACC + 40
LR = [XG, XG+1, XG+2, XG+4, XG+5, XG+6, XG+8, XG+9]
LA = [LR[2*h] for h in range(4)]; LB = [LR[2*h+1] for h in range(4)]
def bf_setup():
    a(f"s_or_b32 s{sT0}, s{sRB}, s{sMH}")
    a(f"s_cmp_eq_u32 s{sT0}, 0")
    a(f"s_cselect_b32 s{sT0}, {hex(NEG)}, 0")
    for r in range(4): a(f"v_add_f32 v{BF+r}, s{sT0}, v{BP+r}")
def select(h):
    a(f"v_max3_f32 v{LA[h]}, v{SO+4*h}, v{SO+4*h+1}, v{SP+4*h}")
    a(f"v_max3_f32 v{LB[h]}, v{SO+4*h+2}, v{SO+4*h+3}, v{SP+4*h+2}")
    a(f"v_max_f32 v{LA[h]}, v{LA[h]}, v{SP+4*h+1}")
    a(f"v_max_f32 v{LB[h]}, v{LB[h]}, v{SP+4*h+3}")
def get_mode(vt=vT0):
    a(f"v_readlane_b32 s{sMODE}, v{vt}, 16")
    set_mode()
a(f"s_bitcmp0_b32 s{sINF}, 7")
a("s_cbranch_scc1 L_full")
a("s_setprio 3")
for j in (4, 3, 2, 1):
    pack(KOP + 4 * j, AK + 4 * j)
    a(f"ds_write_b64 v{vEXW}, {v(KOP+4*j,2)} offset:{(9+j)*512}")
a(f"s_cmp_lg_u32 s{sMH}, 0")
a("s_cbranch_scc1 L_l_nk0")
pack(KOP, AK)
a(f"ds_write_b64 v{vEXW}, {v(KOP,2)} offset:{9*512}")
a.label("L_l_nk0")
for i in range(4):
    pack(QOP + 4 * i, AQ + 4 * (i + 1))
    a(f"ds_write_b64 v{vEXW}, {v(QOP+4*i,2)} offset:{(i+1)*512}")
lds_set(F_PQ, 1, vaddr=vPQ, vt=vT1)
for i in range(4):
    for e in range(2): a(f"v_and_b32 v{QOP+4*i+e}, v{vQM}, v{QOP+4*i+e}")
for i in (3, 2, 1, 0):
    a(f"{MH} {v(SO+4*i,4)}, {v(KOP+4*(i+1),2)}, {v(QOP+4*i,2)}, {v(BO,4)}")
    if i: a(f"{MH} {v(SP+4*i,4)}, {v(KOP+4*i,2)}, {v(QOP+4*i,2)}, {v(BP,4)}")
bf_setup()
mask_wait(vPF, sNQ)
get_mode()
a(f"s_cmp_eq_u32 s{sMH}, 0")
a("s_cbranch_scc1 L_l_k0")
a(f"ds_read_b64 {v(KOP,2)}, v{vEXW} offset:{9*512}")
a.label("L_l_k0")
for r in (3, 7, 11): a(f"v_mov_b32 v{XG+r}, s{sTAG}")
for h in (3, 2): select(h)
a("s_waitcnt lgkmcnt(0)")
a(f"{MH} {v(SP,4)}, {v(KOP,2)}, {v(QOP,2)}, {v(BF,4)}")
select(1)
pack(VM, AV + 16)
a(f"ds_write_b64 v{vEXW}, {v(VM,2)} offset:{(18+4)*512}")
select(0)
dual(lambda f: [a(f"global_store_dwordx4 v{vXS}, {v(XG+4*q,4)}, {LBP} offset:{1024*q}{f}") for q in (2, 1, 0)])
trace()
for j in (3, 2, 1):
    pack(VM + 2 * (4 - j), AV + 4 * j)
    a(f"ds_write_b64 v{vEXW}, {v(VM+2*(4-j),2)} offset:{(18+j)*512}")
a(f"s_cmp_lg_u32 s{sMH}, 0")
a("s_cbranch_scc1 L_l_nv0")
pack(VM + 8, AV)
a(f"ds_write_b64 v{vEXW}, {v(VM+8,2)} offset:{18*512}")
lds_set(F_PV, 1, vaddr=vPQ, vt=vT1)
a("s_branch L_l_v0")
a.label("L_l_nv0")
lds_set(F_PV, 1, vaddr=vPQ, vt=vT1)
mask_wait(vPF, sNV)
a(f"ds_read_b64 {v(VM+8,2)}, v{vEXW} offset:{18*512}")
a.label("L_l_v0")
a(f"s_mov_b32 s{sSPIN}, 0")
a.label("L_xp")
for q in range(3): a(f"global_load_dwordx4 {v(XR+4*q,4)}, v{vXR}, {LBP} offset:{1024*q} sc1")
a("s_waitcnt vmcnt(0)")
a(f"v_cmp_ne_u32 vcc, s{sTAG}, v{XR+3}")
a(f"v_cmp_ne_u32 s[60:61], s{sTAG}, v{XR+7}")
a(f"v_cmp_ne_u32 s[62:63], s{sTAG}, v{XR+11}")
a("s_or_b64 vcc, vcc, s[60:61]")
a("s_or_b64 vcc, vcc, s[62:63]")
a("s_cbranch_scc0 L_xpd")
spin_tail("L_xp")
a.label("L_xpd")
trace()
for r in LR: a(f"v_add_f32 v{r}, v{r}, v{r - XG + XR}")
a("s_branch L_soft")
a.label("L_full")
pack(KOP + 16, AK + 16); pack(VM, AV + 16)
a(f"s_cmp_lg_u32 s{sMH}, 0")
a("s_cbranch_scc1 L_f_nb")
a(f"ds_write_b64 v{vBND}, {v(KOP+16,2)}")
a(f"ds_write_b64 v{vBND}, {v(VM,2)} offset:512")
pack(KOP, AK); pack(VM + 8, AV)
a.label("L_f_nb")
lds_set(F_PQ, 1, vaddr=vPQ, vt=vT1)
for i in range(4):
    pack(QOP + 4 * i, AQ + 4 * (i + 1))
    a(f"v_mov_b32 v{QOP+4*i+2}, 0"); a(f"v_mov_b32 v{QOP+4*i+3}, 0")
for j in (1, 2, 3): pack(KOP + 4 * j, AK + 4 * j)
bf_setup()
mask_wait(vPF, sNQ)
get_mode()
trace()
a(f"s_cmp_eq_u32 s{sMH}, 0")
a("s_cbranch_scc1 L_f_nr")
a(f"ds_read_b64 {v(KOP,2)}, v{vBND}")
a(f"ds_read_b64 {v(VM+8,2)}, v{vBND} offset:512")
a.label("L_f_nr")
a(f"s_mov_b64 exec, s[{sRM}:{sRM+1}]")
for i in range(4): a(f"ds_read_b64 {v(QOP+4*i+2,2)}, v{vEXW} offset:{(i+1)*512}")
a("s_mov_b64 exec, -1")
for j in range(5): a(f"ds_read_b64 {v(KOP+4*j+2,2)}, v{vEXW} offset:{(9+j)*512}")
for j in (1, 2, 3): pack(VM + 2 * (4 - j), AV + 4 * j)
for i in range(4):
    a(f"s_waitcnt lgkmcnt({3-i})")
    a(f"{MF} {v(SO+4*i,4)}, {v(KOP+4*(i+1),4)}, {v(QOP+4*i,4)}, {v(BO,4)}")
    a(f"{MF} {v(SP+4*i,4)}, {v(KOP+4*i,4)}, {v(QOP+4*i,4)}, {v(BF if i == 0 else BP,4)}")
mask_wait(vPF, sNV)
for j in range(5): a(f"ds_read_b64 {v(VXX+2*(4-j),2)}, v{vVX} offset:{(18+j)*512}")
for h in range(4): select(h)
trace()
a.label("L_soft")
for h in range(4): a(f"v_max_f32 v{M+h}, v{LA[h]}, v{LB[h]}")
def xreduce(op, mid):
    a(f"v_permlane32_swap_b32 v{M}, v{M+1}")
    a(f"v_permlane32_swap_b32 v{M+2}, v{M+3}")
    a(f"{op} v{M}, v{M}, v{M+1}")
    a(f"{op} v{M+2}, v{M+2}, v{M+3}")
    a(f"v_permlane16_swap_b32 v{M}, v{M+2}")
    a(f"{op} v{M}, v{M}, v{M+2}")
    mid(M)
    a(f"v_mov_b32 v{M+2}, v{M}")
    a(f"v_permlane16_swap_b32 v{M}, v{M+2}")
    a(f"v_mov_b32 v{M+1}, v{M}")
    a(f"v_mov_b32 v{M+3}, v{M+2}")
    a(f"v_permlane32_swap_b32 v{M}, v{M+1}")
    a(f"v_permlane32_swap_b32 v{M+2}, v{M+3}")
xreduce("v_max_f32", lambda r: a(f"v_mul_f32 v{r}, s{sSC}, v{r}"))
for h in range(4):
    a(f"v_fma_f32 v{LA[h]}, v{LA[h]}, s{sSC}, -v{M+h}")
    a(f"v_fma_f32 v{LB[h]}, v{LB[h]}, s{sSC}, -v{M+h}")
for h in range(4):
    a(f"v_exp_f32 v{LA[h]}, v{LA[h]}")
    a(f"v_exp_f32 v{LB[h]}, v{LB[h]}")
for h in range(4): a(f"v_add_f32 v{M+h}, v{LA[h]}, v{LB[h]}")
xreduce("v_add_f32", lambda r: a(f"v_rcp_f32 v{r}, v{r}"))
a("s_waitcnt lgkmcnt(0)")
lds_add(F_EXR)
for h in range(4):
    a(f"v_mul_f32 v{LA[h]}, v{LA[h]}, v{M+h}")
    a(f"v_mul_f32 v{LB[h]}, v{LB[h]}, v{M+h}")
    a(f"v_cvt_pk_bf16_f32 v{LA[h]}, v{LA[h]}, v{LA[h]}")
    a(f"v_cvt_pk_bf16_f32 v{LB[h]}, v{LB[h]}, v{LB[h]}")
    a(f"v_and_b32 v{PP+4*h}, v{LA[h]}, v{MK}")
    a(f"v_and_b32 v{PP+4*h+1}, v{LB[h]}, v{MK+1}")
    a(f"v_and_b32 v{PP+4*h+2}, v{LA[h]}, v{MK+2}")
    a(f"v_and_b32 v{PP+4*h+3}, v{LB[h]}, v{MK+3}")
    if h > 0: a(f"{MF} {v(OM+4*(h-1),4)}, {v(VM+2*(4-h),4)}, {v(PP+4*(h-1),4)}, 0")
a(f"v_add_u32 v{vEXW}, 40960, v{vOA}")
a(f"{MF} {v(OM+12,4)}, {v(VM,4)}, {v(PP+12,4)}, 0")
a(f"s_bitcmp1_b32 s{sINF}, 7")
a("s_cbranch_scc1 L_norem")
for i in range(4): a(f"{MF} {v(OX+4*i,4)}, {v(VXX+2*(3-i),4)}, {v(PP+4*i,4)}, 0")
a.label("L_norem")
for i in range(4): pack(OPK + 2 * i, OM + 4 * i)
a(f"s_mov_b64 exec, s[{sOWN}:{sOWN+1}]")
dual(lambda f: [a(f"global_store_dwordx2 v{vOA if i < 2 else vEXW}, {v(OPK+2*i,2)}, {LBP} offset:{1024*(i&1)}{f}") for i in range(4)])
a("s_mov_b64 exec, -1")
a(f"s_bitcmp1_b32 s{sINF}, 7")
a("s_cbranch_scc1 L_norem2")
pack(XP, OX)
a("s_mov_b32 exec_lo, 0xffff0000")
pack(XP, OX + 4)
a("s_mov_b32 exec_lo, 0")
pack(XP, OX + 8)
a("s_mov_b32 exec_hi, 0xffff0000")
pack(XP, OX + 12)
a("s_mov_b64 exec, -1")
dual(lambda f: a(f"global_store_dwordx2 v{vOX}, {v(XP,2)}, {LBP}{f}"))
a.label("L_norem2")
trace_at(16)
pp(3, 4)

ACCB, OF, WB, GQ = 8, 28, 68, 128
NB = 15
vWM, vO4, vPL, vRD, vFM, vGAD, vSTG = 148, 158, 159, 160, 161, 162, 164
vOUT = [165, 166, vT3]
sOP = 60
vWF = 149
def tail_setup(img, red):
    a(f"v_bfe_u32 v{vT1}, v{vLANE}, 2, 2")
    a(f"v_lshl_add_u32 v{vT1}, v{vG}, 2, v{vT1}")
    a(f"v_mul_u32_u24 v{vT1}, 160, v{vT1}")
    a(f"v_and_b32 v{vT2}, 3, v{vLANE}")
    a(f"v_lshl_add_u32 v{vT1}, v{vT2}, 3, v{vT1}")
    a(f"s_mul_i32 s{sT0}, s{sE}, 51200")
    a(f"s_sub_u32 s{sT0}, {img + 51200}, s{sT0}")
    a(f"v_add_u32 v{vWM}, s{sT0}, v{vT1}")
    a(f"s_mul_i32 s59, s{sMT}, 2560")
    a(f"s_add_u32 s59, s59, {img + 20*5120}")
    a(f"s_lshl_b32 s{sT0}, s{sE}, 2")
    a(f"v_add_u32 v{vWF}, s{sT0}, v{vFL}")
    a(f"s_and_b32 s{sT2}, s{sOR}, 3")
    a(f"s_lshr_b32 s{sT0}, s{sMT}, 1")
    a(f"s_lshl1_add_u32 s{sT0}, s{sT2}, s{sT0}")
    a(f"s_lshl1_add_u32 s{sT0}, s{sT0}, s{sE}")
    a(f"s_mul_i32 s{sT0}, s{sT0}, 20480")
    a(f"s_and_b32 s{sT1}, s{sMT}, 1")
    a(f"s_lshl_b32 s{sT1}, s{sT1}, 10")
    a(f"s_add_u32 s{sT0}, s{sT0}, s{sT1}")
    a(f"s_mul_i32 s{sT1}, s{sGRP}, {OGRP}")
    a(f"s_add_u32 s{sT0}, s{sT0}, s{sT1}")
    a(f"s_add_u32 s{sT0}, s{sT0}, {UWS + 4096}")
    a(f"v_lshl_add_u32 v{vO4}, v{vLANE}, 4, s{sT0}")
    for q in range(1, 3):
        a(f"s_add_u32 s{sOP+2*q}, s{sLB}, {8192*q}")
        a(f"s_addc_u32 s{sOP+2*q+1}, s{sLB+1}, 0")
    a(f"s_mul_i32 s{sT0}, s{sGRP}, {XGRP}")
    a(f"s_lshl_b32 s{sT2}, s{sT2}, 8")
    a(f"s_add_u32 s{sT0}, s{sT0}, s{sT2}")
    a(f"s_add_u32 s{sT0}, s{sT0}, {XLW + XFLG}")
    a(f"v_lshl_add_u32 v{vPL}, v{vLANE}, 2, s{sT0}")
    a(f"s_mul_i32 s58, s{sMT}, 5120")
    a(f"s_add_u32 s58, s58, {red}")
    a(f"v_lshl_add_u32 v{vRD}, v{vLANE}, 4, s58")
    a(f"s_lshl_b32 s{sT0}, s{sMT}, 2")
    a(f"v_add_u32 v{vFM}, s{sT0}, v{vFL}")
    a(f"v_mul_u32_u24 v{vSTG}, 160, v{vN}")
    a(f"v_lshl_add_u32 v{vSTG}, v{vG}, 3, v{vSTG}")
tail_setup(IMG_B, RED_B)
a(f"v_mov_b32 v{vT0}, s{sFLO}")
a(f"v_mov_b32 v{vT1}, s{sTAG}")
a("s_mov_b64 exec, 1")
a("s_waitcnt vmcnt(0)")
dual(lambda f: a(f"global_store_dword v{vT0}, v{vT1}, {LBP}{f}"))
a("s_mov_b64 exec, -1")
a.label("L_tail")
trace_at(20)
a(f"s_lshl2_add_u32 s{sT0}, s{sOR}, s{sMT}")
a(f"s_mul_i32 s{sT0}, s{sT0}, {16*1280}")
a(f"s_mul_i32 s{sT1}, s{sOC}, 160")
a(f"s_add_u32 s{sT0}, s{sT0}, s{sT1}")
for i in range(3): t10(vOUT[i], 64 * i, f"s{sT0}", vT1)
loads = [f"global_load_dwordx4 {v(OF+4*c,4)}, v{vO4}, {LBP if c < 4 else 's[%d:%d]' % (sOP+2*(c//4), sOP+2*(c//4)+1)} offset:{2048*(c%4) - 4096} sc1" for c in range(10)]
reads, gate, work, users = [], [], [], []
fc = 0
for c in range(10):
    for T in range(5):
        b = WB + 4 * (fc % NB)
        g = users[fc - NB] if fc >= NB else -1
        for e in range(2):
            reads.append(f"ds_read_b64_tr_b16 {v(b+2*e,2)}, v{vWM} offset:{5120*c + 2560*e + 32*T}"); gate.append(g)
        txt = f"{MF} {v(ACCB+4*T,4)}, {v(b,4)}, {v(OF+4*c,4)}, {v(ACCB+4*T,4) if c else 0}"
        if T == 0: txt = f"s_waitcnt vmcnt({9 - c})\n" + txt
        users.append(len(work)); work.append((len(reads) - 1, txt)); fc += 1
lds_wait(F_WOL, 4, vaddr=vWF, sleep=1)
trace()
PRE = 2 * NB
for i in range(PRE):
    a(reads[i])
    if i >= 12 and i % 4 == 0: a("s_waitcnt lgkmcnt(8)")
a(f"s_mul_i32 exec_hi, s{sE}, 0xfffff")
a("s_mov_b32 exec_lo, 0xfffff")
a(f"s_mov_b32 s{sSPIN}, 0")
a.label("L_op")
a(f"global_load_dword v{vT0}, v{vPL}, {LBP} sc1")
a("s_waitcnt vmcnt(0)")
a(f"v_cmp_ne_u32 vcc, s{sTAG}, v{vT0}")
a("s_cbranch_vccz L_opd")
spin_tail("L_op", OPT["osleep"])
a.label("L_opd")
a("s_mov_b64 exec, -1")
for x in loads: a(x)
trace()
pp(7, 4)
a(f"s_lshl_b32 s{sT0}, s{sMT}, 6")
a(f"s_add_u32 s{sT0}, s{sT0}, {GOM}")
a(f"v_lshl_add_u32 v{vT1}, v{vN}, 2, s{sT0}")
lds_wait(F_GRD, 1)
a(f"ds_read2st64_b32 {v(vGAD,2)}, v{vT1} offset0:0 offset1:1")
a(f"s_cmp_lg_u32 s{sE}, 0")
a("s_cbranch_scc1 L_nogq")
a(f"v_add_u32 v{vT1}, s59, v{vSTG}")
for T in range(5): a(f"ds_read_b64 {v(ACCB+2*T,2)}, v{vT1} offset:{32*T}")
for i in range(10):
    if i % 2 == 0: a(f"s_waitcnt lgkmcnt({4 - i//2})")
    a(f"v_lshlrev_b32 v{GQ+2*i}, 16, v{ACCB+i}")
    a(f"v_and_b32 v{GQ+2*i+1}, 0xffff0000, v{ACCB+i}")
    a(f"v_mul_f32 v{GQ+2*i}, v{vGAD+1}, v{GQ+2*i}")
    a(f"v_mul_f32 v{GQ+2*i+1}, v{vGAD+1}, v{GQ+2*i+1}")
a.label("L_nogq")
a("s_waitcnt lgkmcnt(0)")
a(f"v_add_u32 v{vSTG}, s58, v{vSTG}")
lds_pipe(reads, work, gate, maxfly=14, pre=PRE, eager=True)
trace()
pp(8, 4)
a(f"s_cmp_lg_u32 s{sE}, 0")
a("s_cbranch_scc1 L_noy")
a(f"v_bfe_u32 v{vT1}, v{vLANE}, 2, 3")
a(f"v_and_b32 v{vT1}, 6, v{vT1}")
a(f"v_bfe_u32 v{vT2}, v{vLANE}, 1, 1")
a(f"s_lshl_b32 s{sT0}, s{sMT}, 1")
a(f"v_or_b32 v{vT2}, s{sT0}, v{vT2}")
a(f"v_xor_b32 v{vT1}, v{vT1}, v{vT2}")
a(f"v_lshlrev_b32 v{vT1}, 4, v{vT1}")
a(f"v_lshrrev_b32 v{vT2}, 2, v{vLANE}")
a(f"v_lshl_add_u32 v{vT1}, v{vT2}, 7, v{vT1}")
a(f"v_and_b32 v{vT2}, 1, v{vLANE}")
a(f"v_lshl_add_u32 v{vT1}, v{vT2}, 3, v{vT1}")
for r in range(20): a(f"v_mul_f32 v{ACCB+r}, v{vGAD}, v{ACCB+r}")
a(f"v_mov_b32 v{vGAD}, 1.0")
lds_wait(F_YLD, 2)
trace()
for T in range(5): a(f"ds_read_b64_tr_b16 {v(48+2*T,2)}, v{vT1} offset:{YT + 2048*T}")
for i in range(10):
    if i % 2 == 0: a(f"s_waitcnt lgkmcnt({4 - i//2})")
    a(f"v_lshlrev_b32 v58, 16, v{48+i}")
    a(f"v_and_b32 v59, 0xffff0000, v{48+i}")
    a(f"v_fmac_f32 v{ACCB+2*i}, v58, v{GQ+2*i}")
    a(f"v_fmac_f32 v{ACCB+2*i+1}, v59, v{GQ+2*i+1}")
a.label("L_noy")
QQ = 28
a(f"v_mov_b32 v{vT0}, 1")
a("s_mov_b64 exec, 1")
a(f"ds_add_rtn_u32 v{vT0}, v{vFM}, v{vT0} offset:{F_RED}")
a("s_mov_b64 exec, -1")
a(f"s_mov_b32 s{sSPIN}, 0")
a.label("L_fb")
a(f"ds_read_b32 v{vT1}, v{vFM} offset:{F_QRD}")
for T in range(5): a(f"ds_read_b128 {v(QQ+4*T,4)}, v{vRD} offset:{1024*T}")
a("s_waitcnt lgkmcnt(5)")
a(f"v_readfirstlane_b32 s{sT2}, v{vT0}")
a(f"v_readfirstlane_b32 s{sT0}, v{vT1}")
a(f"s_cmp_eq_u32 s{sT2}, 0")
a("s_cbranch_scc1 L_first")
a(f"s_cmp_lg_u32 s{sT0}, 0")
a("s_cbranch_scc1 L_fin")
a("s_waitcnt lgkmcnt(0)")
spin_tail("L_fb", 1)
a.label("L_fin")
trace_at(26)
for T in range(5):
    a(f"s_waitcnt lgkmcnt({4-T})")
    for r in range(4): a(f"v_fmac_f32 v{QQ+4*T+r}, v{vGAD}, v{ACCB+4*T+r}")
    pack(48 + 2 * T, QQ + 4 * T)
for T in range(5): a(f"ds_write_b64 v{vSTG}, {v(48+2*T,2)} offset:{32*T}")
for i in range(3): a(f"ds_read_b128 {v(72+4*i,4)}, v{vRD} offset:{1024*i}")
for i in range(3):
    a(f"s_waitcnt lgkmcnt({2-i})")
    if i == 2: a("s_mov_b64 exec, 0xffffffff")
    a(f"global_store_dwordx4 v{vOUT[i]}, {v(72+4*i,4)}, s[{sOUT}:{sOUT+1}]")
trace()
finish()
a.label("L_first")
for r in range(20): a(f"v_mul_f32 v{ACCB+r}, v{vGAD}, v{ACCB+r}")
lds_wait(F_EXR, 8)
for T in range(5): a(f"ds_write_b128 v{vRD}, {v(ACCB+4*T,4)} offset:{1024*T}")
lds_set(F_QRD, 1, vaddr=vFM)
trace_at(28)
finish()

a.label("L_awave")
if OPT["gsolo"]:
    a("s_waitcnt lgkmcnt(0)"); a("s_barrier"); finish()
SRD_H = 48
sA, sC0, sHB, sUB, sNST, sAIN, sBIN, sOWNR, sDV = 40, 41, 42, 43, 44, 46, 47, 52, 53
a(f"s_sub_u32 s{sA}, s{sWV}, 4")
if OPT["ktr"]: trace()
a(f"s_load_dword s{sTAG}, {WSP}, {EPOCH}")
a("s_setprio 2")
a(f"s_and_b32 s{sMT}, s{sA}, 3")
a(f"s_lshr_b32 s{sE}, s{sA}, 2")
a(f"s_sub_u32 s{sT0}, s{sI}, 20")
a(f"s_mul_i32 s{sT1}, s{sT0}, 43")
a(f"s_lshr_b32 s{sT1}, s{sT1}, 7")
a(f"s_mul_i32 s{sC0}, s{sT0}, 7")
a(f"s_sub_u32 s{sC0}, s{sC0}, s{sT1}")
a(f"s_mul_i32 s{sT1}, s{sT1}, 3")
a(f"s_sub_u32 s{sT1}, s{sT0}, s{sT1}")
a(f"s_cmp_eq_u32 s{sT1}, 2")
a(f"s_cselect_b32 s{sNCH}, 6, 7")
a(f"s_mul_i32 s{sT1}, s{sGRP}, 80")
a(f"s_add_u32 s{sC0}, s{sC0}, s{sT1}")
a(f"s_cmp_lt_u32 s{sA}, s{sNCH}")
a(f"s_cselect_b32 s{sOWNR}, 1, 0")
a(f"s_cselect_b32 s{sT2}, s{sA}, 0")
a(f"s_cselect_b32 s{sNST}, 7, s{sNCH}")
a(f"s_cselect_b32 s54, 0, {7*64}")
a(f"s_add_u32 s{sC0}, s{sC0}, s{sT2}")
a(f"s_mul_i32 s{sHB}, s{sT2}, {HCH}")
a(f"s_mul_i32 s{sUB}, s{sT2}, {ULCH}")
a(f"s_add_u32 s{sUB}, s{sUB}, {UL}")
a(f"s_lshl_b32 s55, s{sC0}, 12")
a(f"s_add_u32 s{SRD_H}, s{sSSM}, s55")
a(f"s_addc_u32 s{SRD_H+1}, s{sSSM+1}, 0")
a(f"s_and_b32 s{SRD_H+1}, s{SRD_H+1}, 0xffff")
a(f"s_mov_b32 s{SRD_H+2}, 4096")
a(f"s_mov_b32 s{SRD_H+3}, 0x00020000")
vL16, vKA, vVA, vUW, vUR, vUG, vEE, vEP = 8, 9, 11, 12, 13, 14, 148, 149
vUS, vUD, vHW, vYG, vYS, vCEL, vPBA, vPBF = 150, 151, 152, 153, 159, 160, 161, 162
AB, vBB = 154, 158
CACC, CA, CB0, CB1, AD, SEL = 16, 48, 80, 112, 144, 164
WK = 16
a(f"s_lshr_b32 s{sT0}, s{sC0}, 1")
a(f"s_lshl_b32 s{sT0}, s{sT0}, 2")
a(f"s_load_dword s{sDV}, s[{sDD}:{sDD+1}], s{sT0}")
a(f"v_lshlrev_b32 v{vL16}, 4, v{vLANE}")
a(f"v_lshl_add_u32 v{vT1}, v{vN}, 3, v{vG}")
a(f"v_lshlrev_b32 v{vT1}, 8, v{vT1}")
a(f"v_add_u32 v{vT1}, {KT}, v{vT1}")
a(f"s_lshl_b32 s{sT0}, s{sA}, 1")
a(f"v_xor_b32 v{vT2}, s{sT0}, v{vN}")
a(f"v_lshl_add_u32 v{vKA}, v{vT2}, 4, v{vT1}")
a(f"v_add_u32 v{vT2}, 15, v{vN}")
a(f"v_and_b32 v{vT2}, 15, v{vT2}")
a(f"v_xor_b32 v{vT2}, s{sT0}, v{vT2}")
a(f"v_lshl_add_u32 v{vKA+2}, v{vT2}, 4, v{vT1}")
a(f"v_xor_b32 v{vKA+1}, 16, v{vKA}")
a(f"v_xor_b32 v{vKA+3}, 16, v{vKA+2}")
a(f"s_lshl_b32 s{sT0}, s58, 16")
a(f"s_lshl_b32 s{sT1}, s{sRB}, 8")
a(f"s_add_u32 s{sT0}, s{sT0}, s{sT1}")
a(f"s_add_u32 s{sT0}, s{sT0}, {UWS}")
a(f"v_lshlrev_b32 v{vT1}, 12, v{vG}")
a(f"v_lshl_add_u32 v{vT1}, v{vN}, 4, v{vT1}")
a(f"v_add_u32 v{vUG}, s{sT0}, v{vT1}")
for q in range(1, 4):
    a(f"s_add_u32 s{58+2*q}, s{sWS}, {16384*q}") if q != 3 else a(f"s_add_u32 s66, s{sWS}, {16384*q}")
    a(f"s_addc_u32 s{59+2*q}, s{sWS+1}, 0") if q != 3 else a(f"s_addc_u32 s67, s{sWS+1}, 0")
UBASE = [WSP, "s[60:61]", "s[62:63]", "s[66:67]"]
a(f"s_lshl4_add_u32 s{sT0}, s58, s{sRB}")
a(f"s_lshl_b32 s{sT0}, s{sT0}, 7")
a(f"s_add_u32 s{sT0}, s{sT0}, {EU}")
a(f"v_add_u32 v{vT1}, v{vN}, v{vG}")
a(f"v_lshl_add_u32 v{vEE}, v{vT1}, 3, s{sT0}")
a(f"s_lshr_b32 s{sT0}, s{sC0}, 4")
a(f"s_lshl_b32 s{sT0}, s{sT0}, 11")
a(f"s_and_b32 s{sT1}, s{sC0}, 15")
a(f"s_lshl3_add_u32 s{sT0}, s{sT1}, s{sT0}")
a(f"s_add_u32 s{sT0}, s{sT0}, {EU}")
a(f"v_lshl_add_u32 v{vEP}, v{vN}, 7, s{sT0}")
SRD_U = 76
a(f"s_add_u32 s{sT0}, s55, {UWS}")
a(f"s_add_u32 s{SRD_U}, s{sWS}, s{sT0}")
a(f"s_addc_u32 s{SRD_U+1}, s{sWS+1}, 0")
a(f"s_and_b32 s{SRD_U+1}, s{SRD_U+1}, 0xffff")
a(f"s_mov_b32 s{SRD_U+2}, 4096")
a(f"s_mov_b32 s{SRD_U+3}, 0x00020000")
a(f"s_add_u32 s{sT0}, s{sHB}, {HC + 4080 - 3072}")
a(f"v_sub_u32 v{vHW}, s{sT0}, v{vL16}")
a(f"v_sub_u32 v{vT1}, 2031, v{vN}")
a(f"v_and_b32 v{vT2}, 1, v{vT1}")
a(f"v_lshrrev_b32 v{vT1}, 1, v{vT1}")
a(f"v_lshl_add_u32 v{vT1}, v{vG}, 2, v{vT1}")
a(f"v_lshlrev_b32 v{vT1}, 2, v{vT1}")
a(f"v_mul_u32_u24 v{vT2}, {HOO}, v{vT2}")
a(f"s_sub_u32 s{sT0}, s{sHB}, s54")
a(f"v_add3_u32 v{vT1}, v{vT1}, v{vT2}, s{sT0}")
for j in range(4): a(f"v_subrev_u32 v{AB+j}, {512*7 - 1024*j - HC}, v{vT1}")
a(f"v_lshlrev_b32 v{vT1}, 5, v{vN}")
a(f"v_lshl_add_u32 v{vT1}, v{vG}, 4, v{vT1}")
a(f"s_sub_u32 s{sT0}, s{sUB}, s54")
a(f"s_add_u32 s{sT0}, s{sT0}, 480")
a(f"v_add_u32 v{vBB}, s{sT0}, v{vT1}")
a(f"v_and_b32 v{vT1}, 1, v{vG}")
a(f"v_lshlrev_b32 v{vT1}, 9, v{vT1}")
a(f"v_lshl_add_u32 v{vT1}, v{vN}, 5, v{vT1}")
a(f"v_lshrrev_b32 v{vT2}, 1, v{vG}")
a(f"v_lshl_add_u32 v{vT1}, v{vT2}, 4, v{vT1}")
a(f"s_add_u32 s{sT0}, s55, {YWS}")
a(f"v_add_u32 v{vYG}, s{sT0}, v{vT1}")
a(f"v_and_b32 v{vT1}, 1, v{vN}")
a(f"v_lshl_add_u32 v{vT1}, v{vT1}, 2, v{vG}")
a(f"v_lshrrev_b32 v{vT2}, 2, v{vN}")
a(f"v_lshl_add_u32 v{vT1}, v{vT1}, 2, v{vT2}")
a(f"v_lshlrev_b32 v{vT1}, 2, v{vT1}")
a(f"v_add_u32 v{vYS}, {YS}, v{vT1}")
a(f"s_cmp_ge_u32 s{sI}, 26")
a(f"s_cselect_b32 s{sT0}, 8, 0")
a(f"s_lshl_b32 s{sT1}, s{sGRP}, 8")
a(f"s_add_u32 s{sT0}, s{sT0}, s{sT1}")
a(f"s_add_u32 s{sT0}, s{sT0}, {FB}")
a(f"v_and_b32 v{vT1}, 31, v{vLANE}")
a(f"v_lshl_add_u32 v{vCEL}, v{vT1}, 11, s{sT0}")
a(f"s_lshl_b32 s{sT0}, s{sT2}, 12")
a(f"s_add_u32 s{sT0}, s{sT0}, {PB}")
a(f"v_add_u32 v{vPBA}, s{sT0}, v{vL16}")
a(f"s_lshl_b32 s{sT0}, s{sT2}, 2")
a(f"v_add_u32 v{vPBF}, s{sT0}, v{vFL}")
a(f"v_and_b32 v{vT1}, 1, v{vN}")
a(f"v_lshlrev_b32 v{vT1}, 4, v{vT1}")
a(f"v_mov_b32 v{vT2}, 0x3f80")
a(f"v_lshlrev_b32 v{vT2}, v{vT1}, v{vT2}")
a(f"v_lshrrev_b32 v{vT3}, 1, v{vN}")
a(f"v_lshlrev_b32 v{vT0}, 1, v{vG}")
a(f"v_sub_u32 v{vT0}, v{vT3}, v{vT0}")
for j in range(2):
    a(f"v_cmp_eq_u32 vcc, {j}, v{vT0}")
    a(f"v_cndmask_b32 v{SEL+j}, 0, v{vT2}, vcc")
a("s_waitcnt lgkmcnt(0)")
make_tag()
a(f"s_lshl_b32 s{sT0}, s{sC0}, 4")
a(f"s_lshr_b32 s{sDV}, s{sDV}, s{sT0}")
a(f"s_and_b32 s{sDV}, s{sDV}, 0xffff")
a(f"v_lshlrev_b32 v{vT2}, v{vT1}, s{sDV}")
a(f"v_lshlrev_b32 v{vT0}, 2, v{vG}")
a(f"v_sub_u32 v{vT0}, v{vT3}, v{vT0}")
for j in range(4):
    a(f"v_cmp_eq_u32 vcc, {j-8}, v{vT0}")
    a(f"v_cndmask_b32 v{AD+j}, 0, v{vT2}, vcc")
SV = 40
a(f"v_bfe_u32 v{vT1}, v{vN}, 2, 1")
a(f"v_lshlrev_b32 v{vT1}, 4, v{vT1}")
a(f"v_and_b32 v{vT2}, 3, v{vN}")
a(f"v_lshrrev_b32 v{vT3}, 3, v{vN}")
a(f"v_mov_b32 v{vT0}, 0x3f80")
a(f"v_lshlrev_b32 v{vT0}, v{vT1}, v{vT0}")
a(f"v_cmp_eq_u32 vcc, v{vT2}, v{vG}")
a(f"v_cndmask_b32 v{vT0}, 0, v{vT0}, vcc")
a(f"v_cmp_eq_u32 vcc, 0, v{vT3}")
a(f"v_cndmask_b32 v{SV}, 0, v{vT0}, vcc")
a(f"v_cndmask_b32 v{SV+1}, v{vT0}, 0, vcc")
a(f"v_or_b32 v{vT0}, 2, v{vT3}")
a(f"v_cmp_ge_u32 vcc, v{vT2}, v{vG}")
a(f"v_cndmask_b32 v{vT3}, v{vT3}, v{vT0}, vcc")
if OPT["ktr"]: trace()
a("s_waitcnt vmcnt(0)")
if OPT["ktr"]:
    a("s_waitcnt lgkmcnt(0)"); trace()
for q in range(4): a(f"v_lshlrev_b32 v{TAP+q}, v{vT1}, v{TAP+q}")
for r in range(4):
    a(f"v_cmp_eq_u32 vcc, {r}, v{vT3}")
    for q in range(4):
        a(f"v_cndmask_b32 v{WK+6*q+r}, 0, v{TAP+q}, vcc")
        if r < 2: a(f"v_cndmask_b32 v{WK+6*q+4+r}, 0, v{TAP+q}, vcc")
HN, HM, HE, HOD = 128, 112, 80, 96
def h_loads():
    lb = a.newlabel("Lnh")
    a(f"s_cmp_eq_u32 s{sOWNR}, 0")
    a(f"s_cbranch_scc1 {lb}")
    for c in range(4): a(f"buffer_load_dwordx4 {v(HN+4*c,4)}, v{vL16}, s[{SRD_H}:{SRD_H+3}], 0 offen offset:{1024*c}")
    a.label(lb)
if OPT["hat"] == 0:
    a(f"s_sleep {OPT['hsl']}")
    h_loads()
trace()
a("s_barrier")
trace()
a(f"s_cmp_ge_u32 s{sCG}, 5")
a("s_cbranch_scc1 L_nokv")
KD = [48, 68]
KS = [88, 48]; VF = 104; UO = [120, 68]; CS = 76
for o in range(2):
    a(f"ds_read_b128 {v(KD[o],4)}, v{vKA+2+o}")
    a(f"ds_read_b128 {v(KD[o]+4,4)}, v{vKA+o} offset:1024")
    a(f"ds_read_b128 {v(KD[o]+8,4)}, v{vKA+o} offset:2048")
    for e in range(2): a(f"ds_read_b128 {v(KD[o]+12+4*e,4)}, v{vKA+o} offset:{VT - KT + 1024*e}")
if OPT["hat"] == 1: h_loads()
def kv_k(o):
    d = KD[o]
    a(f"s_waitcnt lgkmcnt({8 - 5*o})")
    for r in range(2): a(f"v_swap_b32 v{d+2+r}, v{d+4+r}")
    for hi in range(2): a(f"{MF} {v(KS[o]+8*hi,4)}, {v(WK+6*(2*o+hi),4)}, {v(d+4*hi,4)}, 0")
    a(f"s_waitcnt lgkmcnt({7 - 5*o})")
    for hi in range(2): a(f"v_mov_b64 {v(d+4*hi,2)}, {v(d+8+2*hi,2)}")
    for hi in range(2): a(f"{MF} {v(KS[o]+8*hi+4,4)}, {v(WK+6*(2*o+hi)+2,4)}, {v(d+4*hi,4)}, 0")
def kv_v(o):
    a(f"s_waitcnt lgkmcnt({5 - 5*o})")
    for hi in range(2):
        for e in range(2): a(f"{MH} {v(VF+8*hi+4*e,4)}, {v(SV,2)}, {v(KD[o]+12+4*e+2*hi,2)}, 0")
def kv_mul(o):
    for r in range(0, 16, 2): a(f"v_pk_mul_f32 {v(KS[o]+r,2)}, {v(KS[o]+r,2)}, {v(VF+r,2)}")
def kv_out(o):
    for hi in range(2):
        u = UO[o] + 4 * hi
        for r in range(4): a(f"v_cvt_pk_bf16_f32 v{u+r}, v{KS[o]+8*hi+2*r}, v{KS[o]+8*hi+2*r+1}")
        a(f"global_store_dwordx4 v{vUG}, {v(u,4)}, {UBASE[2*o+hi]} sc1")
    for hi in range(2):
        u = UO[o] + 4 * hi
        a(f"v_add_u32 v{CS+2*o+hi}, v{u}, v{u+1}")
        a(f"v_add3_u32 v{CS+2*o+hi}, v{CS+2*o+hi}, v{u+2}, v{u+3}")
kv_k(0); kv_v(0); kv_k(1); kv_mul(0); kv_v(1); kv_out(0); kv_mul(1); kv_out(1)
for r in range(2): a(f"v_add_u32_dpp v{CS+4+r}, v{CS+r}, v{CS+r} row_ror:8 row_mask:0xf bank_mask:0xf")
for r in range(2): a(f"v_add_u32_dpp v{CS+4+r}, v{CS+2+r}, v{CS+2+r} row_ror:8 row_mask:0xf bank_mask:0xc")
a(f"v_mov_b32 v{CS}, s{sTAG}")
a(f"v_add_u32_dpp v{CS+1}, v{CS+4}, v{CS+4} row_half_mirror row_mask:0xf bank_mask:0xf")
a(f"v_add_u32_dpp v{CS+1}, v{CS+5}, v{CS+5} row_half_mirror row_mask:0xf bank_mask:0xa")
for qp in ("[1,0,3,2]", "[2,3,0,1]"): a(f"v_add_u32_dpp v{CS+1}, v{CS+1}, v{CS+1} quad_perm:{qp} row_mask:0xf bank_mask:0xf")
a("s_mov_b32 exec_lo, 0x11111111"); a("s_mov_b32 exec_hi, 0x11111111")
a(f"global_store_dwordx2 v{vEE}, {v(CS,2)}, {WSP} sc1")
a("s_mov_b64 exec, -1")
trace()
pp(10, 8)
if OPT["hat"] == 2:
    h_loads(); a("s_waitcnt vmcnt(0)")
else: a("s_waitcnt vmcnt(5)")
a("s_branch L_kvd")
a.label("L_nokv")
if OPT["hat"]:
    a("s_sleep 24")
    h_loads()
a("s_waitcnt vmcnt(0)")
a.label("L_kvd")
def cb(st, z): return (CB1 if st else CB0) + 4 * z
def rdA(m):
    j, b = (7 - m) // 2, (7 - m) % 2
    return [f"ds_read2_b32 {v(CA+4*m+2*e,2)}, v{AB+j} offset0:{128*b+2*e} offset1:{128*b+2*e+1}" for e in range(2)]
def rdB(st, z): return f"ds_read_b128 {v(cb(st,z),4)}, v{vBB} offset:{512*z}"
def PRE_A():
    n = 0
    for m in range(8):
        for x in rdA(m):
            a(x); n += 1
            if n == 12: a("s_waitcnt lgkmcnt(6)")
a(f"s_cmp_lg_u32 s{sOWNR}, 0")
a("s_cbranch_scc1 L_owner")
a("s_waitcnt vmcnt(0)")
lds_add(F_UDN)
a(f"s_cmp_lg_u32 s{sA}, 7")
a("s_cbranch_scc1 L_cdone")
lds_wait(F_HRD, 1)
PRE_A()
a("s_setprio 3")
a(f"v_mov_b32 v{vT1}, 1")
lds_wait(F_UDN, 8)
for z in range(8): a(rdB(0, z))
a("s_waitcnt lgkmcnt(0)")
trace_at(12)
a(f"s_setprio {OPT['hprio']}")
a("s_branch L_hloop")
a.label("L_owner")
a(f"s_mov_b32 s{sT2}, 0xffff")
for c in range(3): a(f"v_readlane_b32 s{60+c}, v{HN+4*c+3}, 63")
for c in range(4): a(f"v_mov_b32_dpp v{HM+c}, v{HN+4*c+3} wave_shr:1 row_mask:0xf bank_mask:0xf")
a(f"v_writelane_b32 v{HM}, 0, 0")
for c in range(3): a(f"v_writelane_b32 v{HM+1+c}, s{60+c}, 0")
for c in range(4):
    for d in range(4):
        src = HN + 4 * c + 3 - d
        a(f"v_alignbit_b32 v{HE+4*c+d}, v{src}, v{src}, 16")
        lower = (HN + 4 * c + 2 - d) if d < 3 else (HM + c)
        a(f"v_bfi_b32 v{HOD+4*c+d}, s{sT2}, v{src}, v{lower}")
    a(f"ds_write_b128 v{vHW}, {v(HE+4*c,4)} offset:{1024*(3-c)}")
    a(f"ds_write_b128 v{vHW}, {v(HOD+4*c,4)} offset:{1024*(3-c)+HOO}")
a(f"v_mov_b32 v44, 0"); a(f"v_mov_b32 v45, 0")
a(f"v_lshl_add_u32 v{vT1}, v{vN}, 2, s{sHB}")
a(f"ds_write_b32 v{vT1}, v44 offset:{HC+4096}")
a(f"ds_write_b32 v{vT1}, v44 offset:{HC+4096+HOO}")
lds_set(F_HRD, 1, vaddr=vPBF)
a(f"v_lshl_add_u32 v{vT1}, v{vLANE}, 3, s{sUB}")
a(f"ds_write_b64 v{vT1}, v[44:45]")
PRE_A()
trace()
a("s_mov_b64 exec, 0xffff")
a(f"s_mov_b32 s{sSPIN}, 0")
a.label("L_ep")
a(f"global_atomic_or_x2 v[46:47], v{vEP}, v[44:45], {WSP} sc0 sc1")
a("s_waitcnt vmcnt(0)")
a(f"v_cmp_ne_u32 vcc, s{sTAG}, v46")
a("s_cbranch_vccz L_epd")
a("s_mov_b64 exec, vcc")
spin_tail("L_ep")
a.label("L_epd")
a("s_mov_b64 exec, -1")
a("s_setprio 3")
trace()
a(f"s_mov_b32 s{sSPIN}, 0")
a(f"s_add_u32 m0, s{sUB}, 512")
def u_loads():
    for c in range(4): a(f"buffer_load_dwordx4 v{vL16}, s[{SRD_U}:{SRD_U+3}], 0 offen offset:{1024*c} sc1 lds")
u_loads()
row_allreduce(47)
a("v_readfirstlane_b32 s60, v47")
a.label("L_uretry")
a("s_waitcnt vmcnt(0) lgkmcnt(0)")
if OPT["ktr"]: trace()
for z in range(7, -1, -1): a(rdB(0, z))
for t in range(7, -1, -1):
    a(f"s_waitcnt lgkmcnt({t})")
    a(f"{MF} {v(CACC+4*t,4)}, {v(AD,4)}, {v(cb(0,t),4)}, 0")
    b = cb(0, t)
    a(f"v_add3_u32 v9, v9, v{b}, v{b+1}" if t < 7 else f"v_add_u32 v9, v{b}, v{b+1}")
    a(f"v_add3_u32 v9, v9, v{b+2}, v{b+3}")
row_allreduce(9)
a(f"v_readlane_b32 s{sT0}, v9, 32")
a(f"v_readlane_b32 s{sT1}, v9, 48")
a(f"v_mov_b32 v{vT0}, 1")
a(f"s_add_u32 s{sT0}, s{sT0}, s{sT1}")
a(f"s_cmp_eq_u32 s{sT0}, s60")
a("s_cbranch_scc1 L_uok")
u_loads()
spin_tail("L_uretry")
a.label("L_uok")
a("s_mov_b64 exec, 1")
a(f"ds_add_u32 v{vFL}, v{vT0} offset:{F_UDN}")
a("s_mov_b64 exec, -1")
trace_at(12)
pp(5, 8)
PR0 = OPT["pr0"]
XSET = [(m, t) for t in range(2 * PR0) for m in range(t + 1)] + [(7, 7), (6, 7), (6, 6), (5, 7), (5, 6), (5, 5)][:OPT["xhi"]]
def conv_loop(helper):
    P = "L_h" if helper else "L_c"
    seq = []
    def dump(pr):
        b = 8 + 4 * (pr & 1)
        txt = [f"v_cvt_pk_bf16_f32 v{b+r}, v{CACC+8*pr+2*r}, v{CACC+8*pr+2*r+1}" for r in range(4)]
        return [("v", x) for x in txt] + [("r", f"ds_write_b128 v{vPBA}, {v(b,4)} offset:{1024*pr}", ("W", pr))]
    for st in range(2):
        seq.append(("adv", st))
        pend = [("r", rdB(1 - st, z), ("B", z, 1 - st)) for z in range(7, -1, -1)]
        side = []
        for m in range(8):
            for k_, t in enumerate(range(7, m - 1, -1)):
                if helper and (m, t) in XSET: continue
                c = "0" if helper and m == 0 else v(CACC+4*t, 4)
                seq.append(("m", f"{MF} {v(CACC+4*t,4)}, {v(CA+4*m,4)}, {v(cb(st,t-m),4)}, {c}", [("A", m, st), ("B", t - m, st)]))
                if pend and k_ % 2 == 1: seq.append(pend.pop(0))
                if side and k_ >= 2: seq += side[:2]; side = side[2:]
            seq += side; side = []
            if not helper or any((m, t) not in XSET for t in range(m, 8)): pend = [("r", x, ("A", m, 1 - st)) for x in rdA(m)] + pend
            if m >= 5:
                while pend: seq.append(pend.pop(0))
            if helper and m in (1, 3) and m // 2 >= PR0: side = dump(m // 2)
        assert not pend
        if helper:
            seq += dump(2) + dump(3)
            seq.append(("r", f"ds_write_b32 v{vPBF}, v{vT1} offset:{F_PB}", ("F",)))
            seq += [("v", f"v_add_u32 v{vPBA}, 4096, v{vPBA}"), ("v", f"v_add_u32 v{vPBF}, 4, v{vPBF}")]
        seq.append(("chk", st))
    n = len(seq)
    a.label(f"{P}loop")
    out_cnt = 99
    for i, it in enumerate(seq):
        if it[0] == "v": a(it[1]); continue
        if it[0] == "adv":
            if it[1] == 0 and OPT["cprio"] and not helper:
                lb = a.newlabel("Lcp")
                for k, th in OPT_CP:
                    a(f"s_setprio {k}")
                    a(f"s_cmp_gt_u32 s{sNST}, {th}")
                    a(f"s_cbranch_scc1 {lb}")
                a("s_setprio 0")
                a.label(lb)
            for j in range(4): a(f"v_add_u32 v{AB+j}, {HCH}, v{AB+j}" if helper else f"v_subrev_u32 v{AB+j}, 64, v{AB+j}")
            a(f"v_add_u32 v{vBB}, {ULCH}, v{vBB}" if helper else f"v_subrev_u32 v{vBB}, 64, v{vBB}")
            continue
        if it[0] == "chk":
            a(f"s_sub_u32 s{sNST}, s{sNST}, 1")
            if it[1] == 1 and not helper:
                a(f"s_cmp_lg_u32 s{sNST}, {OPT['mat']}")
                a("s_cbranch_scc1 L_cloop")
                lds_wait(F_PB, 1, vaddr=vPBF)
                MT = [8, 12, 144, 148]
                for q in range(PR0, 4): a(f"ds_read_b128 {v(MT[q],4)}, v{vPBA} offset:{1024*q}")
                for t in range(2 * PR0, 8):
                    if t % 2 == 0: a(f"s_waitcnt lgkmcnt({3 - t//2})")
                    a(f"{MH} {v(CACC+4*t,4)}, {v(SEL,2)}, {v(MT[t//2]+2*(t&1),2)}, {v(CACC+4*t,4)}")
                lds_add(F_MRG)
                a("s_branch L_cloop")
            else:
                a(f"s_cmp_eq_u32 s{sNST}, 0")
                a(f"s_cbranch_scc1 {P}exit" if it[1] == 0 else f"s_cbranch_scc0 {P}loop")
            continue
        if it[0] == "r":
            if out_cnt >= 14:
                a("s_waitcnt lgkmcnt(12)"); out_cnt = 12
            a(it[1]); out_cnt += 1
            continue
        best = None; cnt = 0
        for back in range(1, n + 1):
            p = seq[(i - back) % n]
            if p[0] == "r":
                if p[2] in it[2]:
                    best = cnt; break
                cnt += 1
        assert best is not None
        if best < out_cnt:
            w = min(best, 15)
            a(f"s_waitcnt lgkmcnt({w})"); out_cnt = w
        a(it[1])
conv_loop(False)
a.label("L_cexit")
trace_at(13)
a("s_setprio 3")
a("s_waitcnt lgkmcnt(0)")
for m, t in XSET: a(f"{MF} {v(CACC+4*t,4)}, {v(CA+4*m,4)}, {v(cb(1,t-m),4)}, {v(CACC+4*t,4)}")
for pr in (1, 2, 0, 3):
    b = CB0 + 4 * pr
    pack(b, CACC + 8 * pr)
    pack(b + 2, CACC + 8 * pr + 4)
    a(f"v_permlane16_swap_b32 v{b}, v{b+2}")
    a(f"v_permlane16_swap_b32 v{b+1}, v{b+3}")
    a(f"global_store_dwordx4 v{vYG}, {v(b,4)}, {WSP} offset:{1024*pr} sc1")
TS = 96
for pr in range(4): a(f"v_add_u32 v{TS+pr}, v{CB0+4*pr}, v{CB0+4*pr+1}")
for pr in range(4): a(f"v_add3_u32 v{TS+pr}, v{TS+pr}, v{CB0+4*pr+2}, v{CB0+4*pr+3}")
a(f"v_permlane32_swap_b32 v{TS}, v{TS+1}")
a(f"v_permlane32_swap_b32 v{TS+2}, v{TS+3}")
a(f"v_add_u32 v{TS}, v{TS}, v{TS+1}")
a(f"v_add_u32 v{TS+2}, v{TS+2}, v{TS+3}")
for qp in ("[1,0,3,2]", "[2,3,0,1]"):
    for r in (TS, TS + 2): a(f"v_add_u32_dpp v{r}, v{r}, v{r} quad_perm:{qp} row_mask:0xf bank_mask:0xf")
a("s_mov_b32 exec_lo, 0x22222222"); a("s_mov_b32 exec_hi, 0x22222222")
a(f"v_mov_b32 v{TS}, v{TS+2}")
a("s_mov_b32 exec_lo, 0x33333333"); a("s_mov_b32 exec_hi, 0x33333333")
a(f"ds_add_u32 v{vYS}, v{TS}")
a(f"v_mov_b32 v{vT0}, 1")
a("s_mov_b64 exec, 1")
a(f"ds_add_u32 v{vFL}, v{vT0} offset:{F_CVD}")
a(f"ds_add_rtn_u32 v{vT0}, v{vFL}, v{vT0} offset:{F_YST}")
a("s_mov_b64 exec, -1")
a(f"v_lshlrev_b32 v{vT1}, 2, v{vLANE}")
a(f"v_add_u32 v{vT1}, {YS}, v{vT1}")
cRET, cVAL = 28, 30
a(f"ds_read_b32 v{cVAL}, v{vT1}")
a(f"v_mov_b32 v{cVAL+1}, 0x100")
a("s_waitcnt lgkmcnt(0)")
a(f"v_readfirstlane_b32 s{sT2}, v{vT0}")
a(f"s_add_u32 s{sT2}, s{sT2}, 1")
a(f"s_cmp_lg_u32 s{sT2}, s{sNCH}")
a("s_cbranch_scc1 L_ynf")
a("s_mov_b64 exec, 0xffffffff")
a(f"s_mov_b32 s{sSPIN}, 0")
a(f"s_and_b32 s60, s{sTAG}, 0xffffff00")
a.label("L_ca")
a(f"global_atomic_add_x2 {v(cRET,2)}, v{vCEL}, {v(cVAL,2)}, {WSP} sc0 sc1")
a("s_waitcnt vmcnt(0)")
a(f"v_subrev_u32 v{cRET}, s60, v{cRET+1}")
a(f"v_cmp_le_u32 vcc, 0x600, v{cRET}")
a("s_cbranch_vccz L_cad")
a("s_mov_b64 exec, vcc")
spin_tail("L_ca", 8)
a.label("L_cad")
a("s_mov_b64 exec, -1")
a.label("L_ynf")
trace_at(14)
pp(6, 8)
a("s_branch L_cjoin")
conv_loop(True)
a.label("L_hexit")
trace_at(13)
a.label("L_cdone")
a("s_waitcnt lgkmcnt(0)")
lds_add(F_CVD)
a("s_setprio 0")
lds_wait(F_CVD, 4, sleep=6)
a.label("L_cjoin")
a("s_setprio 2")
lds_wait(F_MODE, 1)
a(f"s_mov_b32 s{sMODE}, s{sT3}")
set_mode()
tail_setup(IMG_A, RED_A)
a("s_branch L_tail")
if STAMPS_ON:
    a.label("L_finish")
    a("s_mov_b64 exec, -1")
    a("s_waitcnt lgkmcnt(0)")
    a("s_mov_b32 m0, s95")
    a(f"v_writelane_b32 v{vTR}, s70, m0")
    a("s_memtime s[76:77]")
    a("s_memrealtime s[78:79]")
    a(f"s_mul_i32 s{sT0}, s2, {NW}")
    a(f"s_add_u32 s{sT0}, s{sT0}, s{sWV}")
    a(f"s_lshl_b32 s{sT1}, s{sT0}, 8")
    a(f"s_add_u32 s{sT1}, s{sT1}, {TRACE}")
    a(f"v_lshl_add_u32 v{vT0}, v{vLANE}, 2, s{sT1}")
    a(f"global_store_dword v{vT0}, v{vTR}, {WSP}")
    a(f"s_lshl_b32 s{sT1}, s{sT0}, 7")
    a(f"s_add_u32 s{sT1}, s{sT1}, {STAMPS}")
    a("s_mov_b64 exec, 1")
    a(f"v_mov_b32 v{vT0}, s{sT1}")
    a("s_waitcnt lgkmcnt(0)")
    for j in range(8): a(f"v_mov_b32 v{8+j}, s{72+j}")
    a(f"global_store_dwordx4 v{vT0}, v[8:11], {WSP}")
    a(f"global_store_dwordx4 v{vT0}, v[12:15], {WSP} offset:16")
a.label("L_end")
a("s_endpgm")
a.label("L_codeend")

lines, nn = hazard.run(a.lines)
hdr = open("/code/" + NAME + ".s.ref").read().split("; Override launch geometry")[0]
sys.stdout.write(hdr + header([f"@launch grid=(256,1,1) block=({64*NW},1,1) lds={LDS_BYTES}"]) + kernel_begin(KNAME) + "\n".join(lines) + "\n"
                 + kernel_desc(KNAME, NVGPR, 102, NVGPR).replace(".end_amdhsa_kernel\n.text\n", ".end_amdhsa_kernel\n"))
sys.stderr.write(f"instructions: {len(lines)}, nop states inserted: {nn}\n")
```

```python
import sys, math, struct
from asmlib import *
import hazard

STAMPS_ON = "stamps" in sys.argv
OPT = dict(rt=1, forceg=0, phi=2, plo=1, lastp=2, rd2=6, fpos=8, wodepth=8, bdbg=0, hprio=3, cprio=1, mat=1, pr0=1, xhi=4, pfl=7, afirst=0, gsolo=0,
           rg=5, rc=4, bwd=-1, lrun=2, wo3=0, pa0=1, pb0=2, pa1=2, pb1=1, bk=1, r0=0, nfirst=2, psl=0, lprio=3, bpos=1, csleep=2, pboth=0, rpg=2, fback=4, ppos=2, ltr=1, b1=4, tlb=1, wopace=0, ysleep=1, osleep=0, hat=0, hsl=1, ktr=0, cenw=30, fwait=1, gprio=1)
for x in sys.argv[1:]:
    if "=" in x:
        k, val = x.split("="); OPT[k] = int(val)
OPT_CP = {1: [(2, 4), (1, 2)], 2: [(2, 6), (1, 2)], 3: [(2, 6), (1, 4)], 4: [(1, 2)]}.get(OPT["cprio"])
KNAME = NAME + "_kernel"
NW = 12
EPOCH = 0; FSUM = 0x1000; GWS = 0x4000; FB = 0x10000; EU = 0x40000
UWS = 0x100000; YWS = 0x400000; XLW = 0x700000; STAMPS = 0xA00000; TRACE = 0xB00000
GOFF = 0xF00000
OGRP = 327680; XGRP = 0x40000; XFLG = 0x30000
NSLOT = 3; SLOT = 43008; WPART = 18432; WHALF = 12288
EX = 129024; EXT = 27 * 512; EXB = EX + 2 * EXT
YT = 0; IMG_B = 16384; IMG_A = 48128; RED_B = EX; RED_A = 10240
HC = 0; HCH = 8320; HOO = 4160
UL = 7 * HCH; ULCH = 4608; PB = UL + 7 * ULCH
KT = UL + 7 * ULCH; VT = KT + 132 * 256
FL = EXB + 4096; GOM = FL + 512; YS = GOM + 512; GW = YS + 256
LDS_BYTES = 163840
assert VT + 128 * 256 <= FL and GW + 1280 <= LDS_BYTES and PB <= IMG_A + 9 * 5120 and PB + 7 * 4096 <= IMG_A + 14 * 5120
assert IMG_A + 22 * 5120 <= FL and IMG_B + 22 * 5120 <= EX and IMG_B + 6 * 5120 >= SLOT and IMG_B + 13 * 5120 <= 2 * SLOT
F_LA = 0; F_PROG = 96; F_PQ = 128; F_PV = 160; F_MODE = 192; F_EXR = 196; F_WOL = 200; F_GRD = 208; F_YLD = 212
F_RED = 216; F_QRD = 232; F_KV = 248; F_MRG = 264; F_HRD = 312; F_CVD = F_EXR; F_YST = 276; F_UDN = 280; F_PB = 284
PB0 = FL + F_LA
NVGPR = 168
SPIN_MAX = 1 << OPT.get("smax", 20)

def seg_tables():
    J = []; INFO = []
    for cgp in range(5):
        heads = {}
        for u in range(16): heads.setdefault((16 * cgp + u) // 5, []).append(u)
        segs = [heads[h] for h in sorted(heads)]
        assert len(segs) == 4
        tiles = [None] * 4; rem = [None] * 4
        free = {t: set(range(4)) - {u & 3 for u in segs[t]} for t in range(4) if len(segs[t]) < 4}
        for t in range(4):
            if len(segs[t]) < 5: tiles[t] = list(segs[t])
        for t in range(4):
            if len(segs[t]) == 5:
                res = segs[t][0] & 3
                ts = [q for q in free if res in free[q]]
                assert len(ts) == 1
                q = ts[0]; free[q].discard(res)
                r = segs[t][0] if q < t else segs[t][4]
                tiles[t] = [u for u in segs[t] if u != r]; tiles[q].append(r); rem[t] = (q, res)
        jw = 0; iw = 0
        for t in range(4):
            assert sorted(u & 3 for u in tiles[t]) == [0, 1, 2, 3]
            for u in tiles[t]: jw |= (u >> 2) << (8 * t + 2 * (u & 3))
            own = sum(1 << (u & 3) for u in tiles[t] if u in segs[t])
            late = len(segs[t]) < 5
            assert (not late) or t in (0, 3)
            b = own | (0 if late else (rem[t][1] << 4) | ((rem[t][0] == 3) << 6)) | (late << 7)
            iw |= b << (8 * t)
        J.append(jw); INFO.append(iw)
    return J, INFO
JT, INFO = seg_tables()

a = Asm()
sX, sK, sV, sSH, sSSM, sDD, sWQ, sWO, sGW, sOUT, sDBG, sWS = 4, 6, 8, 10, 12, 14, 18, 20, 22, 24, 26, 28
sGRP, sI, sWV, sTAG, sROLE, sOR, sOC, sRB, sCG, sXM = 30, 31, 32, 33, 34, 35, 36, 37, 38, 39
sLB = 16
sMODE = 93
sT0, sT1, sT2, sT3, sSPIN = 96, 97, 98, 99, 100
vLANE, vN, vG, vFL, vT0, vT1, vT2, vT3 = 0, 1, 2, 3, 4, 5, 6, 7
vTR = 167

def v(i, n=1): return f"v{i}" if n == 1 else f"v[{i}:{i+n-1}]"
def f2u(x): return struct.unpack("<I", struct.pack("<f", x))[0]
MF = "v_mfma_f32_16x16x32_bf16"
MH = "v_mfma_f32_16x16x16_bf16"
WSP = f"s[{sWS}:{sWS+1}]"; LBP = f"s[{sLB}:{sLB+1}]"

def trace():
    if not STAMPS_ON: return
    a("s_mov_b32 s69, m0")
    a("s_mov_b32 m0, s95")
    a(f"v_writelane_b32 v{vTR}, s70, m0")
    a("s_mov_b32 m0, s69")
    a("s_mov_b32 s95, s94")
    a("s_add_u32 s94, s94, 1")
    a("s_memrealtime s[70:71]" if OPT["rt"] else "s_memtime s[70:71]")
def trace_at(i):
    if not STAMPS_ON: return
    a(f"s_mov_b32 s94, {i}")
    trace()
def finish():
    a("s_branch L_finish" if STAMPS_ON else "s_endpgm")
def spin_tail(l, sleep=0):
    if sleep: a(f"s_sleep {sleep}")
    a(f"s_add_u32 s{sSPIN}, s{sSPIN}, 1")
    a(f"s_cmp_lt_u32 s{sSPIN}, {SPIN_MAX}")
    a(f"s_cbranch_scc1 {l}")
def lds_wait(off, val, vaddr=vFL, vt=vT0, sleep=0):
    l = a.newlabel("Lw"); d = a.newlabel("Lwd")
    a(f"s_mov_b32 s{sSPIN}, 0")
    a.label(l)
    a(f"ds_read_b32 v{vt}, v{vaddr} offset:{off}")
    a("s_waitcnt lgkmcnt(0)")
    a(f"v_readfirstlane_b32 s{sT3}, v{vt}")
    a(f"s_cmp_ge_u32 s{sT3}, {val}")
    a(f"s_cbranch_scc1 {d}")
    spin_tail(l, sleep)
    a.label(d)
def prog_wait(vaddr, sval, vt=vT0):
    l = a.newlabel("Lg"); d = a.newlabel("Lgd")
    a(f"s_mov_b32 s{sSPIN}, 0")
    a.label(l)
    a(f"ds_read_b32 v{vt}, v{vaddr}")
    a("s_waitcnt lgkmcnt(0)")
    a(f"v_cmp_gt_i32 vcc, {sval}, v{vt}")
    a(f"s_cbranch_vccz {d}")
    spin_tail(l, OPT["psl"])
    a.label(d)
def mask_wait(vaddr, smask, vt=vT0, sleep=0):
    l = a.newlabel("Lm"); d = a.newlabel("Lmd")
    a(f"s_mov_b32 s{sSPIN}, 0")
    a.label(l)
    a(f"ds_read_b32 v{vt}, v{vaddr}")
    a("s_waitcnt lgkmcnt(0)")
    a(f"v_cmp_eq_u32 vcc, 0, v{vt}")
    a(f"s_and_b32 s{sT3}, vcc_lo, s{smask}")
    a(f"s_cbranch_scc0 {d}")
    spin_tail(l, sleep)
    a.label(d)
def lds_add(off, vaddr=vFL, vt=vT0, val=1):
    a(f"v_mov_b32 v{vt}, {val}\ns_mov_b64 exec, 1\nds_add_u32 v{vaddr}, v{vt} offset:{off}\ns_mov_b64 exec, -1")
def lds_set(off, val, vaddr=vFL, vt=vT0):
    a(f"v_mov_b32 v{vt}, {val}")
    a(f"ds_write_b32 v{vaddr}, v{vt} offset:{off}")
def t10(vd, qbase, sadd, vt):
    a(f"v_add_u32 v{vt}, {qbase}, v{vLANE}")
    a(f"v_mul_u32_u24 v{vd}, 6554, v{vt}")
    a(f"v_lshrrev_b32 v{vd}, 16, v{vd}")
    a(f"v_mul_u32_u24 v{vd}, 1120, v{vd}")
    a(f"v_lshl_add_u32 v{vt}, v{vt}, 4, {sadd}")
    a(f"v_add_u32 v{vd}, v{vd}, v{vt}")
def pack(dst, src):
    a(f"v_cvt_pk_bf16_f32 v{dst}, v{src}, v{src+1}")
    a(f"v_cvt_pk_bf16_f32 v{dst+1}, v{src+2}, v{src+3}")
def lds_pipe(reads, work, gate, maxfly=14, pre=0, eager=False):
    ri = pre; done = pre - 1
    for j, (needed, text) in enumerate(work):
        if eager and ri < len(reads) and gate[ri] < j and (ri - 1 - done) >= maxfly:
            a(f"s_waitcnt lgkmcnt({maxfly - 2})"); done = ri - 1 - (maxfly - 2)
        while ri < len(reads) and gate[ri] < j and (ri - 1 - done) < maxfly:
            a(reads[ri]); ri += 1
        assert ri > needed, (ri, needed, j)
        if needed > done:
            a(f"s_waitcnt lgkmcnt({ri - 1 - needed})")
            done = needed
        a(text)
    assert ri == len(reads)
def row_allreduce(r):
    for k in (8, 4, 2, 1): a(f"v_add_u32_dpp v{r}, v{r}, v{r} row_ror:{k} row_mask:0xf bank_mask:0xf")
def wave_sum_eq(r, ref=0):
    row_allreduce(r)
    for k in range(4): a(f"v_readlane_b32 s{sT0+k}, v{r}, {16*k}")
    a(f"s_add_u32 s{sT0}, s{sT0}, s{sT1}")
    a(f"s_add_u32 s{sT2}, s{sT2}, s{sT3}")
    a(f"s_add_u32 s{sT0}, s{sT0}, s{sT2}")
    a(f"s_cmp_eq_u32 s{sT0}, {ref}")
def make_tag():
    a(f"s_mul_i32 s{sTAG}, s{sTAG}, 1664525")
    a(f"s_add_u32 s{sTAG}, s{sTAG}, 1013904223")
def dual(fn):
    g = a.newlabel("Ldg"); d = a.newlabel("Ldd")
    a(f"s_cmp_lg_u32 s{sMODE}, 1")
    a(f"s_cbranch_scc1 {g}")
    fn("")
    a(f"s_branch {d}")
    a.label(g)
    fn(" sc1")
    a.label(d)
def set_mode():
    a(f"s_cmp_eq_u32 s{sMODE}, 1")
    a(f"s_cselect_b32 s{sT3}, 0, {GOFF}")
    a(f"s_add_u32 s{sLB}, s{sWS}, s{sT3}")
    a(f"s_addc_u32 s{sLB+1}, s{sWS+1}, 0")
def my_block(sd):
    a(f"s_lshl_b32 s{sd}, s{sGRP}, 5")
    a(f"s_add_u32 s{sd}, s{sd}, s{sI}")
    a(f"s_lshl_b32 s{sd}, s{sd}, 8")
    a(f"s_add_u32 s{sd}, s{sd}, {FB}")
def cell_init():
    my_block(sT0)
    a(f"v_lshl_add_u32 v{vT0}, v{vLANE}, 3, s{sT0}")
    a(f"v_mov_b32 v{vT2}, 0")
    a(f"s_and_b32 s{sT1}, s{sTAG}, 0xffffff00")
    a(f"v_mov_b32 v{vT3}, s{sT1}")
    a(f"s_getreg_b32 s{sT1}, hwreg(HW_REG_XCC_ID, 0, 4)")
    a(f"s_not_b32 s{sT2}, s{sTAG}")
    a(f"v_writelane_b32 v{vT2}, s{sTAG}, 3")
    a(f"v_writelane_b32 v{vT3}, s{sT1}, 3")
    a(f"v_writelane_b32 v{vT2}, s{sT2}, 2")
    a("s_mov_b64 exec, 0xffff")
    a(f"global_store_dwordx2 v{vT0}, {v(vT2,2)}, {WSP} sc1")
    a("s_mov_b64 exec, -1")
def census():
    a(f"s_lshl_b32 s{sT0}, s{sGRP}, 5")
    a(f"v_add_u32 v{vT0}, s{sT0}, v{vLANE}")
    for j in range(4):
        a(f"v_add_u32 v{20+j}, {64*j}, v{vT0}")
        a(f"v_and_b32 v{20+j}, 255, v{20+j}")
        a(f"v_lshlrev_b32 v{20+j}, 8, v{20+j}")
        a(f"v_add_u32 v{20+j}, {FB}, v{20+j}")
    a("v_mov_b32 v24, 0"); a("v_mov_b32 v25, 0")
    for j in range(4): a(f"s_mov_b64 s[{76+2*j}:{77+2*j}], -1")
    def rnd(tag):
        for j in range(4):
            a(f"s_mov_b64 exec, s[{76+2*j}:{77+2*j}]")
            a(f"s_cbranch_execz L_cs{tag}{j}")
            a(f"global_atomic_or_x2 {v(26+2*j,2)}, v{20+j}, v[24:25], {WSP} offset:24 sc0 sc1")
            a.label(f"L_cs{tag}{j}")
        a("s_mov_b64 exec, -1")
        a("s_waitcnt vmcnt(0)")
        for j in range(4): a(f"v_cmp_ne_u32 s[{76+2*j}:{77+2*j}], s{sTAG}, v{26+2*j}")
    a(f"s_mov_b32 s{sSPIN}, 0")
    a.label("L_cen")
    rnd("b")
    a("s_or_b64 s[62:63], s[76:77], s[78:79]")
    a("s_or_b64 vcc, s[80:81], s[82:83]")
    a("s_or_b64 vcc, vcc, s[62:63]")
    a("s_cbranch_scc0 L_cend")
    spin_tail("L_cen", OPT["csleep"])
    a.label("L_cend")
    a(f"v_readfirstlane_b32 s{sT0}, v27")
    a(f"v_cmp_ne_u32 vcc, s{sT0}, v27")
    a("s_cmp_eq_u32 vcc_lo, 0")
    a(f"s_cselect_b32 s{sT0}, {2 if OPT['forceg'] else 1}, 2")
    a(f"v_mov_b32 v24, s{sTAG}")
    a(f"v_mov_b32 v25, s{sT0}")
    a("s_mov_b64 exec, 0xffffffff")
    a(f"global_store_dwordx2 v20, v[24:25], {WSP} offset:16 sc1")
    a("s_mov_b64 exec, -1")
def mode_load():
    my_block(sT2)
    a(f"s_add_u32 s{sT2}, s{sT2}, 16")
    a(f"s_load_dwordx2 s[66:67], {WSP}, s{sT2} glc")
def mode_wait(first=False):
    l = a.newlabel("Lc"); d = a.newlabel("Lcd"); f_ = a.newlabel("Lcf")
    a(f"s_mov_b32 s{sSPIN}, 0")
    if first: a(f"s_branch {f_}")
    else:
        my_block(sT2)
        a(f"s_add_u32 s{sT2}, s{sT2}, 16")
    a.label(l)
    a(f"s_load_dwordx2 s[66:67], {WSP}, s{sT2} glc")
    a.label(f_)
    a("s_waitcnt lgkmcnt(0)")
    a(f"s_cmp_eq_u32 s66, s{sTAG}")
    a(f"s_cbranch_scc1 {d}")
    spin_tail(l, 4)
    a("s_mov_b32 s67, 2")
    a.label(d)
    lds_set(F_MODE, "s67")
def tlb_touch():
    if not OPT["tlb"]: return
    a(f"s_lshl_b32 s{sT0}, s2, 7")
    a(f"s_add_u32 s{sT0}, s{sT0}, 0x1F8000")
    a(f"v_lshl_add_u32 v{vT0}, v{vLANE}, 21, s{sT0}")
    a(f"v_mov_b32 v{vT1}, 0")
    a("s_mov_b64 exec, 0x1e")
    a(f"global_atomic_or v{vT0}, v{vT1}, {WSP} sc1")
    a(f"s_mul_i32 s{sT0}, s{sOR}, {64*1280}")
    a(f"s_mul_i32 s{sT1}, s{sOC}, 160")
    a(f"s_add_u32 s{sT0}, s{sT0}, s{sT1}")
    a("s_mov_b64 exec, 1")
    a(f"v_mov_b32 v{vT0}, s{sT0}")
    a(f"global_atomic_or v{vT0}, v{vT1}, s[{sOUT}:{sOUT+1}] sc1")
    a("s_mov_b64 exec, -1")
def pp(idn, wave, role=None):
    if OPT.get("pp") != idn: return
    lb = a.newlabel("Lpp")
    a(f"s_cmp_lg_u32 s{sWV}, {wave}")
    a(f"s_cbranch_scc1 {lb}")
    a("s_memrealtime s[88:89]")
    a("s_lshl_b32 s90, s2, 2")
    a(f"s_add_u32 s90, s90, {FSUM + 2048}")
    a(f"v_mov_b32 v{vT0}, s90")
    a("s_waitcnt lgkmcnt(0)")
    a(f"v_mov_b32 v{vT1}, s88")
    a("s_mov_b64 s[88:89], exec")
    a("s_mov_b64 exec, 1")
    a(f"global_store_dword v{vT0}, v{vT1}, {WSP} sc1")
    a("s_mov_b64 exec, s[88:89]")
    a("s_waitcnt vmcnt(0)")
    a.label(lb)

TT, SH, vJP, vSOF, vGA = 8, 144, 149, 150, 151
SRD_X, SRD_W, SRD_2 = 40, 44, 48
sSO, sCNT, sLST, sIMG = 59, 63, 57, 56
def img_setup(base):
    a(f"s_mov_b32 s{sIMG}, {base}")
    a(f"s_mul_i32 s{sT0}, s{sOC}, 160")
    for i in range(5):
        a(f"v_add_u32 v{vT0}, {64*i}, v{vLANE}")
        a(f"v_mul_u32_u24 v{vT1}, 6554, v{vT0}")
        a(f"v_lshrrev_b32 v{vT1}, 16, v{vT1}")
        a(f"v_mul_u32_u24 v{vT2}, 160, v{vT1}")
        a(f"v_lshl_add_u32 v{vT0}, v{vT0}, 4, s{sT0}")
        a(f"v_sub_u32 v{vT0}, v{vT0}, v{vT2}")
        a(f"v_and_b32 v{vT2}, 15, v{vT1}")
        a(f"v_mul_u32_u24 v{vT2}, 1280, v{vT2}")
        a(f"v_add_u32 v{TT+i}, v{vT0}, v{vT2}")
        a(f"v_lshrrev_b32 v{vT1}, 2, v{vT1}")
        a(f"v_lshlrev_b32 v{SH+i}, 1, v{vT1}")
    a(f"v_mov_b32 v{vJP}, 0x5500")
    for p in range(10):
        J = JT[p % 5]; e = p < 5
        jp = (J & 0xff) | ((J >> 24) << 8) if e else (J >> 8) & 0xffff
        a(f"s_mov_b32 exec_lo, {hex(0x21 << (p % 5 + 10 * (p // 5)))}")
        a(f"v_mov_b32 v{vJP}, {hex(jp)}")
    a("s_mov_b32 exec_lo, -1")
    a(f"v_subrev_u32 v{vT0}, 10, v{vLANE}")
    a(f"v_min_u32 v{vT0}, v{vT0}, v{vLANE}")
    a(f"v_mul_u32_u24 v{vSOF}, 81920, v{vT0}")
    a(f"s_mul_i32 s{sT0}, s{sOR}, 81920")
    a(f"v_writelane_b32 v{vSOF}, s{sT0}, 20")
    a(f"s_add_u32 s{sT0}, s{sT0}, 40960")
    a(f"v_writelane_b32 v{vSOF}, s{sT0}, 21")
    a(f"s_mov_b32 s{SRD_2+3}, 0x00020000")
    a("s_movk_i32 s58, 20480")
def img_group(dst=None):
    a(f"s_and_b32 s{sT0}, s{sLST}, 31")
    a(f"s_lshr_b32 s{sLST}, s{sLST}, 5")
    a(f"v_readlane_b32 s{sT1}, v{vJP}, s{sT0}")
    a(f"v_readlane_b32 s{sSO}, v{vSOF}, s{sT0}")
    a(f"s_cmp_ge_u32 s{sT0}, 20")
    a(f"s_cselect_b32 s{SRD_2}, s{sX}, s{sWO}")
    a(f"s_cselect_b32 s{SRD_2+1}, s{sX+1}, s{sWO+1}")
    a(f"s_cselect_b32 s{SRD_2+2}, 16, 5")
    a(f"s_and_b32 s{SRD_2+1}, s{SRD_2+1}, 0xffff")
    a(f"s_mul_i32 s{SRD_2+2}, s{SRD_2+2}, {128*1280}")
    if dst is None:
        a(f"s_mul_i32 s{sT0}, s{sT0}, 5120")
        a(f"s_add_u32 m0, s{sT0}, s{sIMG}")
    for i in range(5): a(f"v_bfe_u32 v{vGA+i}, s{sT1}, v{SH+i}, 2")
    for i in range(5): a(f"v_mad_u32_u24 v{vGA+i}, v{vGA+i}, s58, v{TT+i}")
    for i in range(5):
        if dst is None:
            a(f"buffer_load_dwordx4 v{vGA+i}, s[{SRD_2}:{SRD_2+3}], s{sSO} offen lds")
            if i < 4: a("s_add_u32 m0, m0, 1024")
        else: a(f"buffer_load_dwordx4 {v(dst+4*i,4)}, v{vGA+i}, s[{SRD_2}:{SRD_2+3}], s{sSO} offen")
def img_list(per_wave):
    for w, ps in enumerate(per_wave):
        val = 1
        for p in reversed(ps): val = (val << 5) | p
        if w == 0: a(f"s_mov_b32 s{sLST}, {hex(val)}")
        else:
            a(f"s_cmp_eq_u32 s{sWV}, {w}")
            a(f"s_cselect_b32 s{sLST}, {hex(val)}, s{sLST}")
def img_run(per_wave, depth=None, dst=None):
    img_list(per_wave)
    l = a.newlabel("Lim")
    a.label(l)
    img_group(dst)
    if depth is not None: a(f"s_waitcnt vmcnt({depth})")
    a(f"s_cmp_gt_u32 s{sLST}, 1")
    a(f"s_cbranch_scc1 {l}")

a.label("L_entry")
if STAMPS_ON:
    a("s_memrealtime s[72:73]"); a("s_memtime s[74:75]")
elif OPT.get("probe"): a("s_memrealtime s[72:73]")
a("s_load_dwordx16 s[4:19], s[0:1], 0")
a("s_load_dwordx8 s[20:27], s[0:1], 64")
a("s_load_dwordx2 s[28:29], s[0:1], 96")
a("s_cmp_ge_u32 s2, 256")
a("s_cbranch_scc1 L_end")
a(f"v_lshrrev_b32 v{vT0}, 6, v0")
a(f"v_and_b32 v{vLANE}, 63, v0")
a(f"v_readfirstlane_b32 s{sWV}, v{vT0}")
a("s_getpc_b64 s[46:47]")
a.label("L_pc")
a(f"s_lshr_b32 s{sI}, s2, 3")
a(f"s_mul_i32 s{sT0}, s{sI}, {OPT['pfl']*128}")
a(f"s_cmp_lg_u32 s{sWV}, 2")
a("s_cbranch_scc1 L_nopf")
a(f"v_lshl_add_u32 v{vT0}, v{vLANE}, 7, s{sT0}")
a(f"v_min_u32 v{vT0}, L_codeend-L_pc-4, v{vT0}")
a(f"s_mov_b64 exec, {hex((1 << OPT['pfl']) - 1)}")
a(f"global_load_dword v20, v{vT0}, s[46:47]")
a("s_mov_b64 exec, -1")
a.label("L_nopf")
a(f"v_mov_b32 v{vFL}, {FL}")
a(f"v_lshl_add_u32 v{vT1}, v{vLANE}, 3, v{vFL}")
a(f"v_mov_b32 v{vT2}, 0"); a(f"v_mov_b32 v{vT3}, 0")
a(f"ds_write_b64 v{vT1}, {v(vT2,2)}")
a(f"v_lshrrev_b32 v{vG}, 4, v{vLANE}")
a(f"v_and_b32 v{vN}, 15, v{vLANE}")
if STAMPS_ON:
    a(f"v_mov_b32 v{vTR}, 0"); a("s_mov_b32 s95, 63"); a("s_mov_b32 s94, 0"); a("s_mov_b32 s70, 0")
a(f"s_and_b32 s{sGRP}, s2, 7")
if OPT["afirst"]:
    a(f"s_add_u32 s{sI}, s{sI}, 20")
    a(f"s_and_b32 s{sI}, s{sI}, 31")
a(f"s_and_b32 s{sOC}, s{sI}, 7")
a(f"s_lshr_b32 s{sOR}, s{sI}, 3")
a(f"s_lshl2_add_u32 s{sOR}, s{sGRP}, s{sOR}")
a(f"s_cmp_ge_u32 s{sI}, 20")
a(f"s_cselect_b32 s{sROLE}, 1, 0")
a(f"s_cselect_b32 s{sT0}, 20, 0")
a(f"s_cselect_b32 s{sT1}, 5, 10")
a(f"s_sub_u32 s{sCG}, s{sI}, s{sT0}")
a(f"s_cmp_ge_u32 s{sCG}, s{sT1}")
a(f"s_cselect_b32 s{sT1}, s{sT1}, 0")
a(f"s_cselect_b32 s{sT0}, 1, 0")
a(f"s_sub_u32 s{sCG}, s{sCG}, s{sT1}")
a(f"s_lshl1_add_u32 s{sRB}, s{sGRP}, s{sT0}")
a(f"s_mul_i32 s{sXM}, s{sRB}, {128*1280}")
a("s_setprio 3")
a(f"s_cmp_lt_u32 s{sWV}, 4")
a("s_cbranch_scc1 L_service")
a(f"s_cmp_eq_u32 s{sROLE}, 0")
a("s_cbranch_scc1 L_compute")
TAP = 42
a(f"s_min_u32 s{sT3}, s{sCG}, 4")
a(f"s_lshl3_add_u32 s58, s{sT3}, s{sWV}")
a("s_sub_u32 s58, s58, 4")
a(f"s_lshl_b32 s{sT0}, s58, 7")
a(f"v_sub_u32 v{vT0}, v{vN}, v{vG}")
a(f"v_and_b32 v{vT0}, 3, v{vT0}")
a(f"v_and_or_b32 v{vT0}, v{vN}, 12, v{vT0}")
a(f"v_lshl_add_u32 v{vT0}, v{vT0}, 1, s{sT0}")
a("s_waitcnt lgkmcnt(0)")
for q in range(4): a(f"global_load_ushort v{TAP+q}, v{vT0}, s[{sSH}:{sSH+1}] offset:{32*q}")
a("s_branch L_awave")
a.label("L_service")
a(f"s_cmp_lg_u32 s{sROLE}, 0")
a("s_cbranch_scc1 L_aserv")
a(f"s_setprio {OPT['lprio']}")

vAa, vAb = 13, 14
sX1, sX2, sSL, sST = 52, 53, 54, 55
a(f"v_lshrrev_b32 v{vT0}, 3, v{vLANE}")
a(f"v_and_b32 v{vT1}, 7, v{vLANE}")
sRS = 65
a(f"s_mul_i32 s{sRS}, s{sGRP}, {OPT['rg']}")
a(f"s_lshr_b32 s{sRS}, s{sRS}, 2")
a(f"s_mul_i32 s{sT0}, s{sCG}, {OPT['rc']}")
a(f"s_lshr_b32 s{sT0}, s{sT0}, 2")
a(f"s_add_u32 s{sRS}, s{sRS}, s{sT0}")
a(f"s_sub_u32 s{sT0}, s{sRS}, 10")
a(f"s_cselect_b32 s{sRS}, s{sRS}, s{sT0}")
a(f"s_and_b32 s{sT0}, s{sWV}, 1")
a(f"s_cmp_ge_u32 s{sWV}, 2")
a("s_cbranch_scc1 L_lw")
vGX, vGWA, GAC, GD = 15, 17, 20, 24
def gate_setup():
    a(f"v_lshrrev_b32 v{vT1}, 1, v{vN}")
    a(f"v_xor_b32 v{vT1}, v{vT1}, v{vG}")
    a(f"v_lshlrev_b32 v{vT1}, 4, v{vT1}")
    a(f"v_lshl_add_u32 v{vT1}, v{vN}, 7, v{vT1}")
    a(f"s_lshl_b32 s{sT1}, s{sWV}, 6")
    a(f"v_xor_b32 v{vT1}, s{sT1}, v{vT1}")
    a(f"s_and_b32 s{sT0}, s{sCG}, 7")
    a(f"s_lshl_b32 s{sT0}, s{sT0}, 11")
    a(f"s_add_u32 s{sT0}, s{sT0}, 2048")
    a(f"v_add_u32 v18, s{sT0}, v{vT1}")
    a(f"s_add_u32 s{sT1}, s{sT1}, {GW}")
    a(f"v_lshl_add_u32 v{vGWA}, v{vG}, 4, s{sT1}")
    a("s_mov_b32 s64, 0")
    for r in range(GAC, GD + 8, 2): a(f"v_mov_b64 {v(r,2)}, 0")
def gate_reads():
    a(f"v_add_u32 v{vGX}, s64, v18")
    a(f"v_add_u32 v{vGX+1}, s68, v{vGWA}")
    a(f"ds_read_b128 {v(GD,4)}, v{vGX}")
    a(f"ds_read_b128 {v(GD+4,4)}, v{vGX+1}")
    a("s_add_u32 s68, s68, 128")
    a("s_cmp_eq_u32 s68, 1280")
    a("s_cselect_b32 s68, 0, s68")
    a(f"s_add_u32 s64, s64, {SLOT}")
    a(f"s_cmp_eq_u32 s64, {3*SLOT}")
    a("s_cselect_b32 s64, 0, s64")
def gate_dot():
    a("s_waitcnt lgkmcnt(0)")
    a(f"{MF} {v(GAC,4)}, {v(GD+4,4)}, {v(GD,4)}, {v(GAC,4)}")
def loader(tag, n, issue):
    L = f"L_ld_{tag}"
    a(f"s_load_dword s{sTAG}, {WSP}, {EPOCH}")
    trace()
    if tag == "x":
        a(f"s_cmp_lg_u32 s{sWV}, 0")
        a("s_cbranch_scc1 L_nogw")
        srd(a, SRD_2, sGW, sGW + 1, 1280)
        a(f"v_lshlrev_b32 v{vT0}, 4, v{vLANE}")
        a(f"s_mov_b32 m0, {GW}")
        a(f"buffer_load_dwordx4 v{vT0}, s[{SRD_2}:{SRD_2+3}], 0 offen lds")
        a("s_mov_b64 exec, 0xffff")
        a(f"buffer_load_dwordx4 v{vT0}, s[{SRD_2}:{SRD_2+3}], 0 offen offset:1024 lds")
        a("s_mov_b64 exec, -1")
        a.label("L_nogw")
    issue()
    a(f"s_add_u32 s62, s{sSL}, {3*SLOT}")
    a(f"s_mov_b32 s61, s{sSL}")
    a(f"s_add_u32 s{sSL}, s{sSL}, {SLOT}")
    a(f"s_mov_b32 s{sST}, 1")
    img_setup(IMG_B)
    if tag == "x": gate_setup()
    a("s_waitcnt lgkmcnt(0)")
    make_tag()
    if tag == "x": a(f"s_branch {L}_i")
    a.label(L)
    if tag == "x":
        gate_reads()
        a.label(f"{L}_i")
    issue(True)
    a(f"s_add_u32 s{sSL}, s{sSL}, {SLOT}")
    a(f"s_cmp_eq_u32 s{sSL}, s62")
    a(f"s_cselect_b32 s{sSL}, s61, s{sSL}")
    a(f"s_add_u32 s{sST}, s{sST}, 1")
    trace()
    a(f"s_waitcnt vmcnt({n})" + (" lgkmcnt(0)" if STAMPS_ON else ""))
    trace()
    a("s_barrier")
    a(f"s_cmp_lt_u32 s{sST}, 10")
    a(f"s_cbranch_scc1 {L}")
def issue_x(dots=False):
    a(f"s_mov_b32 m0, s{sSL}")
    a(f"s_mov_b32 s{sSO}, s{sX1}")
    for i in range(9):
        if i == 2: a(f"s_mov_b32 s{sSO}, s{sX2}")
        a(f"buffer_load_dwordx4 v{vAa if i % 2 == 0 else vAb}, s[{SRD_X}:{SRD_X+3}], s{sSO} offen lds")
        if i < 8: a("s_add_u32 m0, m0, 1024")
        if i != 1 and i < 8: a(f"s_add_u32 s{sSO}, s{sSO}, 10240")
        if dots and i == 4: gate_dot()
    a(f"s_add_u32 s{sRS}, s{sRS}, 1")
    a(f"s_cmp_eq_u32 s{sRS}, 10")
    a(f"s_cselect_b32 s{sSO}, -9, 1")
    a(f"s_lshl_b32 s{sSO}, s{sSO}, 7")
    a(f"s_add_u32 s{sX1}, s{sX1}, s{sSO}")
    a(f"s_add_u32 s{sX2}, s{sX2}, s{sSO}")
def issue_w(dots=False):
    a(f"s_mov_b32 m0, s{sSL}")
    for blk in range(4):
        for sec in range(3):
            a(f"buffer_load_dwordx4 v{vAa if blk % 2 == 0 else vAb}, s[{SRD_W}:{SRD_W+3}], s{sSO} offen lds")
            if (blk, sec) != (3, 2): a("s_add_u32 m0, m0, 1024")
            a(f"s_add_u32 s{sSO}, s{sSO}, {1280 if sec < 2 else (8*3840 if blk < 3 else 40*3840) - 2560}")
    a(f"s_sub_u32 s{sT0}, s{sSO}, {640*3840}")
    a(f"s_cselect_b32 s{sSO}, s{sSO}, s{sT0}")
a(f"v_mul_u32_u24 v{vT2}, 1280, v{vT0}")
a(f"v_xor_b32 v{vT3}, v{vT1}, v{vG}")
a(f"v_lshl_add_u32 v{vAa}, v{vT3}, 4, v{vT2}")
a(f"s_lshl_b32 s{sT1}, s{sT0}, 6")
a(f"v_xor_b32 v{vAa}, s{sT1}, v{vAa}")
a(f"v_xor_b32 v{vAb}, 64, v{vAa}")
a(f"s_sub_u32 s{sX1}, s{sXM}, {16*1280}")
a(f"s_cmp_eq_u32 s{sRB}, 0")
a(f"s_cselect_b32 s{sX1}, 0, s{sX1}")
a(f"s_add_u32 s{sT1}, s{sXM}, {7*10240}")
a(f"s_add_u32 s{sT2}, s{sXM}, {9*10240}")
a(f"s_cmp_eq_u32 s{sT0}, 0")
a(f"s_cselect_b32 s{sX1}, s{sX1}, s{sT1}")
a(f"s_cselect_b32 s{sX2}, s{sXM}, s{sT2}")
a(f"s_mul_i32 s{sSL}, s{sT0}, 9216")
a(f"s_lshl_b32 s68, s{sRS}, 7")
a(f"s_add_u32 s{sX1}, s{sX1}, s68")
a(f"s_add_u32 s{sX2}, s{sX2}, s68")
a("s_waitcnt lgkmcnt(0)")
srd(a, SRD_X, sX, sX + 1, 2048 * 1280)
loader("x", 9, issue_x)
gate_reads()
gate_dot()
a("s_branch L_ld_end")
a.label("L_lw")
a(f"v_and_b32 v{vT3}, 2, v{vT0}")
a(f"v_xor_b32 v{vT3}, v{vT3}, v{vT1}")
a(f"v_mul_u32_u24 v{vT2}, 3840, v{vT0}")
a(f"v_lshl_add_u32 v{vAa}, v{vT3}, 4, v{vT2}")
a(f"s_lshl_b32 s{sT1}, s{sCG}, 7")
a(f"v_add_u32 v{vAa}, s{sT1}, v{vAa}")
a(f"v_xor_b32 v{vAb}, 64, v{vAa}")
a(f"s_mul_i32 s{sSL}, s{sT0}, {WHALF}")
a(f"s_add_u32 s{sSL}, s{sSL}, {WPART}")
a(f"s_lshl1_add_u32 s{sSO}, s{sRS}, s{sT0}")
a(f"s_mul_i32 s{sSO}, s{sSO}, {32*3840}")
a("s_waitcnt lgkmcnt(0)")
srd(a, SRD_W, sWQ, sWQ + 1, 640 * 3840)
loader("w", 12, issue_w)
a.label("L_ld_end")
trace_at(24)
pp(21, 3)
img_run([[9], [10], [11], [12]])
a(f"s_cmp_lg_u32 s{sWV}, 2")
a("s_cbranch_scc1 L_wo_nc")
if not OPT["gsolo"]: mode_load()
a.label("L_wo_nc")
a("s_waitcnt vmcnt(5)")
a("s_barrier")
if OPT["gsolo"]: finish()
a(f"s_cmp_lg_u32 s{sWV}, 2")
a("s_cbranch_scc1 L_wo_nm")
mode_wait(first=True)
a.label("L_wo_nm")
a(f"s_cmp_ge_u32 s{sWV}, 2")
a("s_cbranch_scc1 L_wo_ng")
gate_reads()
gate_dot()
a(f"v_lshlrev_b32 v{vT1}, 2, v{vLANE}")
a(f"v_add_u32 v{vT1}, {YS}, v{vT1}")
a(f"s_cmp_eq_u32 s{sWV}, 0")
a("s_cbranch_scc1 L_wo_g0")
a(f"ds_write_b32 v{vT1}, v{GAC}")
lds_set(F_PV + 12, 1)
a("s_branch L_wo_ng")
a.label("L_wo_g0")
lds_set(F_PV + 8, 1)
lds_wait(F_PV + 12, 1)
a(f"ds_read_b32 v{GAC+1}, v{vT1}")
a("s_waitcnt lgkmcnt(0)")
a(f"v_add_f32 v{GAC}, v{GAC}, v{GAC+1}")
a(f"v_cvt_pk_bf16_f32 v{GAC}, v{GAC}, v{GAC}")
a(f"v_and_b32 v{GAC}, 0xffff0000, v{GAC}")
a(f"v_mul_f32 v{GAC}, 0xbfb8aa3b, v{GAC}")
a(f"v_exp_f32 v{GAC}, v{GAC}")
a(f"v_add_f32 v{GAC}, 1.0, v{GAC}")
a(f"v_rcp_f32 v{GAC}, v{GAC}")
a(f"v_cvt_pk_bf16_f32 v{GAC}, v{GAC}, v{GAC}")
a(f"v_and_b32 v{GAC+1}, 0xffff0000, v{GAC}")
a(f"v_mov_b32 v{GAC}, s{sTAG}")
a(f"s_lshl3_add_u32 s{sT0}, s{sRB}, s{sCG}")
a(f"s_lshl_b32 s{sT0}, s{sT0}, 7")
a(f"s_add_u32 s{sT0}, s{sT0}, {GWS}")
a(f"v_lshl_add_u32 v{vT1}, v{vN}, 3, s{sT0}")
a(f"s_cmp_ge_u32 s{sCG}, 8")
a("s_cbranch_scc1 L_wo_ng")
a("s_mov_b64 exec, 0xffff")
a(f"global_store_dwordx2 v{vT1}, {v(GAC,2)}, {WSP} sc1")
a("s_mov_b64 exec, -1")
a.label("L_wo_ng")
img_run([[6, 7], [13, 17, 8], [14, 18, 20], [15, 19, 21, 16]], OPT["bwd"] if OPT["bwd"] >= 0 else None)
trace()
a(f"v_lshl_add_u32 v19, v{vN}, 2, v{vFL}")
a(f"v_add_u32 v19, {F_PQ}, v19")
a("s_movk_i32 s62, 0xcff")
a("s_waitcnt vmcnt(0)")
lds_add(F_WOL)
trace()
mask_wait(19, 62, sleep=1)
if OPT["wo3"]: lds_wait(F_EXR, OPT["wo3"], sleep=1)
img_run([[0], [1], [2, 4], [3, 5]])
a(f"s_cmp_eq_u32 s{sWV}, 3")
a("s_cbranch_scc1 L_help")
a("s_waitcnt vmcnt(0)")
lds_add(F_WOL + 4)
trace()
a(f"s_cmp_lt_u32 s{sWV}, 2")
a("s_cbranch_scc1 L_aux")
finish()

a.label("L_help")
a(f"s_lshl_b32 s{sT0}, s{sOR}, 9")
a(f"s_add_u32 s{sT0}, s{sT0}, {GWS}")
a(f"v_lshl_add_u32 v14, v{vLANE}, 3, s{sT0}")
a(f"v_lshl_add_u32 v13, v{vLANE}, 2, v{vFL}")
a(f"s_mov_b32 s{sSPIN}, 0")
a(f"global_load_dwordx2 v[18:19], v14, {WSP} sc1")
a("s_waitcnt vmcnt(0)")
lds_add(F_WOL + 4)
a("s_branch L_gchk1")
a.label("L_gchk")
a(f"global_load_dwordx2 v[18:19], v14, {WSP} sc1")
a("s_waitcnt vmcnt(0)")
a.label("L_gchk1")
a(f"v_cmp_ne_u32 vcc, s{sTAG}, v18")
a("s_cbranch_vccz L_gok")
spin_tail("L_gchk", 8)
a.label("L_gok")
a("v_sub_f32 v18, 1.0, v19")
a(f"ds_write_b32 v13, v19 offset:{GOM - FL + 256}")
a(f"ds_write_b32 v13, v18 offset:{GOM - FL}")
lds_add(F_GRD)
trace()
a("s_cmp_lg_u32 s2, 0")
a("s_cbranch_scc1 L_th_exit")
lds_wait(F_MODE, 1, sleep=2)
a(f"v_mov_b32 v{vT0}, {EPOCH}")
a(f"v_mov_b32 v{vT1}, s{sTAG}")
a("s_mov_b64 exec, 1")
a(f"global_store_dword v{vT0}, v{vT1}, {WSP} sc1")
a("s_mov_b64 exec, -1")
if OPT.get("probe"):
    a("s_sleep 127")
    a(f"v_lshlrev_b32 v8, 4, v{vLANE}")
    a(f"v_add_u32 v8, {FSUM}, v8")
    a(f"global_load_dwordx4 v[12:15], v8, {WSP} offset:1024 sc1")
    a("s_waitcnt vmcnt(0)")
    for j in range(4): a(f"v_subrev_u32 v{12+j}, s72, v{12+j}")
    a("v_min3_i32 v16, v12, v13, v14"); a("v_min_i32 v16, v16, v15")
    a("s_mov_b32 s50, 0")
    for l in range(64):
        a(f"v_readlane_b32 s52, v16, {l}"); a("s_min_i32 s50, s50, s52")
    a("s_add_u32 s50, s50, s72")
    if OPT.get("pp"):
        a("s_add_u32 s55, s50, 2500")
        a.label("L_probe0")
        a("s_memrealtime s[52:53]"); a("s_waitcnt lgkmcnt(0)")
        a("s_sub_u32 s54, s52, s55"); a("s_cmp_lt_i32 s54, 0"); a("s_cbranch_scc1 L_probe0")
        a(f"global_load_dwordx4 v[12:15], v8, {WSP} offset:2048 sc1")
        a("s_waitcnt vmcnt(0)")
        for j in range(4): a(f"v_subrev_u32 v{12+j}, s50, v{12+j}")
        lanes = range(40, 60) if OPT.get("prole") else range(0, 40)
        if OPT.get("prole") == 2: lanes = range(64)
        if OPT.get("pmax"):
            a("v_max3_u32 v16, v12, v13, v14"); a("v_max_u32 v16, v16, v15")
        else:
            a("v_add3_u32 v16, v12, v13, v14"); a("v_add_u32 v16, v16, v15")
        a("s_mov_b32 s51, 0")
        for l in lanes:
            a(f"v_readlane_b32 s52, v16, {l}")
            a("s_max_u32 s51, s51, s52" if OPT.get("pmax") else "s_add_u32 s51, s51, s52")
        if OPT.get("pmax"): a("s_lshl_b32 s51, s51, 1")
        else:
            a(f"s_mul_i32 s51, s51, {round(65536 * 2 / (4 * len(lanes)))}"); a("s_lshr_b32 s51, s51, 16")
        a("s_min_u32 s51, s51, 10000")
        a("s_add_u32 s50, s50, s51")
    a("s_add_u32 s50, s50, 3000")
    a.label("L_probe")
    a("s_memrealtime s[52:53]"); a("s_waitcnt lgkmcnt(0)")
    a("s_sub_u32 s54, s52, s50"); a("s_cmp_lt_i32 s54, 0"); a("s_cbranch_scc1 L_probe")
a.label("L_th_exit")
finish()

a.label("L_aserv")
SRD_K, SRD_V = 84, 80
vKa = 13
a(f"v_mul_u32_u24 v{vT1}, 1280, v{vG}")
a(f"v_lshl_add_u32 v{vT0}, v{vN}, 4, v{vT1}")
a(f"s_lshl_b32 s{sT0}, s{sCG}, 8")
a(f"v_add_u32 v{vT0}, s{sT0}, v{vT0}")
a(f"s_lshl_b32 s{sT1}, s{sWV}, 6")
a(f"v_xor_b32 v{vKa}, s{sT1}, v{vT0}")
for j in range(1, 4): a(f"v_xor_b32 v{vKa+j}, {16*j}, v{vKa}")
a(f"s_mul_i32 s{sT0}, s{sWV}, {32*1280}")
a(f"s_add_u32 s52, s{sXM}, s{sT0}")
a(f"s_lshl_b32 s53, s{sWV}, 13")
a(f"s_sub_u32 s{sT0}, s{sXM}, {4*1280}")
a(f"v_xor_b32 v{vT0}, 0xf0, v{vT0}")
a(f"v_add_u32 v17, s{sT0}, v{vT0}")
a("s_waitcnt lgkmcnt(0)")
srd(a, SRD_K, sK, sK + 1, 2048 * 1280)
srd(a, SRD_V, sV, sV + 1, 2048 * 1280)
a(f"s_load_dword s{sTAG}, {WSP}, {EPOCH}")
if OPT["gsolo"]:
    a("s_barrier"); finish()
a(f"s_cmp_ge_u32 s{sCG}, 5")
a("s_cbranch_scc1 L_as_nokv")
a(f"s_cmp_lg_u32 s{sWV}, 0")
a("s_cbranch_scc1 L_as_nohalo")
a(f"s_mov_b32 m0, {KT}")
a(f"buffer_load_dwordx4 v17, s[{SRD_K}:{SRD_K+3}], 0 offen lds")
a.label("L_as_nohalo")
a(f"s_add_u32 m0, s53, {KT + 1024}")
a(f"s_mov_b32 s{sSO}, s52")
for i in range(8):
    a(f"buffer_load_dwordx4 v{vKa + i//2}, s[{SRD_K}:{SRD_K+3}], s{sSO} offen lds")
    if i < 7:
        a("s_add_u32 m0, m0, 1024")
        a(f"s_add_u32 s{sSO}, s{sSO}, 5120")
a(f"s_add_u32 m0, s53, {VT}")
for i in range(8):
    a(f"buffer_load_dwordx4 v{vKa + i//2}, s[{SRD_V}:{SRD_V+3}], s52 offen lds")
    if i < 7:
        a("s_add_u32 m0, m0, 1024")
        a("s_add_u32 s52, s52, 5120")
a.label("L_as_nokv")
trace()
a("s_waitcnt vmcnt(0) lgkmcnt(0)")
a("s_barrier")
trace()
make_tag()
sNCH = 64
a(f"s_sub_u32 s{sT0}, s{sI}, 20")
a(f"s_lshr_b32 s{sT0}, {hex(sum(1 << q for q in range(12) if q % 3 == 2))}, s{sT0}")
a(f"s_and_b32 s{sT0}, s{sT0}, 1")
a(f"s_sub_u32 s{sNCH}, 7, s{sT0}")
a(f"s_cmp_eq_u32 s{sWV}, 3")
a("s_cbranch_scc1 L_ahelp")
a("s_setprio 1")
img_setup(IMG_A)
a(f"s_mul_i32 s{sT0}, s{sWV}, {3*5120}")
a(f"s_add_u32 s{sT0}, s{sT0}, {IMG_A}")
a(f"v_lshl_add_u32 v20, v{vLANE}, 4, s{sT0}")
a("s_setprio 3")
lds_wait(F_UDN, 8, sleep=2)
a(f"s_cmp_lg_u32 s{sI}, {OPT['cenw']}")
a("s_cbranch_scc1 L_nohold")
lds_wait(F_KV, 1, sleep=8)
a.label("L_nohold")
trace()
img_run([[9, 12], [10, 13], [11]], OPT["wodepth"], dst=24)
img_run([[14, 17, 20], [15, 18, 21], [16, 19]], OPT["wodepth"])
img_list([[0, 1, 2], [3, 4, 5], [6, 7, 8]])
for k in range(3):
    img_group(24 + 20 * k)
    a(f"s_waitcnt vmcnt({OPT['wodepth']})")
a("s_waitcnt vmcnt(0)")
trace()
lds_wait(F_PB + 20, 1, sleep=8)
lds_wait(F_MRG, f"s{sNCH}", sleep=2)
img_run([[10, 13], [11, 9], [12]])
a("s_waitcnt vmcnt(0)")
lds_add(F_WOL)
trace()
lds_wait(F_CVD, 8, sleep=1)
for i in range(15):
    a(f"ds_write_b128 v20, {v(24+4*i,4)} offset:{1024*i}")
    if i >= 12: a("s_waitcnt lgkmcnt(8)")
lds_add(F_WOL + 4)
trace()
a(f"s_cmp_lt_u32 s{sWV}, 2")
a("s_cbranch_scc1 L_aux")
finish()

a.label("L_ahelp")
a(f"v_lshlrev_b32 v{vT0}, 2, v{vLANE}")
a(f"v_add_u32 v{vT0}, {YS}, v{vT0}")
a(f"v_mov_b32 v{vT1}, 0")
a(f"ds_write_b32 v{vT0}, v{vT1}")
a(f"s_sub_u32 s52, s{sI}, 20")
a(f"s_mul_i32 s{sT0}, s{sGRP}, {XGRP}")
a(f"s_mul_i32 s{sT1}, s52, {129*128}")
a(f"s_add_u32 s{sT0}, s{sT0}, s{sT1}")
a(f"s_add_u32 s{sT0}, s{sT0}, {XLW}")
a(f"v_lshl_add_u32 v15, v{vLANE}, 7, s{sT0}")
a("v_add_u32 v16, 8192, v15")
a("v_add_u32 v17, 16384, v15")
lds_wait(F_UDN, 8, sleep=2)
if OPT.get("probe"):
    a(f"s_lshl_b32 s{sT0}, s2, 2"); a(f"s_add_u32 s{sT0}, s{sT0}, {FSUM + 1024}")
    a(f"v_mov_b32 v{vT0}, s{sT0}"); a(f"v_mov_b32 v{vT1}, s72")
    a(f"global_store_dword v{vT0}, v{vT1}, {WSP} sc1")
cell_init()
trace()
a(f"s_cmp_lg_u32 s{sI}, {OPT['cenw']}")
a("s_cbranch_scc1 L_nocen")
census()
lds_set(F_KV, 1)
a.label("L_nocen")
trace()
for i in range(3):
    if i == 2: a("s_mov_b64 exec, 1")
    a(f"global_load_dword v18, v{15+i}, {WSP} sc1")
a("s_mov_b64 exec, -1")
tlb_touch()
a("s_sleep 20")
mode_wait()
trace()
lds_add(F_WOL)
lds_wait(F_MRG, 1, sleep=8)
a("s_branch L_help")

a.label("L_aux")
a("s_setprio 3")
my_block(sT0)
a(f"s_lshl3_add_u32 s{sT0}, s{sWV}, s{sT0}")
a(f"s_add_u32 s40, s{sWS}, s{sT0}")
a(f"s_addc_u32 s41, s{sWS+1}, 0")
a(f"s_mul_i32 s{sT0}, s{sOC}, {80*4096}")
a(f"s_mul_i32 s{sT1}, s{sWV}, {40*4096}")
a(f"s_add_u32 s{sT0}, s{sT0}, s{sT1}")
a(f"s_lshl_b32 s{sT1}, s{sOR}, 7")
a(f"s_add_u32 s{sT0}, s{sT0}, s{sT1}")
a(f"s_add_u32 s{sT0}, s{sT0}, {YWS}")
a(f"v_lshrrev_b32 v13, 3, v{vLANE}")
a(f"v_and_b32 v12, 7, v{vLANE}")
a("v_and_b32 v15, 6, v13")
a("v_xor_b32 v15, v15, v12")
a("v_lshlrev_b32 v15, 4, v15")
a("v_lshl_add_u32 v15, v13, 7, v15")
a(f"s_mul_i32 s{sT1}, s{sWV}, 5120")
a(f"s_add_u32 s{sT1}, s{sT1}, {YT}")
a(f"v_add_u32 v15, s{sT1}, v15")
a("v_lshlrev_b32 v13, 12, v13")
a("v_lshl_add_u32 v13, v12, 4, v13")
a(f"v_add_u32 v20, s{sT0}, v13")
for i in range(1, 5): a(f"v_add_u32 v{20+i}, {8*4096*i}, v20")
a(f"s_and_b32 s44, s{sTAG}, 0xffffff00")
a("s_add_u32 s44, s44, 0x600")
a(f"s_mov_b32 s{sSPIN}, 0")
a.label("L_yp")
a("s_load_dwordx2 s[42:43], s[40:41], 0 glc")
a("s_waitcnt lgkmcnt(0)")
a("s_and_b32 s43, s43, 0xffffff00")
a("s_cmp_eq_u32 s43, s44")
a("s_cbranch_scc1 L_ypd")
spin_tail("L_yp", OPT["ysleep"])
a.label("L_ypd")
trace_at(16)
pp(9, 0)
a(f"s_mov_b32 s{sSPIN}, 0")
a.label("L_yretry")
for i in range(5): a(f"global_load_dwordx4 {v(28+4*i,4)}, v{20+i}, {WSP} sc1")
a("v_mov_b32 v16, 0")
for i in range(5):
    a(f"s_waitcnt vmcnt({4-i})")
    a(f"ds_write_b128 v15, {v(28+4*i,4)} offset:{1024*i}")
    a(f"v_add3_u32 v16, v16, v{28+4*i}, v{29+4*i}")
    a(f"v_add3_u32 v16, v16, v{30+4*i}, v{31+4*i}")
wave_sum_eq(16, "s42")
a("s_cbranch_scc1 L_yok")
spin_tail("L_yretry", 2)
a.label("L_yok")
lds_add(F_YLD)
trace()
if STAMPS_ON:
    a(f"s_add_u32 s{sSPIN}, s{sSPIN}, s72"); a(f"s_add_u32 s{sSPIN}, s{sSPIN}, 1"); a(f"v_writelane_b32 v{vTR}, s{sSPIN}, 20")
finish()

a.label("L_compute")
a("s_waitcnt lgkmcnt(0)")
a(f"s_load_dword s{sTAG}, {WSP}, {EPOCH}")


sGW_, sT, sMH, sPH, sSLOT, sINF, sCGP, sB1 = 40, 41, 42, 43, 44, 45, 46, 47
sNQ, sNV, sOWN, sRM, sSC, sFLO = 48, 49, 50, 52, 54, 55
sMT, sE = 56, 57
ACC = 8; XF = 68; WF = 108
vXB, vWB, vXA, vWA, vFA, vINC, vPW, vCNT, vFG = 132, 133, 134, 136, 137, 138, 139, 140, 141
BO, BP, MK = 144, 148, 152
vEXW, vQM, vXS, vXR, vOA, vOX, vVX, vPF, vBND, vPQ = 156, 157, 158, 159, 160, 161, 162, 163, 164, 165
NEG = 0xf149f2ca
a(f"s_setprio {OPT['phi']}")
a(f"s_sub_u32 s{sGW_}, s{sWV}, 4")
a(f"s_lshr_b32 s{sMH}, s{sGW_}, 2")
a(f"s_and_b32 s{sMT}, s{sGW_}, 3")
a(f"s_xor_b32 s{sT}, s{sMT}, s{sMH}")
a(f"s_sub_u32 s{sCGP}, s{sCG}, 5")
a(f"s_cselect_b32 s{sCGP}, s{sCG}, s{sCGP}")
a(f"s_mov_b32 s{sT0}, {hex(JT[0])}"); a(f"s_mov_b32 s{sINF}, {hex(INFO[0])}")
for c in range(1, 5):
    a(f"s_cmp_eq_u32 s{sCGP}, {c}")
    a(f"s_cselect_b32 s{sT0}, {hex(JT[c])}, s{sT0}")
    a(f"s_cselect_b32 s{sINF}, {hex(INFO[c])}, s{sINF}")
a(f"s_lshl_b32 s{sT1}, s{sT}, 3")
a(f"s_lshr_b32 s{sT0}, s{sT0}, s{sT1}")
a(f"s_lshr_b32 s{sINF}, s{sINF}, s{sT1}")
a(f"s_and_b32 s{sINF}, s{sINF}, 0xff")
a(f"v_lshrrev_b32 v{vT1}, 1, v{vN}")
a(f"v_xor_b32 v{vT1}, v{vT1}, v{vG}")
a(f"v_lshlrev_b32 v{vT1}, 4, v{vT1}")
a(f"v_lshl_add_u32 v{vXB}, v{vN}, 7, v{vT1}")
a(f"s_lshl_b32 s{sT1}, s{sMH}, 13")
a(f"v_add_u32 v{vXB}, s{sT1}, v{vXB}")
a(f"v_and_b32 v{vT0}, 3, v{vLANE}")
a(f"v_lshlrev_b32 v{vT1}, 1, v{vT0}")
a(f"v_bfe_u32 v{vT1}, s{sT0}, v{vT1}, 2")
a(f"v_bfe_u32 v{vT2}, v{vLANE}, 3, 2")
a(f"v_xor_b32 v{vT1}, v{vT1}, v{vT2}")
a(f"v_lshl_add_u32 v{vT1}, v{vT1}, 2, v{vT0}")
a(f"v_bfe_u32 v{vT2}, v{vLANE}, 2, 2")
a(f"v_mad_u32_u24 v{vT2}, v{vG}, 24, v{vT2}")
a(f"v_lshlrev_b32 v{vT2}, 7, v{vT2}")
a(f"v_lshl_add_u32 v{vWB}, v{vT1}, 3, v{vT2}")
a(f"v_add_u32 v{vWB}, {WPART}, v{vWB}")
for r in range(ACC, ACC + 60): a(f"v_mov_b32 v{r}, 0")
a(f"s_mov_b32 s{sPH}, 0")
a(f"s_mov_b32 s{sSLOT}, 0")
a(f"v_mov_b32 v{vXA}, v{vXB}")
a(f"v_xor_b32 v{vXA+1}, 64, v{vXB}")
a(f"v_mov_b32 v{vWA}, v{vWB}")
a(f"v_mov_b32 v{vT3}, {hex(NEG)}")
a(f"v_lshlrev_b32 v{vT0}, 2, v{vG}")
a(f"v_sub_u32 v{vT0}, v{vN}, v{vT0}")
for r in range(4):
    a(f"v_subrev_u32 v{vT1}, {r}, v{vT0}")
    a(f"v_and_b32 v{vT1}, 0x80000001, v{vT1}")
    a(f"v_cmp_eq_u32 vcc, 0, v{vT1}")
    a(f"v_cndmask_b32 v{BO+r}, v{vT3}, 0, vcc")
    a(f"v_cmp_eq_u32 vcc, 0x80000000, v{vT1}")
    a(f"v_cndmask_b32 v{BP+r}, v{vT3}, 0, vcc")
a(f"v_and_b32 v{vT1}, 1, v{vN}")
a(f"v_lshlrev_b32 v{vT2}, 4, v{vT1}")
a(f"v_mov_b32 v{vT3}, 0xffff")
a(f"v_lshlrev_b32 v{vT3}, v{vT2}, v{vT3}")
a(f"v_sub_u32 v{vT1}, v{vT0}, v{vT1}")
a(f"v_cmp_le_i32 vcc, 0, v{vT1}")
a(f"v_cndmask_b32 v{MK}, 0, v{vT3}, vcc")
a(f"v_cndmask_b32 v{MK+2}, v{vT3}, 0, vcc")
a(f"v_cmp_le_i32 vcc, 2, v{vT1}")
a(f"v_cndmask_b32 v{MK+1}, 0, v{vT3}, vcc")
a(f"v_cndmask_b32 v{MK+3}, v{vT3}, 0, vcc")
a(f"s_mov_b32 s{sSC}, {hex(f2u((20 ** -0.5) * math.log2(math.e)))}")
a(f"v_bfe_i32 v{vQM}, s{sINF}, v{vG}, 1")
a(f"v_cmp_ne_u32 s[{sOWN}:{sOWN+1}], 0, v{vQM}")
a(f"s_bfe_u32 s60, s{sINF}, {4 | (2 << 16)}")
a(f"v_cmp_eq_u32 s[{sRM}:{sRM+1}], s60, v{vG}")
a(f"s_bfe_u32 s61, s{sINF}, {6 | (1 << 16)}")
a(f"s_lshr_b32 s62, s{sT}, 1")
a(f"s_add_u32 s{sT0}, s{sT}, 1")
a(f"s_bfe_u32 s{sT0}, s{sT0}, {1 | (1 << 16)}")
a(f"s_xor_b32 s{sE}, s{sT0}, 1")
a(f"s_bitcmp1_b32 s{sINF}, 7")
a(f"s_cselect_b32 s63, s62, s61")
a(f"s_mul_i32 s{sT0}, s63, {EXT}")
a(f"s_lshl_b32 s{sT1}, s{sMH}, 11")
a(f"s_add_u32 s{sT0}, s{sT0}, s{sT1}")
a(f"s_add_u32 s{sT0}, s{sT0}, {EX}")
a(f"v_lshl_add_u32 v{vEXW}, v{vLANE}, 3, s{sT0}")
a(f"v_and_b32 v{vT0}, 0x33, v{vLANE}")
a(f"s_lshl_b32 s{sT1}, s60, 5")
a(f"s_add_u32 s{sT0}, s{sT0}, s{sT1}")
a(f"v_lshl_add_u32 v{vVX}, v{vT0}, 3, s{sT0}")
a(f"s_lshl_b32 s{sT0}, s{sT}, 10")
a(f"s_add_u32 s{sT0}, s{sT0}, {EXB}")
a(f"v_lshl_add_u32 v{vBND}, v{vLANE}, 3, s{sT0}")
a(f"v_min_u32 v{vT0}, 16, v{vLANE}")
a(f"v_lshl_add_u32 v{vPF}, v{vT0}, 2, v{vFL}")
a(f"v_add_u32 v{vPF}, {F_PQ}, v{vPF}")
a(f"s_lshl1_add_u32 s{sT0}, s{sT}, s{sMH}")
a(f"s_lshl_b32 s{sT0}, s{sT0}, 2")
a(f"v_add_u32 v{vPQ}, s{sT0}, v{vFL}")
a(f"s_lshl_b32 s{sT0}, s{sT}, 1")
a(f"s_lshl_b32 s{sT0}, s{sMH}, s{sT0}")
a(f"s_lshl1_add_u32 s{sT1}, s{sMH}, 1")
a(f"s_mul_i32 s{sT2}, s61, 6")
a(f"s_lshl_b32 s{sT1}, s{sT1}, s{sT2}")
a(f"s_or_b32 s{sT2}, s{sT0}, s{sT1}")
a(f"s_bitcmp1_b32 s{sINF}, 7")
a(f"s_cselect_b32 s{sNQ}, s{sT0}, s{sT2}")
a(f"s_cselect_b32 s{sNV}, s{sT0}, s{sT1}")
a(f"s_lshl_b32 s{sNV}, s{sNV}, 8")
a(f"s_or_b32 s{sNQ}, s{sNQ}, 0x10000")
a(f"s_and_b32 s64, s{sRB}, 1")
a(f"s_lshl1_add_u32 s65, s64, s{sMH}")
a(f"s_mul_i32 s{sT0}, s65, {2*40960}")
a(f"s_mul_i32 s{sT1}, s{sGRP}, {OGRP}")
a(f"s_add_u32 s{sT0}, s{sT0}, s{sT1}")
a(f"s_lshl_b32 s{sT1}, s{sCG}, 11")
a(f"s_add_u32 s{sT0}, s{sT0}, s{sT1}")
a(f"s_add_u32 s{sT0}, s{sT0}, {UWS}")
a(f"s_mul_i32 s{sT1}, s{sE}, 20480")
a(f"s_lshl3_add_u32 s{sT1}, s62, s{sT1}")
a(f"s_add_u32 s{sT1}, s{sT1}, s{sT0}")
a(f"v_lshl_add_u32 v{vOA}, v{vLANE}, 4, s{sT1}")
a(f"s_lshl_b32 s{sT1}, s60, 8")
a(f"s_lshl3_add_u32 s{sT1}, s61, s{sT1}")
a(f"s_add_u32 s{sT1}, s{sT1}, 20480")
a(f"s_add_u32 s{sT1}, s{sT1}, s{sT0}")
a(f"v_lshrrev_b32 v{vT0}, 1, v{vG}")
a(f"v_mul_u32_u24 v{vT0}, {40960 - 2048}, v{vT0}")
a(f"v_lshl_add_u32 v{vT0}, v{vG}, 10, v{vT0}")
a(f"v_lshl_add_u32 v{vT0}, v{vN}, 4, v{vT0}")
a(f"v_add_u32 v{vOX}, s{sT1}, v{vT0}")
a(f"s_mul_i32 s66, s{sGRP}, {XGRP}")
a(f"s_add_u32 s66, s66, {XLW}")
a(f"s_lshl_b32 s{sT0}, s65, 8")
a(f"s_lshl_b32 s{sT1}, s{sE}, 7")
a(f"s_add_u32 s{sT0}, s{sT0}, s{sT1}")
a(f"s_lshl1_add_u32 s{sT1}, s{sCG}, s62")
a(f"s_lshl2_add_u32 s{sT0}, s{sT1}, s{sT0}")
a(f"s_add_u32 s{sT0}, s{sT0}, s66")
a(f"s_add_u32 s{sFLO}, s{sT0}, {XFLG}")
a(f"s_cmp_ge_u32 s{sCG}, 5")
a(f"s_cselect_b32 s{sT0}, 3, -1")
a(f"s_add_u32 s{sT0}, s{sT0}, s{sCGP}")
a(f"s_add_u32 s{sT0}, s{sT0}, s62")
a(f"s_and_b32 s{sT0}, s{sT0}, 7")
a(f"s_lshl3_add_u32 s{sT0}, s64, s{sT0}")
a(f"s_lshl1_add_u32 s{sT0}, s{sT0}, s62")
a(f"s_lshl1_add_u32 s{sT0}, s{sT0}, s{sMH}")
a(f"s_xor_b32 s{sT1}, s{sT0}, 2")
a(f"s_mul_i32 s{sT0}, s{sT0}, 3072")
a(f"s_mul_i32 s{sT1}, s{sT1}, 3072")
a(f"s_add_u32 s{sT0}, s{sT0}, s66")
a(f"s_add_u32 s{sT1}, s{sT1}, s66")
a(f"v_lshl_add_u32 v{vXR}, v{vLANE}, 4, s{sT0}")
a(f"v_lshl_add_u32 v{vXS}, v{vLANE}, 4, s{sT1}")
a("s_waitcnt lgkmcnt(0)")
a(f"s_mul_i32 s{sTAG}, s{sTAG}, 1664525")
a(f"s_add_u32 s{sTAG}, s{sTAG}, 1013904223")
trace_at(0)

def gemm_loop(js, tag):
    L = f"L_gemm_{tag}"
    def reads(b):
        w = lambda s_: [f"ds_read_b64_tr_b16 {v(WF+12*b+4*s_+2*e,2)}, v{vWA} offset:{WHALF*b + 1024*s_ + 512*e}" for e in range(2)]
        x = lambda j: [f"ds_read_b128 {v(XF+20*b+4*j,4)}, v{vXA+b} offset:{2048*j}"]
        out = x(js[0]) + w(1) + w(2) + x(js[1]) + w(0)
        for j in js[2:]: out += x(j)
        return out
    def mf(b):
        out = []
        for j in js:
            for s_ in (1, 2, 0):
                if s_ == 0 and j == 0: continue
                acc = v(ACC + 20 * s_ + 4 * j, 4); w_, x_ = v(WF+12*b+4*s_, 4), v(XF+20*b+4*j, 4)
                out.append(f"{MF} {acc}, {x_ if s_ == 2 else w_}, {w_ if s_ == 2 else x_}, {acc}")
        return out
    mh = int(js[0] == 1)
    def phase(b, pend, kind):
        m = mf(b)
        gaps = [[] for _ in m]
        k = OPT["r0"]
        def lateprio():
            lp = a.newlabel("Llp")
            return [f"s_bitcmp1_b32 s{sINF}, 7", "s_setprio 3", f"s_cbranch_scc1 {lp}", "s_setprio 1", f"{lp}:"]
        if kind == 0 and b == 1:
            k = OPT["bk"]
            gaps[k] = ["s_barrier"]
            gaps[0] = [f"s_add_u32 s{sSLOT}, s{sSLOT}, {SLOT}", f"s_cmp_eq_u32 s{sSLOT}, {3*SLOT}", f"s_cselect_b32 s{sSLOT}, 0, s{sSLOT}",
                       f"v_add_u32 v{vXA}, s{sSLOT}, v{vXB}", f"v_add_u32 v{vWA}, s{sSLOT}, v{vWB}"] + gaps[0]
            gaps[k] += [f"s_setprio {OPT['pa%d' % mh]}"]
            gaps[k + 2] += [f"v_xor_b32 v{vXA+1}, 64, v{vXA}"]
            gaps[-3] += [f"s_add_u32 s{sPH}, s{sPH}, 1"]
            gaps[-2] += [f"s_cmp_lt_u32 s{sPH}, 9"]
        elif kind == 0: gaps[0] = [f"s_setprio {OPT['pb%d' % mh]}"]
        elif kind == 1: gaps[0] = lateprio() if OPT["lrun"] >= 2 else [f"s_setprio {OPT['pb%d' % mh]}"]
        elif OPT["lrun"] == 1: gaps[0] = lateprio()
        while pend:
            gaps[k] += pend[:OPT["rpg"]]; pend = pend[OPT["rpg"]:]; k += 1
        if kind == 0 and b == 1: gaps[-1] += [f"s_cbranch_scc1 {L}"]
        a("s_waitcnt lgkmcnt(0)")
        for k in range(len(m)):
            a(m[k])
            if b == 1 and k == 8 and OPT["ltr"]: trace()
            for x in gaps[k]: a(x)
    a.label(f"{L}0")
    a("s_barrier")
    trace()
    if mh: pp(20, 8)
    for r in reads(0): a(r)
    if mh and not OPT["gsolo"]:
        a(f"s_cmp_lg_u32 s{sWV}, 11")
        a(f"s_cbranch_scc1 {L}")
        if OPT.get("probe"):
            a(f"s_lshl_b32 s{sT0}, s2, 2"); a(f"s_add_u32 s{sT0}, s{sT0}, {FSUM + 1024}")
            a(f"v_mov_b32 v{vT0}, s{sT0}"); a(f"v_mov_b32 v{vT1}, s72")
            a(f"global_store_dword v{vT0}, v{vT1}, {WSP} sc1")
        cell_init()
        tlb_touch()
    a.label(L)
    phase(0, reads(1), 0)
    phase(1, reads(0), 0)
    phase(0, reads(1), 1)
    phase(1, [], 2)
    if not mh: a("s_branch L_gdone")
a(f"s_cmp_lg_u32 s{sMH}, 0")
a("s_cbranch_scc1 L_gemm_40")
gemm_loop([0, 1, 2, 3, 4], "5")
gemm_loop([1, 2, 3, 4], "4")
a.label("L_gdone")
trace()
if OPT["gsolo"]: finish()
pp(2, 8)
QOP, KOP, VM, VXX, XG, BF = 68, 84, 104, 114, 124, 136
SO, SP = 8, 24
XR, M, PP, OM, OX, OPK, XP = 68, 80, 84, 8, 24, 40, 100
AQ, AK, AV = ACC, ACC + 20, ACC + 40
LR = [XG, XG+1, XG+2, XG+4, XG+5, XG+6, XG+8, XG+9]
LA = [LR[2*h] for h in range(4)]; LB = [LR[2*h+1] for h in range(4)]
def bf_setup():
    a(f"s_or_b32 s{sT0}, s{sRB}, s{sMH}")
    a(f"s_cmp_eq_u32 s{sT0}, 0")
    a(f"s_cselect_b32 s{sT0}, {hex(NEG)}, 0")
    for r in range(4): a(f"v_add_f32 v{BF+r}, s{sT0}, v{BP+r}")
def select(h):
    a(f"v_max3_f32 v{LA[h]}, v{SO+4*h}, v{SO+4*h+1}, v{SP+4*h}")
    a(f"v_max3_f32 v{LB[h]}, v{SO+4*h+2}, v{SO+4*h+3}, v{SP+4*h+2}")
    a(f"v_max_f32 v{LA[h]}, v{LA[h]}, v{SP+4*h+1}")
    a(f"v_max_f32 v{LB[h]}, v{LB[h]}, v{SP+4*h+3}")
def get_mode(vt=vT0):
    a(f"v_readlane_b32 s{sMODE}, v{vt}, 16")
    set_mode()
a(f"s_bitcmp0_b32 s{sINF}, 7")
a("s_cbranch_scc1 L_full")
a("s_setprio 3")
for j in (4, 3, 2, 1):
    pack(KOP + 4 * j, AK + 4 * j)
    a(f"ds_write_b64 v{vEXW}, {v(KOP+4*j,2)} offset:{(9+j)*512}")
a(f"s_cmp_lg_u32 s{sMH}, 0")
a("s_cbranch_scc1 L_l_nk0")
pack(KOP, AK)
a(f"ds_write_b64 v{vEXW}, {v(KOP,2)} offset:{9*512}")
a.label("L_l_nk0")
for i in range(4):
    pack(QOP + 4 * i, AQ + 4 * (i + 1))
    a(f"ds_write_b64 v{vEXW}, {v(QOP+4*i,2)} offset:{(i+1)*512}")
lds_set(F_PQ, 1, vaddr=vPQ, vt=vT1)
for i in range(4):
    for e in range(2): a(f"v_and_b32 v{QOP+4*i+e}, v{vQM}, v{QOP+4*i+e}")
for i in (3, 2, 1, 0):
    a(f"{MH} {v(SO+4*i,4)}, {v(KOP+4*(i+1),2)}, {v(QOP+4*i,2)}, {v(BO,4)}")
    if i: a(f"{MH} {v(SP+4*i,4)}, {v(KOP+4*i,2)}, {v(QOP+4*i,2)}, {v(BP,4)}")
bf_setup()
mask_wait(vPF, sNQ)
get_mode()
a(f"s_cmp_eq_u32 s{sMH}, 0")
a("s_cbranch_scc1 L_l_k0")
a(f"ds_read_b64 {v(KOP,2)}, v{vEXW} offset:{9*512}")
a.label("L_l_k0")
for r in (3, 7, 11): a(f"v_mov_b32 v{XG+r}, s{sTAG}")
for h in (3, 2): select(h)
a("s_waitcnt lgkmcnt(0)")
a(f"{MH} {v(SP,4)}, {v(KOP,2)}, {v(QOP,2)}, {v(BF,4)}")
select(1)
pack(VM, AV + 16)
a(f"ds_write_b64 v{vEXW}, {v(VM,2)} offset:{(18+4)*512}")
select(0)
dual(lambda f: [a(f"global_store_dwordx4 v{vXS}, {v(XG+4*q,4)}, {LBP} offset:{1024*q}{f}") for q in (2, 1, 0)])
trace()
for j in (3, 2, 1):
    pack(VM + 2 * (4 - j), AV + 4 * j)
    a(f"ds_write_b64 v{vEXW}, {v(VM+2*(4-j),2)} offset:{(18+j)*512}")
a(f"s_cmp_lg_u32 s{sMH}, 0")
a("s_cbranch_scc1 L_l_nv0")
pack(VM + 8, AV)
a(f"ds_write_b64 v{vEXW}, {v(VM+8,2)} offset:{18*512}")
lds_set(F_PV, 1, vaddr=vPQ, vt=vT1)
a("s_branch L_l_v0")
a.label("L_l_nv0")
lds_set(F_PV, 1, vaddr=vPQ, vt=vT1)
mask_wait(vPF, sNV)
a(f"ds_read_b64 {v(VM+8,2)}, v{vEXW} offset:{18*512}")
a.label("L_l_v0")
a(f"s_mov_b32 s{sSPIN}, 0")
a.label("L_xp")
for q in range(3): a(f"global_load_dwordx4 {v(XR+4*q,4)}, v{vXR}, {LBP} offset:{1024*q} sc1")
a("s_waitcnt vmcnt(0)")
a(f"v_cmp_ne_u32 vcc, s{sTAG}, v{XR+3}")
a(f"v_cmp_ne_u32 s[60:61], s{sTAG}, v{XR+7}")
a(f"v_cmp_ne_u32 s[62:63], s{sTAG}, v{XR+11}")
a("s_or_b64 vcc, vcc, s[60:61]")
a("s_or_b64 vcc, vcc, s[62:63]")
a("s_cbranch_scc0 L_xpd")
spin_tail("L_xp")
a.label("L_xpd")
trace()
for r in LR: a(f"v_add_f32 v{r}, v{r}, v{r - XG + XR}")
a("s_branch L_soft")
a.label("L_full")
pack(KOP + 16, AK + 16); pack(VM, AV + 16)
a(f"s_cmp_lg_u32 s{sMH}, 0")
a("s_cbranch_scc1 L_f_nb")
a(f"ds_write_b64 v{vBND}, {v(KOP+16,2)}")
a(f"ds_write_b64 v{vBND}, {v(VM,2)} offset:512")
pack(KOP, AK); pack(VM + 8, AV)
a.label("L_f_nb")
lds_set(F_PQ, 1, vaddr=vPQ, vt=vT1)
for i in range(4):
    pack(QOP + 4 * i, AQ + 4 * (i + 1))
    a(f"v_mov_b32 v{QOP+4*i+2}, 0"); a(f"v_mov_b32 v{QOP+4*i+3}, 0")
for j in (1, 2, 3): pack(KOP + 4 * j, AK + 4 * j)
bf_setup()
mask_wait(vPF, sNQ)
get_mode()
trace()
a(f"s_cmp_eq_u32 s{sMH}, 0")
a("s_cbranch_scc1 L_f_nr")
a(f"ds_read_b64 {v(KOP,2)}, v{vBND}")
a(f"ds_read_b64 {v(VM+8,2)}, v{vBND} offset:512")
a.label("L_f_nr")
a(f"s_mov_b64 exec, s[{sRM}:{sRM+1}]")
for i in range(4): a(f"ds_read_b64 {v(QOP+4*i+2,2)}, v{vEXW} offset:{(i+1)*512}")
a("s_mov_b64 exec, -1")
for j in range(5): a(f"ds_read_b64 {v(KOP+4*j+2,2)}, v{vEXW} offset:{(9+j)*512}")
for j in (1, 2, 3): pack(VM + 2 * (4 - j), AV + 4 * j)
for i in range(4):
    a(f"s_waitcnt lgkmcnt({3-i})")
    a(f"{MF} {v(SO+4*i,4)}, {v(KOP+4*(i+1),4)}, {v(QOP+4*i,4)}, {v(BO,4)}")
    a(f"{MF} {v(SP+4*i,4)}, {v(KOP+4*i,4)}, {v(QOP+4*i,4)}, {v(BF if i == 0 else BP,4)}")
mask_wait(vPF, sNV)
for j in range(5): a(f"ds_read_b64 {v(VXX+2*(4-j),2)}, v{vVX} offset:{(18+j)*512}")
for h in range(4): select(h)
trace()
a.label("L_soft")
for h in range(4): a(f"v_max_f32 v{M+h}, v{LA[h]}, v{LB[h]}")
def xreduce(op, mid):
    a(f"v_permlane32_swap_b32 v{M}, v{M+1}")
    a(f"v_permlane32_swap_b32 v{M+2}, v{M+3}")
    a(f"{op} v{M}, v{M}, v{M+1}")
    a(f"{op} v{M+2}, v{M+2}, v{M+3}")
    a(f"v_permlane16_swap_b32 v{M}, v{M+2}")
    a(f"{op} v{M}, v{M}, v{M+2}")
    mid(M)
    a(f"v_mov_b32 v{M+2}, v{M}")
    a(f"v_permlane16_swap_b32 v{M}, v{M+2}")
    a(f"v_mov_b32 v{M+1}, v{M}")
    a(f"v_mov_b32 v{M+3}, v{M+2}")
    a(f"v_permlane32_swap_b32 v{M}, v{M+1}")
    a(f"v_permlane32_swap_b32 v{M+2}, v{M+3}")
xreduce("v_max_f32", lambda r: a(f"v_mul_f32 v{r}, s{sSC}, v{r}"))
for h in range(4):
    a(f"v_fma_f32 v{LA[h]}, v{LA[h]}, s{sSC}, -v{M+h}")
    a(f"v_fma_f32 v{LB[h]}, v{LB[h]}, s{sSC}, -v{M+h}")
for h in range(4):
    a(f"v_exp_f32 v{LA[h]}, v{LA[h]}")
    a(f"v_exp_f32 v{LB[h]}, v{LB[h]}")
for h in range(4): a(f"v_add_f32 v{M+h}, v{LA[h]}, v{LB[h]}")
xreduce("v_add_f32", lambda r: a(f"v_rcp_f32 v{r}, v{r}"))
a("s_waitcnt lgkmcnt(0)")
lds_add(F_EXR)
for h in range(4):
    a(f"v_mul_f32 v{LA[h]}, v{LA[h]}, v{M+h}")
    a(f"v_mul_f32 v{LB[h]}, v{LB[h]}, v{M+h}")
    a(f"v_cvt_pk_bf16_f32 v{LA[h]}, v{LA[h]}, v{LA[h]}")
    a(f"v_cvt_pk_bf16_f32 v{LB[h]}, v{LB[h]}, v{LB[h]}")
    a(f"v_and_b32 v{PP+4*h}, v{LA[h]}, v{MK}")
    a(f"v_and_b32 v{PP+4*h+1}, v{LB[h]}, v{MK+1}")
    a(f"v_and_b32 v{PP+4*h+2}, v{LA[h]}, v{MK+2}")
    a(f"v_and_b32 v{PP+4*h+3}, v{LB[h]}, v{MK+3}")
    if h > 0: a(f"{MF} {v(OM+4*(h-1),4)}, {v(VM+2*(4-h),4)}, {v(PP+4*(h-1),4)}, 0")
a(f"v_add_u32 v{vEXW}, 40960, v{vOA}")
a(f"{MF} {v(OM+12,4)}, {v(VM,4)}, {v(PP+12,4)}, 0")
a(f"s_bitcmp1_b32 s{sINF}, 7")
a("s_cbranch_scc1 L_norem")
for i in range(4): a(f"{MF} {v(OX+4*i,4)}, {v(VXX+2*(3-i),4)}, {v(PP+4*i,4)}, 0")
a.label("L_norem")
for i in range(4): pack(OPK + 2 * i, OM + 4 * i)
a(f"s_mov_b64 exec, s[{sOWN}:{sOWN+1}]")
dual(lambda f: [a(f"global_store_dwordx2 v{vOA if i < 2 else vEXW}, {v(OPK+2*i,2)}, {LBP} offset:{1024*(i&1)}{f}") for i in range(4)])
a("s_mov_b64 exec, -1")
a(f"s_bitcmp1_b32 s{sINF}, 7")
a("s_cbranch_scc1 L_norem2")
pack(XP, OX)
a("s_mov_b32 exec_lo, 0xffff0000")
pack(XP, OX + 4)
a("s_mov_b32 exec_lo, 0")
pack(XP, OX + 8)
a("s_mov_b32 exec_hi, 0xffff0000")
pack(XP, OX + 12)
a("s_mov_b64 exec, -1")
dual(lambda f: a(f"global_store_dwordx2 v{vOX}, {v(XP,2)}, {LBP}{f}"))
a.label("L_norem2")
trace_at(16)
pp(3, 4)

ACCB, OF, WB, GQ = 8, 28, 68, 128
NB = 15
vWM, vO4, vPL, vRD, vFM, vGAD, vSTG = 148, 158, 159, 160, 161, 162, 164
vOUT = [165, 166, vT3]
sOP = 60
vWF = 149
def tail_setup(img, red):
    a(f"v_bfe_u32 v{vT1}, v{vLANE}, 2, 2")
    a(f"v_lshl_add_u32 v{vT1}, v{vG}, 2, v{vT1}")
    a(f"v_mul_u32_u24 v{vT1}, 160, v{vT1}")
    a(f"v_and_b32 v{vT2}, 3, v{vLANE}")
    a(f"v_lshl_add_u32 v{vT1}, v{vT2}, 3, v{vT1}")
    a(f"s_mul_i32 s{sT0}, s{sE}, 51200")
    a(f"s_sub_u32 s{sT0}, {img + 51200}, s{sT0}")
    a(f"v_add_u32 v{vWM}, s{sT0}, v{vT1}")
    a(f"s_mul_i32 s59, s{sMT}, 2560")
    a(f"s_add_u32 s59, s59, {img + 20*5120}")
    a(f"s_lshl_b32 s{sT0}, s{sE}, 2")
    a(f"v_add_u32 v{vWF}, s{sT0}, v{vFL}")
    a(f"s_and_b32 s{sT2}, s{sOR}, 3")
    a(f"s_lshr_b32 s{sT0}, s{sMT}, 1")
    a(f"s_lshl1_add_u32 s{sT0}, s{sT2}, s{sT0}")
    a(f"s_lshl1_add_u32 s{sT0}, s{sT0}, s{sE}")
    a(f"s_mul_i32 s{sT0}, s{sT0}, 20480")
    a(f"s_and_b32 s{sT1}, s{sMT}, 1")
    a(f"s_lshl_b32 s{sT1}, s{sT1}, 10")
    a(f"s_add_u32 s{sT0}, s{sT0}, s{sT1}")
    a(f"s_mul_i32 s{sT1}, s{sGRP}, {OGRP}")
    a(f"s_add_u32 s{sT0}, s{sT0}, s{sT1}")
    a(f"s_add_u32 s{sT0}, s{sT0}, {UWS + 4096}")
    a(f"v_lshl_add_u32 v{vO4}, v{vLANE}, 4, s{sT0}")
    for q in range(1, 3):
        a(f"s_add_u32 s{sOP+2*q}, s{sLB}, {8192*q}")
        a(f"s_addc_u32 s{sOP+2*q+1}, s{sLB+1}, 0")
    a(f"s_mul_i32 s{sT0}, s{sGRP}, {XGRP}")
    a(f"s_lshl_b32 s{sT2}, s{sT2}, 8")
    a(f"s_add_u32 s{sT0}, s{sT0}, s{sT2}")
    a(f"s_add_u32 s{sT0}, s{sT0}, {XLW + XFLG}")
    a(f"v_lshl_add_u32 v{vPL}, v{vLANE}, 2, s{sT0}")
    a(f"s_mul_i32 s58, s{sMT}, 5120")
    a(f"s_add_u32 s58, s58, {red}")
    a(f"v_lshl_add_u32 v{vRD}, v{vLANE}, 4, s58")
    a(f"s_lshl_b32 s{sT0}, s{sMT}, 2")
    a(f"v_add_u32 v{vFM}, s{sT0}, v{vFL}")
    a(f"v_mul_u32_u24 v{vSTG}, 160, v{vN}")
    a(f"v_lshl_add_u32 v{vSTG}, v{vG}, 3, v{vSTG}")
tail_setup(IMG_B, RED_B)
a(f"v_mov_b32 v{vT0}, s{sFLO}")
a(f"v_mov_b32 v{vT1}, s{sTAG}")
a("s_mov_b64 exec, 1")
a("s_waitcnt vmcnt(0)")
dual(lambda f: a(f"global_store_dword v{vT0}, v{vT1}, {LBP}{f}"))
a("s_mov_b64 exec, -1")
a.label("L_tail")
trace_at(20)
a(f"s_lshl2_add_u32 s{sT0}, s{sOR}, s{sMT}")
a(f"s_mul_i32 s{sT0}, s{sT0}, {16*1280}")
a(f"s_mul_i32 s{sT1}, s{sOC}, 160")
a(f"s_add_u32 s{sT0}, s{sT0}, s{sT1}")
for i in range(3): t10(vOUT[i], 64 * i, f"s{sT0}", vT1)
loads = [f"global_load_dwordx4 {v(OF+4*c,4)}, v{vO4}, {LBP if c < 4 else 's[%d:%d]' % (sOP+2*(c//4), sOP+2*(c//4)+1)} offset:{2048*(c%4) - 4096} sc1" for c in range(10)]
reads, gate, work, users = [], [], [], []
fc = 0
for c in range(10):
    for T in range(5):
        b = WB + 4 * (fc % NB)
        g = users[fc - NB] if fc >= NB else -1
        for e in range(2):
            reads.append(f"ds_read_b64_tr_b16 {v(b+2*e,2)}, v{vWM} offset:{5120*c + 2560*e + 32*T}"); gate.append(g)
        txt = f"{MF} {v(ACCB+4*T,4)}, {v(b,4)}, {v(OF+4*c,4)}, {v(ACCB+4*T,4) if c else 0}"
        if T == 0: txt = f"s_waitcnt vmcnt({9 - c})\n" + txt
        users.append(len(work)); work.append((len(reads) - 1, txt)); fc += 1
lds_wait(F_WOL, 4, vaddr=vWF, sleep=1)
trace()
PRE = 2 * NB
for i in range(PRE):
    a(reads[i])
    if i >= 12 and i % 4 == 0: a("s_waitcnt lgkmcnt(8)")
a(f"s_mul_i32 exec_hi, s{sE}, 0xfffff")
a("s_mov_b32 exec_lo, 0xfffff")
a(f"s_mov_b32 s{sSPIN}, 0")
a.label("L_op")
a(f"global_load_dword v{vT0}, v{vPL}, {LBP} sc1")
a("s_waitcnt vmcnt(0)")
a(f"v_cmp_ne_u32 vcc, s{sTAG}, v{vT0}")
a("s_cbranch_vccz L_opd")
spin_tail("L_op", OPT["osleep"])
a.label("L_opd")
a("s_mov_b64 exec, -1")
for x in loads: a(x)
trace()
pp(7, 4)
a(f"s_lshl_b32 s{sT0}, s{sMT}, 6")
a(f"s_add_u32 s{sT0}, s{sT0}, {GOM}")
a(f"v_lshl_add_u32 v{vT1}, v{vN}, 2, s{sT0}")
lds_wait(F_GRD, 1)
a(f"ds_read2st64_b32 {v(vGAD,2)}, v{vT1} offset0:0 offset1:1")
a(f"s_cmp_lg_u32 s{sE}, 0")
a("s_cbranch_scc1 L_nogq")
a(f"v_add_u32 v{vT1}, s59, v{vSTG}")
for T in range(5): a(f"ds_read_b64 {v(ACCB+2*T,2)}, v{vT1} offset:{32*T}")
for i in range(10):
    if i % 2 == 0: a(f"s_waitcnt lgkmcnt({4 - i//2})")
    a(f"v_lshlrev_b32 v{GQ+2*i}, 16, v{ACCB+i}")
    a(f"v_and_b32 v{GQ+2*i+1}, 0xffff0000, v{ACCB+i}")
    a(f"v_mul_f32 v{GQ+2*i}, v{vGAD+1}, v{GQ+2*i}")
    a(f"v_mul_f32 v{GQ+2*i+1}, v{vGAD+1}, v{GQ+2*i+1}")
a.label("L_nogq")
a("s_waitcnt lgkmcnt(0)")
a(f"v_add_u32 v{vSTG}, s58, v{vSTG}")
lds_pipe(reads, work, gate, maxfly=14, pre=PRE, eager=True)
trace()
pp(8, 4)
a(f"s_cmp_lg_u32 s{sE}, 0")
a("s_cbranch_scc1 L_noy")
a(f"v_bfe_u32 v{vT1}, v{vLANE}, 2, 3")
a(f"v_and_b32 v{vT1}, 6, v{vT1}")
a(f"v_bfe_u32 v{vT2}, v{vLANE}, 1, 1")
a(f"s_lshl_b32 s{sT0}, s{sMT}, 1")
a(f"v_or_b32 v{vT2}, s{sT0}, v{vT2}")
a(f"v_xor_b32 v{vT1}, v{vT1}, v{vT2}")
a(f"v_lshlrev_b32 v{vT1}, 4, v{vT1}")
a(f"v_lshrrev_b32 v{vT2}, 2, v{vLANE}")
a(f"v_lshl_add_u32 v{vT1}, v{vT2}, 7, v{vT1}")
a(f"v_and_b32 v{vT2}, 1, v{vLANE}")
a(f"v_lshl_add_u32 v{vT1}, v{vT2}, 3, v{vT1}")
for r in range(20): a(f"v_mul_f32 v{ACCB+r}, v{vGAD}, v{ACCB+r}")
a(f"v_mov_b32 v{vGAD}, 1.0")
lds_wait(F_YLD, 2)
trace()
for T in range(5): a(f"ds_read_b64_tr_b16 {v(48+2*T,2)}, v{vT1} offset:{YT + 2048*T}")
for i in range(10):
    if i % 2 == 0: a(f"s_waitcnt lgkmcnt({4 - i//2})")
    a(f"v_lshlrev_b32 v58, 16, v{48+i}")
    a(f"v_and_b32 v59, 0xffff0000, v{48+i}")
    a(f"v_fmac_f32 v{ACCB+2*i}, v58, v{GQ+2*i}")
    a(f"v_fmac_f32 v{ACCB+2*i+1}, v59, v{GQ+2*i+1}")
a.label("L_noy")
QQ = 28
a(f"v_mov_b32 v{vT0}, 1")
a("s_mov_b64 exec, 1")
a(f"ds_add_rtn_u32 v{vT0}, v{vFM}, v{vT0} offset:{F_RED}")
a("s_mov_b64 exec, -1")
a(f"s_mov_b32 s{sSPIN}, 0")
a.label("L_fb")
a(f"ds_read_b32 v{vT1}, v{vFM} offset:{F_QRD}")
for T in range(5): a(f"ds_read_b128 {v(QQ+4*T,4)}, v{vRD} offset:{1024*T}")
a("s_waitcnt lgkmcnt(5)")
a(f"v_readfirstlane_b32 s{sT2}, v{vT0}")
a(f"v_readfirstlane_b32 s{sT0}, v{vT1}")
a(f"s_cmp_eq_u32 s{sT2}, 0")
a("s_cbranch_scc1 L_first")
a(f"s_cmp_lg_u32 s{sT0}, 0")
a("s_cbranch_scc1 L_fin")
a("s_waitcnt lgkmcnt(0)")
spin_tail("L_fb", 1)
a.label("L_fin")
trace_at(26)
for T in range(5):
    a(f"s_waitcnt lgkmcnt({4-T})")
    for r in range(4): a(f"v_fmac_f32 v{QQ+4*T+r}, v{vGAD}, v{ACCB+4*T+r}")
    pack(48 + 2 * T, QQ + 4 * T)
for T in range(5): a(f"ds_write_b64 v{vSTG}, {v(48+2*T,2)} offset:{32*T}")
for i in range(3): a(f"ds_read_b128 {v(72+4*i,4)}, v{vRD} offset:{1024*i}")
for i in range(3):
    a(f"s_waitcnt lgkmcnt({2-i})")
    if i == 2: a("s_mov_b64 exec, 0xffffffff")
    a(f"global_store_dwordx4 v{vOUT[i]}, {v(72+4*i,4)}, s[{sOUT}:{sOUT+1}]")
trace()
finish()
a.label("L_first")
for r in range(20): a(f"v_mul_f32 v{ACCB+r}, v{vGAD}, v{ACCB+r}")
lds_wait(F_EXR, 8)
for T in range(5): a(f"ds_write_b128 v{vRD}, {v(ACCB+4*T,4)} offset:{1024*T}")
lds_set(F_QRD, 1, vaddr=vFM)
trace_at(28)
finish()

a.label("L_awave")
if OPT["gsolo"]:
    a("s_waitcnt lgkmcnt(0)"); a("s_barrier"); finish()
SRD_H = 48
sA, sC0, sHB, sUB, sNST, sAIN, sBIN, sOWNR, sDV = 40, 41, 42, 43, 44, 46, 47, 52, 53
a(f"s_sub_u32 s{sA}, s{sWV}, 4")
if OPT["ktr"]: trace()
a(f"s_load_dword s{sTAG}, {WSP}, {EPOCH}")
a("s_setprio 2")
a(f"s_and_b32 s{sMT}, s{sA}, 3")
a(f"s_lshr_b32 s{sE}, s{sA}, 2")
a(f"s_sub_u32 s{sT0}, s{sI}, 20")
a(f"s_mul_i32 s{sT1}, s{sT0}, 43")
a(f"s_lshr_b32 s{sT1}, s{sT1}, 7")
a(f"s_mul_i32 s{sC0}, s{sT0}, 7")
a(f"s_sub_u32 s{sC0}, s{sC0}, s{sT1}")
a(f"s_mul_i32 s{sT1}, s{sT1}, 3")
a(f"s_sub_u32 s{sT1}, s{sT0}, s{sT1}")
a(f"s_cmp_eq_u32 s{sT1}, 2")
a(f"s_cselect_b32 s{sNCH}, 6, 7")
a(f"s_mul_i32 s{sT1}, s{sGRP}, 80")
a(f"s_add_u32 s{sC0}, s{sC0}, s{sT1}")
a(f"s_cmp_lt_u32 s{sA}, s{sNCH}")
a(f"s_cselect_b32 s{sOWNR}, 1, 0")
a(f"s_cselect_b32 s{sT2}, s{sA}, 0")
a(f"s_cselect_b32 s{sNST}, 7, s{sNCH}")
a(f"s_cselect_b32 s54, 0, {7*64}")
a(f"s_add_u32 s{sC0}, s{sC0}, s{sT2}")
a(f"s_mul_i32 s{sHB}, s{sT2}, {HCH}")
a(f"s_mul_i32 s{sUB}, s{sT2}, {ULCH}")
a(f"s_add_u32 s{sUB}, s{sUB}, {UL}")
a(f"s_lshl_b32 s55, s{sC0}, 12")
a(f"s_add_u32 s{SRD_H}, s{sSSM}, s55")
a(f"s_addc_u32 s{SRD_H+1}, s{sSSM+1}, 0")
a(f"s_and_b32 s{SRD_H+1}, s{SRD_H+1}, 0xffff")
a(f"s_mov_b32 s{SRD_H+2}, 4096")
a(f"s_mov_b32 s{SRD_H+3}, 0x00020000")
vL16, vKA, vVA, vUW, vUR, vUG, vEE, vEP = 8, 9, 11, 12, 13, 14, 148, 149
vUS, vUD, vHW, vYG, vYS, vCEL, vPBA, vPBF = 150, 151, 152, 153, 159, 160, 161, 162
AB, vBB = 154, 158
CACC, CA, CB0, CB1, AD, SEL = 16, 48, 80, 112, 144, 164
WK = 16
a(f"s_lshr_b32 s{sT0}, s{sC0}, 1")
a(f"s_lshl_b32 s{sT0}, s{sT0}, 2")
a(f"s_load_dword s{sDV}, s[{sDD}:{sDD+1}], s{sT0}")
a(f"v_lshlrev_b32 v{vL16}, 4, v{vLANE}")
a(f"v_lshl_add_u32 v{vT1}, v{vN}, 3, v{vG}")
a(f"v_lshlrev_b32 v{vT1}, 8, v{vT1}")
a(f"v_add_u32 v{vT1}, {KT}, v{vT1}")
a(f"s_lshl_b32 s{sT0}, s{sA}, 1")
a(f"v_xor_b32 v{vT2}, s{sT0}, v{vN}")
a(f"v_lshl_add_u32 v{vKA}, v{vT2}, 4, v{vT1}")
a(f"v_add_u32 v{vT2}, 15, v{vN}")
a(f"v_and_b32 v{vT2}, 15, v{vT2}")
a(f"v_xor_b32 v{vT2}, s{sT0}, v{vT2}")
a(f"v_lshl_add_u32 v{vKA+2}, v{vT2}, 4, v{vT1}")
a(f"v_xor_b32 v{vKA+1}, 16, v{vKA}")
a(f"v_xor_b32 v{vKA+3}, 16, v{vKA+2}")
a(f"s_lshl_b32 s{sT0}, s58, 16")
a(f"s_lshl_b32 s{sT1}, s{sRB}, 8")
a(f"s_add_u32 s{sT0}, s{sT0}, s{sT1}")
a(f"s_add_u32 s{sT0}, s{sT0}, {UWS}")
a(f"v_lshlrev_b32 v{vT1}, 12, v{vG}")
a(f"v_lshl_add_u32 v{vT1}, v{vN}, 4, v{vT1}")
a(f"v_add_u32 v{vUG}, s{sT0}, v{vT1}")
for q in range(1, 4):
    a(f"s_add_u32 s{58+2*q}, s{sWS}, {16384*q}") if q != 3 else a(f"s_add_u32 s66, s{sWS}, {16384*q}")
    a(f"s_addc_u32 s{59+2*q}, s{sWS+1}, 0") if q != 3 else a(f"s_addc_u32 s67, s{sWS+1}, 0")
UBASE = [WSP, "s[60:61]", "s[62:63]", "s[66:67]"]
a(f"s_lshl4_add_u32 s{sT0}, s58, s{sRB}")
a(f"s_lshl_b32 s{sT0}, s{sT0}, 7")
a(f"s_add_u32 s{sT0}, s{sT0}, {EU}")
a(f"v_add_u32 v{vT1}, v{vN}, v{vG}")
a(f"v_lshl_add_u32 v{vEE}, v{vT1}, 3, s{sT0}")
a(f"s_lshr_b32 s{sT0}, s{sC0}, 4")
a(f"s_lshl_b32 s{sT0}, s{sT0}, 11")
a(f"s_and_b32 s{sT1}, s{sC0}, 15")
a(f"s_lshl3_add_u32 s{sT0}, s{sT1}, s{sT0}")
a(f"s_add_u32 s{sT0}, s{sT0}, {EU}")
a(f"v_lshl_add_u32 v{vEP}, v{vN}, 7, s{sT0}")
SRD_U = 76
a(f"s_add_u32 s{sT0}, s55, {UWS}")
a(f"s_add_u32 s{SRD_U}, s{sWS}, s{sT0}")
a(f"s_addc_u32 s{SRD_U+1}, s{sWS+1}, 0")
a(f"s_and_b32 s{SRD_U+1}, s{SRD_U+1}, 0xffff")
a(f"s_mov_b32 s{SRD_U+2}, 4096")
a(f"s_mov_b32 s{SRD_U+3}, 0x00020000")
a(f"s_add_u32 s{sT0}, s{sHB}, {HC + 4080 - 3072}")
a(f"v_sub_u32 v{vHW}, s{sT0}, v{vL16}")
a(f"v_sub_u32 v{vT1}, 2031, v{vN}")
a(f"v_and_b32 v{vT2}, 1, v{vT1}")
a(f"v_lshrrev_b32 v{vT1}, 1, v{vT1}")
a(f"v_lshl_add_u32 v{vT1}, v{vG}, 2, v{vT1}")
a(f"v_lshlrev_b32 v{vT1}, 2, v{vT1}")
a(f"v_mul_u32_u24 v{vT2}, {HOO}, v{vT2}")
a(f"s_sub_u32 s{sT0}, s{sHB}, s54")
a(f"v_add3_u32 v{vT1}, v{vT1}, v{vT2}, s{sT0}")
for j in range(4): a(f"v_subrev_u32 v{AB+j}, {512*7 - 1024*j - HC}, v{vT1}")
a(f"v_lshlrev_b32 v{vT1}, 5, v{vN}")
a(f"v_lshl_add_u32 v{vT1}, v{vG}, 4, v{vT1}")
a(f"s_sub_u32 s{sT0}, s{sUB}, s54")
a(f"s_add_u32 s{sT0}, s{sT0}, 480")
a(f"v_add_u32 v{vBB}, s{sT0}, v{vT1}")
a(f"v_and_b32 v{vT1}, 1, v{vG}")
a(f"v_lshlrev_b32 v{vT1}, 9, v{vT1}")
a(f"v_lshl_add_u32 v{vT1}, v{vN}, 5, v{vT1}")
a(f"v_lshrrev_b32 v{vT2}, 1, v{vG}")
a(f"v_lshl_add_u32 v{vT1}, v{vT2}, 4, v{vT1}")
a(f"s_add_u32 s{sT0}, s55, {YWS}")
a(f"v_add_u32 v{vYG}, s{sT0}, v{vT1}")
a(f"v_and_b32 v{vT1}, 1, v{vN}")
a(f"v_lshl_add_u32 v{vT1}, v{vT1}, 2, v{vG}")
a(f"v_lshrrev_b32 v{vT2}, 2, v{vN}")
a(f"v_lshl_add_u32 v{vT1}, v{vT1}, 2, v{vT2}")
a(f"v_lshlrev_b32 v{vT1}, 2, v{vT1}")
a(f"v_add_u32 v{vYS}, {YS}, v{vT1}")
a(f"s_cmp_ge_u32 s{sI}, 26")
a(f"s_cselect_b32 s{sT0}, 8, 0")
a(f"s_lshl_b32 s{sT1}, s{sGRP}, 8")
a(f"s_add_u32 s{sT0}, s{sT0}, s{sT1}")
a(f"s_add_u32 s{sT0}, s{sT0}, {FB}")
a(f"v_and_b32 v{vT1}, 31, v{vLANE}")
a(f"v_lshl_add_u32 v{vCEL}, v{vT1}, 11, s{sT0}")
a(f"s_lshl_b32 s{sT0}, s{sT2}, 12")
a(f"s_add_u32 s{sT0}, s{sT0}, {PB}")
a(f"v_add_u32 v{vPBA}, s{sT0}, v{vL16}")
a(f"s_lshl_b32 s{sT0}, s{sT2}, 2")
a(f"v_add_u32 v{vPBF}, s{sT0}, v{vFL}")
a(f"v_and_b32 v{vT1}, 1, v{vN}")
a(f"v_lshlrev_b32 v{vT1}, 4, v{vT1}")
a(f"v_mov_b32 v{vT2}, 0x3f80")
a(f"v_lshlrev_b32 v{vT2}, v{vT1}, v{vT2}")
a(f"v_lshrrev_b32 v{vT3}, 1, v{vN}")
a(f"v_lshlrev_b32 v{vT0}, 1, v{vG}")
a(f"v_sub_u32 v{vT0}, v{vT3}, v{vT0}")
for j in range(2):
    a(f"v_cmp_eq_u32 vcc, {j}, v{vT0}")
    a(f"v_cndmask_b32 v{SEL+j}, 0, v{vT2}, vcc")
a("s_waitcnt lgkmcnt(0)")
make_tag()
a(f"s_lshl_b32 s{sT0}, s{sC0}, 4")
a(f"s_lshr_b32 s{sDV}, s{sDV}, s{sT0}")
a(f"s_and_b32 s{sDV}, s{sDV}, 0xffff")
a(f"v_lshlrev_b32 v{vT2}, v{vT1}, s{sDV}")
a(f"v_lshlrev_b32 v{vT0}, 2, v{vG}")
a(f"v_sub_u32 v{vT0}, v{vT3}, v{vT0}")
for j in range(4):
    a(f"v_cmp_eq_u32 vcc, {j-8}, v{vT0}")
    a(f"v_cndmask_b32 v{AD+j}, 0, v{vT2}, vcc")
SV = 40
a(f"v_bfe_u32 v{vT1}, v{vN}, 2, 1")
a(f"v_lshlrev_b32 v{vT1}, 4, v{vT1}")
a(f"v_and_b32 v{vT2}, 3, v{vN}")
a(f"v_lshrrev_b32 v{vT3}, 3, v{vN}")
a(f"v_mov_b32 v{vT0}, 0x3f80")
a(f"v_lshlrev_b32 v{vT0}, v{vT1}, v{vT0}")
a(f"v_cmp_eq_u32 vcc, v{vT2}, v{vG}")
a(f"v_cndmask_b32 v{vT0}, 0, v{vT0}, vcc")
a(f"v_cmp_eq_u32 vcc, 0, v{vT3}")
a(f"v_cndmask_b32 v{SV}, 0, v{vT0}, vcc")
a(f"v_cndmask_b32 v{SV+1}, v{vT0}, 0, vcc")
a(f"v_or_b32 v{vT0}, 2, v{vT3}")
a(f"v_cmp_ge_u32 vcc, v{vT2}, v{vG}")
a(f"v_cndmask_b32 v{vT3}, v{vT3}, v{vT0}, vcc")
if OPT["ktr"]: trace()
a("s_waitcnt vmcnt(0)")
if OPT["ktr"]:
    a("s_waitcnt lgkmcnt(0)"); trace()
for q in range(4): a(f"v_lshlrev_b32 v{TAP+q}, v{vT1}, v{TAP+q}")
for r in range(4):
    a(f"v_cmp_eq_u32 vcc, {r}, v{vT3}")
    for q in range(4):
        a(f"v_cndmask_b32 v{WK+6*q+r}, 0, v{TAP+q}, vcc")
        if r < 2: a(f"v_cndmask_b32 v{WK+6*q+4+r}, 0, v{TAP+q}, vcc")
HN, HM, HE, HOD = 128, 112, 80, 96
def h_loads():
    lb = a.newlabel("Lnh")
    a(f"s_cmp_eq_u32 s{sOWNR}, 0")
    a(f"s_cbranch_scc1 {lb}")
    for c in range(4): a(f"buffer_load_dwordx4 {v(HN+4*c,4)}, v{vL16}, s[{SRD_H}:{SRD_H+3}], 0 offen offset:{1024*c}")
    a.label(lb)
if OPT["hat"] == 0:
    a(f"s_sleep {OPT['hsl']}")
    h_loads()
trace()
a("s_barrier")
trace()
pp(22, 8)
a(f"s_cmp_ge_u32 s{sCG}, 5")
a("s_cbranch_scc1 L_nokv")
KD = [48, 68]
KS = [88, 48]; VF = 104; UO = [120, 68]; CS = 76
for o in range(2):
    a(f"ds_read_b128 {v(KD[o],4)}, v{vKA+2+o}")
    a(f"ds_read_b128 {v(KD[o]+4,4)}, v{vKA+o} offset:1024")
    a(f"ds_read_b128 {v(KD[o]+8,4)}, v{vKA+o} offset:2048")
    for e in range(2): a(f"ds_read_b128 {v(KD[o]+12+4*e,4)}, v{vKA+o} offset:{VT - KT + 1024*e}")
if OPT["hat"] == 1: h_loads()
def kv_k(o):
    d = KD[o]
    a(f"s_waitcnt lgkmcnt({8 - 5*o})")
    for r in range(2): a(f"v_swap_b32 v{d+2+r}, v{d+4+r}")
    for hi in range(2): a(f"{MF} {v(KS[o]+8*hi,4)}, {v(WK+6*(2*o+hi),4)}, {v(d+4*hi,4)}, 0")
    a(f"s_waitcnt lgkmcnt({7 - 5*o})")
    for hi in range(2): a(f"v_mov_b64 {v(d+4*hi,2)}, {v(d+8+2*hi,2)}")
    for hi in range(2): a(f"{MF} {v(KS[o]+8*hi+4,4)}, {v(WK+6*(2*o+hi)+2,4)}, {v(d+4*hi,4)}, 0")
def kv_v(o):
    a(f"s_waitcnt lgkmcnt({5 - 5*o})")
    for hi in range(2):
        for e in range(2): a(f"{MH} {v(VF+8*hi+4*e,4)}, {v(SV,2)}, {v(KD[o]+12+4*e+2*hi,2)}, 0")
def kv_mul(o):
    for r in range(0, 16, 2): a(f"v_pk_mul_f32 {v(KS[o]+r,2)}, {v(KS[o]+r,2)}, {v(VF+r,2)}")
def kv_out(o):
    for hi in range(2):
        u = UO[o] + 4 * hi
        for r in range(4): a(f"v_cvt_pk_bf16_f32 v{u+r}, v{KS[o]+8*hi+2*r}, v{KS[o]+8*hi+2*r+1}")
        a(f"global_store_dwordx4 v{vUG}, {v(u,4)}, {UBASE[2*o+hi]} sc1")
    for hi in range(2):
        u = UO[o] + 4 * hi
        a(f"v_add_u32 v{CS+2*o+hi}, v{u}, v{u+1}")
        a(f"v_add3_u32 v{CS+2*o+hi}, v{CS+2*o+hi}, v{u+2}, v{u+3}")
kv_k(0); kv_v(0); kv_k(1); kv_mul(0); kv_v(1); kv_out(0); kv_mul(1); kv_out(1)
for r in range(2): a(f"v_add_u32_dpp v{CS+4+r}, v{CS+r}, v{CS+r} row_ror:8 row_mask:0xf bank_mask:0xf")
for r in range(2): a(f"v_add_u32_dpp v{CS+4+r}, v{CS+2+r}, v{CS+2+r} row_ror:8 row_mask:0xf bank_mask:0xc")
a(f"v_mov_b32 v{CS}, s{sTAG}")
a(f"v_add_u32_dpp v{CS+1}, v{CS+4}, v{CS+4} row_half_mirror row_mask:0xf bank_mask:0xf")
a(f"v_add_u32_dpp v{CS+1}, v{CS+5}, v{CS+5} row_half_mirror row_mask:0xf bank_mask:0xa")
for qp in ("[1,0,3,2]", "[2,3,0,1]"): a(f"v_add_u32_dpp v{CS+1}, v{CS+1}, v{CS+1} quad_perm:{qp} row_mask:0xf bank_mask:0xf")
a("s_mov_b32 exec_lo, 0x11111111"); a("s_mov_b32 exec_hi, 0x11111111")
a(f"global_store_dwordx2 v{vEE}, {v(CS,2)}, {WSP} sc1")
a("s_mov_b64 exec, -1")
trace()
pp(10, 8)
if OPT["hat"] == 2:
    h_loads(); a("s_waitcnt vmcnt(0)")
else: a("s_waitcnt vmcnt(5)")
a("s_branch L_kvd")
a.label("L_nokv")
if OPT["hat"]:
    a("s_sleep 24")
    h_loads()
a("s_waitcnt vmcnt(0)")
a.label("L_kvd")
def cb(st, z): return (CB1 if st else CB0) + 4 * z
def rdA(m):
    j, b = (7 - m) // 2, (7 - m) % 2
    return [f"ds_read2_b32 {v(CA+4*m+2*e,2)}, v{AB+j} offset0:{128*b+2*e} offset1:{128*b+2*e+1}" for e in range(2)]
def rdB(st, z): return f"ds_read_b128 {v(cb(st,z),4)}, v{vBB} offset:{512*z}"
def PRE_A():
    n = 0
    for m in range(8):
        for x in rdA(m):
            a(x); n += 1
            if n == 12: a("s_waitcnt lgkmcnt(6)")
a(f"s_cmp_lg_u32 s{sOWNR}, 0")
a("s_cbranch_scc1 L_owner")
a("s_waitcnt vmcnt(0)")
lds_add(F_UDN)
a(f"s_cmp_lg_u32 s{sA}, 7")
a("s_cbranch_scc1 L_cdone")
lds_wait(F_HRD, 1)
PRE_A()
a("s_setprio 3")
a(f"v_mov_b32 v{vT1}, 1")
lds_wait(F_UDN, 8)
for z in range(8): a(rdB(0, z))
a("s_waitcnt lgkmcnt(0)")
trace_at(12)
a(f"s_setprio {OPT['hprio']}")
a("s_branch L_hloop")
a.label("L_owner")
a(f"s_mov_b32 s{sT2}, 0xffff")
for c in range(3): a(f"v_readlane_b32 s{60+c}, v{HN+4*c+3}, 63")
for c in range(4): a(f"v_mov_b32_dpp v{HM+c}, v{HN+4*c+3} wave_shr:1 row_mask:0xf bank_mask:0xf")
a(f"v_writelane_b32 v{HM}, 0, 0")
for c in range(3): a(f"v_writelane_b32 v{HM+1+c}, s{60+c}, 0")
for c in range(4):
    for d in range(4):
        src = HN + 4 * c + 3 - d
        a(f"v_alignbit_b32 v{HE+4*c+d}, v{src}, v{src}, 16")
        lower = (HN + 4 * c + 2 - d) if d < 3 else (HM + c)
        a(f"v_bfi_b32 v{HOD+4*c+d}, s{sT2}, v{src}, v{lower}")
    a(f"ds_write_b128 v{vHW}, {v(HE+4*c,4)} offset:{1024*(3-c)}")
    a(f"ds_write_b128 v{vHW}, {v(HOD+4*c,4)} offset:{1024*(3-c)+HOO}")
a(f"v_mov_b32 v44, 0"); a(f"v_mov_b32 v45, 0")
a(f"v_lshl_add_u32 v{vT1}, v{vN}, 2, s{sHB}")
a(f"ds_write_b32 v{vT1}, v44 offset:{HC+4096}")
a(f"ds_write_b32 v{vT1}, v44 offset:{HC+4096+HOO}")
lds_set(F_HRD, 1, vaddr=vPBF)
a(f"v_lshl_add_u32 v{vT1}, v{vLANE}, 3, s{sUB}")
a(f"ds_write_b64 v{vT1}, v[44:45]")
PRE_A()
trace()
a("s_mov_b64 exec, 0xffff")
a(f"s_mov_b32 s{sSPIN}, 0")
a.label("L_ep")
a(f"global_atomic_or_x2 v[46:47], v{vEP}, v[44:45], {WSP} sc0 sc1")
a("s_waitcnt vmcnt(0)")
a(f"v_cmp_ne_u32 vcc, s{sTAG}, v46")
a("s_cbranch_vccz L_epd")
a("s_mov_b64 exec, vcc")
spin_tail("L_ep")
a.label("L_epd")
a("s_mov_b64 exec, -1")
a("s_setprio 3")
trace()
pp(24, 8)
a(f"s_mov_b32 s{sSPIN}, 0")
a(f"s_add_u32 m0, s{sUB}, 512")
def u_loads():
    for c in range(4): a(f"buffer_load_dwordx4 v{vL16}, s[{SRD_U}:{SRD_U+3}], 0 offen offset:{1024*c} sc1 lds")
u_loads()
row_allreduce(47)
a("v_readfirstlane_b32 s60, v47")
a.label("L_uretry")
a("s_waitcnt vmcnt(0) lgkmcnt(0)")
if OPT["ktr"]: trace()
for z in range(7, -1, -1): a(rdB(0, z))
for t in range(7, -1, -1):
    a(f"s_waitcnt lgkmcnt({t})")
    a(f"{MF} {v(CACC+4*t,4)}, {v(AD,4)}, {v(cb(0,t),4)}, 0")
    b = cb(0, t)
    a(f"v_add3_u32 v9, v9, v{b}, v{b+1}" if t < 7 else f"v_add_u32 v9, v{b}, v{b+1}")
    a(f"v_add3_u32 v9, v9, v{b+2}, v{b+3}")
row_allreduce(9)
a(f"v_readlane_b32 s{sT0}, v9, 32")
a(f"v_readlane_b32 s{sT1}, v9, 48")
a(f"v_mov_b32 v{vT0}, 1")
a(f"s_add_u32 s{sT0}, s{sT0}, s{sT1}")
a(f"s_cmp_eq_u32 s{sT0}, s60")
a("s_cbranch_scc1 L_uok")
u_loads()
spin_tail("L_uretry")
a.label("L_uok")
a("s_mov_b64 exec, 1")
a(f"ds_add_u32 v{vFL}, v{vT0} offset:{F_UDN}")
a("s_mov_b64 exec, -1")
trace_at(12)
pp(5, 8)
PR0 = OPT["pr0"]
XSET = [(m, t) for t in range(2 * PR0) for m in range(t + 1)] + [(7, 7), (6, 7), (6, 6), (5, 7), (5, 6), (5, 5)][:OPT["xhi"]]
def conv_loop(helper):
    P = "L_h" if helper else "L_c"
    seq = []
    def dump(pr):
        b = 8 + 4 * (pr & 1)
        txt = [f"v_cvt_pk_bf16_f32 v{b+r}, v{CACC+8*pr+2*r}, v{CACC+8*pr+2*r+1}" for r in range(4)]
        return [("v", x) for x in txt] + [("r", f"ds_write_b128 v{vPBA}, {v(b,4)} offset:{1024*pr}", ("W", pr))]
    for st in range(2):
        seq.append(("adv", st))
        pend = [("r", rdB(1 - st, z), ("B", z, 1 - st)) for z in range(7, -1, -1)]
        side = []
        for m in range(8):
            for k_, t in enumerate(range(7, m - 1, -1)):
                if helper and (m, t) in XSET: continue
                c = "0" if helper and m == 0 else v(CACC+4*t, 4)
                seq.append(("m", f"{MF} {v(CACC+4*t,4)}, {v(CA+4*m,4)}, {v(cb(st,t-m),4)}, {c}", [("A", m, st), ("B", t - m, st)]))
                if pend and k_ % 2 == 1: seq.append(pend.pop(0))
                if side and k_ >= 2: seq += side[:2]; side = side[2:]
            seq += side; side = []
            if not helper or any((m, t) not in XSET for t in range(m, 8)): pend = [("r", x, ("A", m, 1 - st)) for x in rdA(m)] + pend
            if m >= 5:
                while pend: seq.append(pend.pop(0))
            if helper and m in (1, 3) and m // 2 >= PR0: side = dump(m // 2)
        assert not pend
        if helper:
            seq += dump(2) + dump(3)
            seq.append(("r", f"ds_write_b32 v{vPBF}, v{vT1} offset:{F_PB}", ("F",)))
            seq += [("v", f"v_add_u32 v{vPBA}, 4096, v{vPBA}"), ("v", f"v_add_u32 v{vPBF}, 4, v{vPBF}")]
        seq.append(("chk", st))
    n = len(seq)
    a.label(f"{P}loop")
    out_cnt = 99
    for i, it in enumerate(seq):
        if it[0] == "v": a(it[1]); continue
        if it[0] == "adv":
            if it[1] == 0 and OPT["cprio"] and not helper:
                lb = a.newlabel("Lcp")
                for k, th in OPT_CP:
                    a(f"s_setprio {k}")
                    a(f"s_cmp_gt_u32 s{sNST}, {th}")
                    a(f"s_cbranch_scc1 {lb}")
                a("s_setprio 0")
                a.label(lb)
            for j in range(4): a(f"v_add_u32 v{AB+j}, {HCH}, v{AB+j}" if helper else f"v_subrev_u32 v{AB+j}, 64, v{AB+j}")
            a(f"v_add_u32 v{vBB}, {ULCH}, v{vBB}" if helper else f"v_subrev_u32 v{vBB}, 64, v{vBB}")
            continue
        if it[0] == "chk":
            a(f"s_sub_u32 s{sNST}, s{sNST}, 1")
            if it[1] == 1 and not helper:
                a(f"s_cmp_lg_u32 s{sNST}, {OPT['mat']}")
                a("s_cbranch_scc1 L_cloop")
                lds_wait(F_PB, 1, vaddr=vPBF)
                MT = [8, 12, 144, 148]
                for q in range(PR0, 4): a(f"ds_read_b128 {v(MT[q],4)}, v{vPBA} offset:{1024*q}")
                for t in range(2 * PR0, 8):
                    if t % 2 == 0: a(f"s_waitcnt lgkmcnt({3 - t//2})")
                    a(f"{MH} {v(CACC+4*t,4)}, {v(SEL,2)}, {v(MT[t//2]+2*(t&1),2)}, {v(CACC+4*t,4)}")
                lds_add(F_MRG)
                a("s_branch L_cloop")
            else:
                a(f"s_cmp_eq_u32 s{sNST}, 0")
                a(f"s_cbranch_scc1 {P}exit" if it[1] == 0 else f"s_cbranch_scc0 {P}loop")
            continue
        if it[0] == "r":
            if out_cnt >= 14:
                a("s_waitcnt lgkmcnt(12)"); out_cnt = 12
            a(it[1]); out_cnt += 1
            continue
        best = None; cnt = 0
        for back in range(1, n + 1):
            p = seq[(i - back) % n]
            if p[0] == "r":
                if p[2] in it[2]:
                    best = cnt; break
                cnt += 1
        assert best is not None
        if best < out_cnt:
            w = min(best, 15)
            a(f"s_waitcnt lgkmcnt({w})"); out_cnt = w
        a(it[1])
conv_loop(False)
a.label("L_cexit")
trace_at(13)
pp(23, 8)
a("s_setprio 3")
a("s_waitcnt lgkmcnt(0)")
for m, t in XSET: a(f"{MF} {v(CACC+4*t,4)}, {v(CA+4*m,4)}, {v(cb(1,t-m),4)}, {v(CACC+4*t,4)}")
for pr in (1, 2, 0, 3):
    b = CB0 + 4 * pr
    pack(b, CACC + 8 * pr)
    pack(b + 2, CACC + 8 * pr + 4)
    a(f"v_permlane16_swap_b32 v{b}, v{b+2}")
    a(f"v_permlane16_swap_b32 v{b+1}, v{b+3}")
    a(f"global_store_dwordx4 v{vYG}, {v(b,4)}, {WSP} offset:{1024*pr} sc1")
TS = 96
for pr in range(4): a(f"v_add_u32 v{TS+pr}, v{CB0+4*pr}, v{CB0+4*pr+1}")
for pr in range(4): a(f"v_add3_u32 v{TS+pr}, v{TS+pr}, v{CB0+4*pr+2}, v{CB0+4*pr+3}")
a(f"v_permlane32_swap_b32 v{TS}, v{TS+1}")
a(f"v_permlane32_swap_b32 v{TS+2}, v{TS+3}")
a(f"v_add_u32 v{TS}, v{TS}, v{TS+1}")
a(f"v_add_u32 v{TS+2}, v{TS+2}, v{TS+3}")
for qp in ("[1,0,3,2]", "[2,3,0,1]"):
    for r in (TS, TS + 2): a(f"v_add_u32_dpp v{r}, v{r}, v{r} quad_perm:{qp} row_mask:0xf bank_mask:0xf")
a("s_mov_b32 exec_lo, 0x22222222"); a("s_mov_b32 exec_hi, 0x22222222")
a(f"v_mov_b32 v{TS}, v{TS+2}")
a("s_mov_b32 exec_lo, 0x33333333"); a("s_mov_b32 exec_hi, 0x33333333")
a(f"ds_add_u32 v{vYS}, v{TS}")
a(f"v_mov_b32 v{vT0}, 1")
a("s_mov_b64 exec, 1")
a(f"ds_add_u32 v{vFL}, v{vT0} offset:{F_CVD}")
a(f"ds_add_rtn_u32 v{vT0}, v{vFL}, v{vT0} offset:{F_YST}")
a("s_mov_b64 exec, -1")
a(f"v_lshlrev_b32 v{vT1}, 2, v{vLANE}")
a(f"v_add_u32 v{vT1}, {YS}, v{vT1}")
cRET, cVAL = 28, 30
a(f"ds_read_b32 v{cVAL}, v{vT1}")
a(f"v_mov_b32 v{cVAL+1}, 0x100")
a("s_waitcnt lgkmcnt(0)")
a(f"v_readfirstlane_b32 s{sT2}, v{vT0}")
a(f"s_add_u32 s{sT2}, s{sT2}, 1")
a(f"s_cmp_lg_u32 s{sT2}, s{sNCH}")
a("s_cbranch_scc1 L_ynf")
a("s_mov_b64 exec, 0xffffffff")
a(f"s_mov_b32 s{sSPIN}, 0")
a(f"s_and_b32 s60, s{sTAG}, 0xffffff00")
a.label("L_ca")
a(f"global_atomic_add_x2 {v(cRET,2)}, v{vCEL}, {v(cVAL,2)}, {WSP} sc0 sc1")
a("s_waitcnt vmcnt(0)")
a(f"v_subrev_u32 v{cRET}, s60, v{cRET+1}")
a(f"v_cmp_le_u32 vcc, 0x600, v{cRET}")
a("s_cbranch_vccz L_cad")
a("s_mov_b64 exec, vcc")
spin_tail("L_ca", 8)
a.label("L_cad")
a("s_mov_b64 exec, -1")
a.label("L_ynf")
trace_at(14)
pp(6, 8)
a("s_branch L_cjoin")
conv_loop(True)
a.label("L_hexit")
trace_at(13)
a.label("L_cdone")
a("s_waitcnt lgkmcnt(0)")
lds_add(F_CVD)
a("s_setprio 0")
lds_wait(F_CVD, 4, sleep=6)
a.label("L_cjoin")
a("s_setprio 2")
lds_wait(F_MODE, 1)
a(f"s_mov_b32 s{sMODE}, s{sT3}")
set_mode()
tail_setup(IMG_A, RED_A)
a("s_branch L_tail")
if STAMPS_ON:
    a.label("L_finish")
    a("s_mov_b64 exec, -1")
    a("s_waitcnt lgkmcnt(0)")
    a("s_mov_b32 m0, s95")
    a(f"v_writelane_b32 v{vTR}, s70, m0")
    a("s_memtime s[76:77]")
    a("s_memrealtime s[78:79]")
    a(f"s_mul_i32 s{sT0}, s2, {NW}")
    a(f"s_add_u32 s{sT0}, s{sT0}, s{sWV}")
    a(f"s_lshl_b32 s{sT1}, s{sT0}, 8")
    a(f"s_add_u32 s{sT1}, s{sT1}, {TRACE}")
    a(f"v_lshl_add_u32 v{vT0}, v{vLANE}, 2, s{sT1}")
    a(f"global_store_dword v{vT0}, v{vTR}, {WSP}")
    a(f"s_lshl_b32 s{sT1}, s{sT0}, 7")
    a(f"s_add_u32 s{sT1}, s{sT1}, {STAMPS}")
    a("s_mov_b64 exec, 1")
    a(f"v_mov_b32 v{vT0}, s{sT1}")
    a("s_waitcnt lgkmcnt(0)")
    for j in range(8): a(f"v_mov_b32 v{8+j}, s{72+j}")
    a(f"global_store_dwordx4 v{vT0}, v[8:11], {WSP}")
    a(f"global_store_dwordx4 v{vT0}, v[12:15], {WSP} offset:16")
a.label("L_end")
a("s_endpgm")
a.label("L_codeend")

lines, nn = hazard.run(a.lines)
hdr = open("/code/" + NAME + ".s.ref").read().split("; Override launch geometry")[0]
sys.stdout.write(hdr + header([f"@launch grid=(256,1,1) block=({64*NW},1,1) lds={LDS_BYTES}"]) + kernel_begin(KNAME) + "\n".join(lines) + "\n"
                 + kernel_desc(KNAME, NVGPR, 102, NVGPR).replace(".end_amdhsa_kernel\n.text\n", ".end_amdhsa_kernel\n"))
sys.stderr.write(f"instructions: {len(lines)}, nop states inserted: {nn}\n")
```

```python
import sys, math, struct
from asmlib import *
import hazard

STAMPS_ON = "stamps" in sys.argv
OPT = dict(rt=1, forceg=0, phi=2, plo=1, lastp=2, rd2=6, fpos=8, wodepth=8, bdbg=0, hprio=3, cprio=1, mat=1, pr0=1, xhi=4, pfl=7, afirst=0, gsolo=0,
           rg=5, rc=4, bwd=-1, lrun=2, wo3=0, pa0=1, pb0=2, pa1=2, pb1=1, bk=1, r0=0, nfirst=2, psl=0, lprio=3, bpos=1, csleep=2, pboth=0, rpg=2, fback=4, ppos=2, ltr=1, b1=4, tlb=1, wopace=0, ysleep=1, osleep=0, hat=0, hsl=1, ktr=0, cenw=30, fwait=1, gprio=1)
for x in sys.argv[1:]:
    if "=" in x:
        k, val = x.split("="); OPT[k] = int(val)
OPT_CP = {1: [(2, 4), (1, 2)], 2: [(2, 6), (1, 2)], 3: [(2, 6), (1, 4)], 4: [(1, 2)]}.get(OPT["cprio"])
KNAME = NAME + "_kernel"
NW = 12
EPOCH = 0; FSUM = 0x1000; GWS = 0x4000; FB = 0x10000; EU = 0x40000
UWS = 0x100000; YWS = 0x400000; XLW = 0x700000; STAMPS = 0xA00000; TRACE = 0xB00000
GOFF = 0xF00000
OGRP = 327680; XGRP = 0x40000; XFLG = 0x30000
NSLOT = 3; SLOT = 43008; WPART = 18432; WHALF = 12288
EX = 129024; EXT = 27 * 512; EXB = EX + 2 * EXT
YT = 0; IMG_B = 16384; IMG_A = 48128; RED_B = EX; RED_A = 10240
HC = 0; HCH = 8320; HOO = 4160
UL = 7 * HCH; ULCH = 4608; PB = UL + 7 * ULCH
KT = UL + 7 * ULCH; VT = KT + 132 * 256
FL = EXB + 4096; GOM = FL + 512; YS = GOM + 512; GW = YS + 256
LDS_BYTES = 163840
assert VT + 128 * 256 <= FL and GW + 1280 <= LDS_BYTES and PB <= IMG_A + 9 * 5120 and PB + 7 * 4096 <= IMG_A + 14 * 5120
assert IMG_A + 22 * 5120 <= FL and IMG_B + 22 * 5120 <= EX and IMG_B + 6 * 5120 >= SLOT and IMG_B + 13 * 5120 <= 2 * SLOT
F_LA = 0; F_PROG = 96; F_PQ = 128; F_PV = 160; F_MODE = 192; F_EXR = 196; F_WOL = 200; F_GRD = 208; F_YLD = 212
F_RED = 216; F_QRD = 232; F_KV = 248; F_MRG = 264; F_HRD = 312; F_CVD = F_EXR; F_YST = 276; F_UDN = 280; F_PB = 284
PB0 = FL + F_LA
NVGPR = 168
SPIN_MAX = 1 << OPT.get("smax", 20)

def seg_tables():
    J = []; INFO = []
    for cgp in range(5):
        heads = {}
        for u in range(16): heads.setdefault((16 * cgp + u) // 5, []).append(u)
        segs = [heads[h] for h in sorted(heads)]
        assert len(segs) == 4
        tiles = [None] * 4; rem = [None] * 4
        free = {t: set(range(4)) - {u & 3 for u in segs[t]} for t in range(4) if len(segs[t]) < 4}
        for t in range(4):
            if len(segs[t]) < 5: tiles[t] = list(segs[t])
        for t in range(4):
            if len(segs[t]) == 5:
                res = segs[t][0] & 3
                ts = [q for q in free if res in free[q]]
                assert len(ts) == 1
                q = ts[0]; free[q].discard(res)
                r = segs[t][0] if q < t else segs[t][4]
                tiles[t] = [u for u in segs[t] if u != r]; tiles[q].append(r); rem[t] = (q, res)
        jw = 0; iw = 0
        for t in range(4):
            assert sorted(u & 3 for u in tiles[t]) == [0, 1, 2, 3]
            for u in tiles[t]: jw |= (u >> 2) << (8 * t + 2 * (u & 3))
            own = sum(1 << (u & 3) for u in tiles[t] if u in segs[t])
            late = len(segs[t]) < 5
            assert (not late) or t in (0, 3)
            b = own | (0 if late else (rem[t][1] << 4) | ((rem[t][0] == 3) << 6)) | (late << 7)
            iw |= b << (8 * t)
        J.append(jw); INFO.append(iw)
    return J, INFO
JT, INFO = seg_tables()

a = Asm()
sX, sK, sV, sSH, sSSM, sDD, sWQ, sWO, sGW, sOUT, sDBG, sWS = 4, 6, 8, 10, 12, 14, 18, 20, 22, 24, 26, 28
sGRP, sI, sWV, sTAG, sROLE, sOR, sOC, sRB, sCG, sXM = 30, 31, 32, 33, 34, 35, 36, 37, 38, 39
sLB = 16
sMODE = 93
sT0, sT1, sT2, sT3, sSPIN = 96, 97, 98, 99, 100
vLANE, vN, vG, vFL, vT0, vT1, vT2, vT3 = 0, 1, 2, 3, 4, 5, 6, 7
vTR = 167

def v(i, n=1): return f"v{i}" if n == 1 else f"v[{i}:{i+n-1}]"
def f2u(x): return struct.unpack("<I", struct.pack("<f", x))[0]
MF = "v_mfma_f32_16x16x32_bf16"
MH = "v_mfma_f32_16x16x16_bf16"
WSP = f"s[{sWS}:{sWS+1}]"; LBP = f"s[{sLB}:{sLB+1}]"

def trace():
    if not STAMPS_ON: return
    a("s_mov_b32 s69, m0")
    a("s_mov_b32 m0, s95")
    a(f"v_writelane_b32 v{vTR}, s70, m0")
    a("s_mov_b32 m0, s69")
    a("s_mov_b32 s95, s94")
    a("s_add_u32 s94, s94, 1")
    a("s_memrealtime s[70:71]" if OPT["rt"] else "s_memtime s[70:71]")
def trace_at(i):
    if not STAMPS_ON: return
    a(f"s_mov_b32 s94, {i}")
    trace()
def finish():
    a("s_branch L_finish" if STAMPS_ON else "s_endpgm")
def spin_tail(l, sleep=0):
    if sleep: a(f"s_sleep {sleep}")
    a(f"s_add_u32 s{sSPIN}, s{sSPIN}, 1")
    a(f"s_cmp_lt_u32 s{sSPIN}, {SPIN_MAX}")
    a(f"s_cbranch_scc1 {l}")
def lds_wait(off, val, vaddr=vFL, vt=vT0, sleep=0):
    l = a.newlabel("Lw"); d = a.newlabel("Lwd")
    a(f"s_mov_b32 s{sSPIN}, 0")
    a.label(l)
    a(f"ds_read_b32 v{vt}, v{vaddr} offset:{off}")
    a("s_waitcnt lgkmcnt(0)")
    a(f"v_readfirstlane_b32 s{sT3}, v{vt}")
    a(f"s_cmp_ge_u32 s{sT3}, {val}")
    a(f"s_cbranch_scc1 {d}")
    spin_tail(l, sleep)
    a.label(d)
def prog_wait(vaddr, sval, vt=vT0):
    l = a.newlabel("Lg"); d = a.newlabel("Lgd")
    a(f"s_mov_b32 s{sSPIN}, 0")
    a.label(l)
    a(f"ds_read_b32 v{vt}, v{vaddr}")
    a("s_waitcnt lgkmcnt(0)")
    a(f"v_cmp_gt_i32 vcc, {sval}, v{vt}")
    a(f"s_cbranch_vccz {d}")
    spin_tail(l, OPT["psl"])
    a.label(d)
def mask_wait(vaddr, smask, vt=vT0, sleep=0):
    l = a.newlabel("Lm"); d = a.newlabel("Lmd")
    a(f"s_mov_b32 s{sSPIN}, 0")
    a.label(l)
    a(f"ds_read_b32 v{vt}, v{vaddr}")
    a("s_waitcnt lgkmcnt(0)")
    a(f"v_cmp_eq_u32 vcc, 0, v{vt}")
    a(f"s_and_b32 s{sT3}, vcc_lo, s{smask}")
    a(f"s_cbranch_scc0 {d}")
    spin_tail(l, sleep)
    a.label(d)
def lds_add(off, vaddr=vFL, vt=vT0, val=1):
    a(f"v_mov_b32 v{vt}, {val}\ns_mov_b64 exec, 1\nds_add_u32 v{vaddr}, v{vt} offset:{off}\ns_mov_b64 exec, -1")
def lds_set(off, val, vaddr=vFL, vt=vT0):
    a(f"v_mov_b32 v{vt}, {val}")
    a(f"ds_write_b32 v{vaddr}, v{vt} offset:{off}")
def t10(vd, qbase, sadd, vt):
    a(f"v_add_u32 v{vt}, {qbase}, v{vLANE}")
    a(f"v_mul_u32_u24 v{vd}, 6554, v{vt}")
    a(f"v_lshrrev_b32 v{vd}, 16, v{vd}")
    a(f"v_mul_u32_u24 v{vd}, 1120, v{vd}")
    a(f"v_lshl_add_u32 v{vt}, v{vt}, 4, {sadd}")
    a(f"v_add_u32 v{vd}, v{vd}, v{vt}")
def pack(dst, src):
    a(f"v_cvt_pk_bf16_f32 v{dst}, v{src}, v{src+1}")
    a(f"v_cvt_pk_bf16_f32 v{dst+1}, v{src+2}, v{src+3}")
def lds_pipe(reads, work, gate, maxfly=14, pre=0, eager=False):
    ri = pre; done = pre - 1
    for j, (needed, text) in enumerate(work):
        if eager and ri < len(reads) and gate[ri] < j and (ri - 1 - done) >= maxfly:
            a(f"s_waitcnt lgkmcnt({maxfly - 2})"); done = ri - 1 - (maxfly - 2)
        while ri < len(reads) and gate[ri] < j and (ri - 1 - done) < maxfly:
            a(reads[ri]); ri += 1
        assert ri > needed, (ri, needed, j)
        if needed > done:
            a(f"s_waitcnt lgkmcnt({ri - 1 - needed})")
            done = needed
        a(text)
    assert ri == len(reads)
def row_allreduce(r):
    for k in (8, 4, 2, 1): a(f"v_add_u32_dpp v{r}, v{r}, v{r} row_ror:{k} row_mask:0xf bank_mask:0xf")
def wave_sum_eq(r, ref=0):
    row_allreduce(r)
    for k in range(4): a(f"v_readlane_b32 s{sT0+k}, v{r}, {16*k}")
    a(f"s_add_u32 s{sT0}, s{sT0}, s{sT1}")
    a(f"s_add_u32 s{sT2}, s{sT2}, s{sT3}")
    a(f"s_add_u32 s{sT0}, s{sT0}, s{sT2}")
    a(f"s_cmp_eq_u32 s{sT0}, {ref}")
def make_tag():
    a(f"s_mul_i32 s{sTAG}, s{sTAG}, 1664525")
    a(f"s_add_u32 s{sTAG}, s{sTAG}, 1013904223")
def dual(fn):
    g = a.newlabel("Ldg"); d = a.newlabel("Ldd")
    a(f"s_cmp_lg_u32 s{sMODE}, 1")
    a(f"s_cbranch_scc1 {g}")
    fn("")
    a(f"s_branch {d}")
    a.label(g)
    fn(" sc1")
    a.label(d)
def set_mode():
    a(f"s_cmp_eq_u32 s{sMODE}, 1")
    a(f"s_cselect_b32 s{sT3}, 0, {GOFF}")
    a(f"s_add_u32 s{sLB}, s{sWS}, s{sT3}")
    a(f"s_addc_u32 s{sLB+1}, s{sWS+1}, 0")
def my_block(sd):
    a(f"s_lshl_b32 s{sd}, s{sGRP}, 5")
    a(f"s_add_u32 s{sd}, s{sd}, s{sI}")
    a(f"s_lshl_b32 s{sd}, s{sd}, 8")
    a(f"s_add_u32 s{sd}, s{sd}, {FB}")
def cell_init():
    my_block(sT0)
    a(f"v_lshl_add_u32 v{vT0}, v{vLANE}, 3, s{sT0}")
    a(f"v_mov_b32 v{vT2}, 0")
    a(f"s_and_b32 s{sT1}, s{sTAG}, 0xffffff00")
    a(f"v_mov_b32 v{vT3}, s{sT1}")
    a(f"s_getreg_b32 s{sT1}, hwreg(HW_REG_XCC_ID, 0, 4)")
    a(f"s_not_b32 s{sT2}, s{sTAG}")
    a(f"v_writelane_b32 v{vT2}, s{sTAG}, 3")
    a(f"v_writelane_b32 v{vT3}, s{sT1}, 3")
    a(f"v_writelane_b32 v{vT2}, s{sT2}, 2")
    a("s_mov_b64 exec, 0xffff")
    a(f"global_store_dwordx2 v{vT0}, {v(vT2,2)}, {WSP} sc1")
    a("s_mov_b64 exec, -1")
def census():
    a(f"s_lshl_b32 s{sT0}, s{sGRP}, 5")
    a(f"v_add_u32 v{vT0}, s{sT0}, v{vLANE}")
    for j in range(4):
        a(f"v_add_u32 v{20+j}, {64*j}, v{vT0}")
        a(f"v_and_b32 v{20+j}, 255, v{20+j}")
        a(f"v_lshlrev_b32 v{20+j}, 8, v{20+j}")
        a(f"v_add_u32 v{20+j}, {FB}, v{20+j}")
    a("v_mov_b32 v24, 0"); a("v_mov_b32 v25, 0")
    for j in range(4): a(f"s_mov_b64 s[{76+2*j}:{77+2*j}], -1")
    def rnd(tag):
        for j in range(4):
            a(f"s_mov_b64 exec, s[{76+2*j}:{77+2*j}]")
            a(f"s_cbranch_execz L_cs{tag}{j}")
            a(f"global_atomic_or_x2 {v(26+2*j,2)}, v{20+j}, v[24:25], {WSP} offset:24 sc0 sc1")
            a.label(f"L_cs{tag}{j}")
        a("s_mov_b64 exec, -1")
        a("s_waitcnt vmcnt(0)")
        for j in range(4): a(f"v_cmp_ne_u32 s[{76+2*j}:{77+2*j}], s{sTAG}, v{26+2*j}")
    a(f"s_mov_b32 s{sSPIN}, 0")
    a.label("L_cen")
    rnd("b")
    a("s_or_b64 s[62:63], s[76:77], s[78:79]")
    a("s_or_b64 vcc, s[80:81], s[82:83]")
    a("s_or_b64 vcc, vcc, s[62:63]")
    a("s_cbranch_scc0 L_cend")
    spin_tail("L_cen", OPT["csleep"])
    a.label("L_cend")
    a(f"v_readfirstlane_b32 s{sT0}, v27")
    a(f"v_cmp_ne_u32 vcc, s{sT0}, v27")
    a("s_cmp_eq_u32 vcc_lo, 0")
    a(f"s_cselect_b32 s{sT0}, {2 if OPT['forceg'] else 1}, 2")
    a(f"v_mov_b32 v24, s{sTAG}")
    a(f"v_mov_b32 v25, s{sT0}")
    a("s_mov_b64 exec, 0xffffffff")
    a(f"global_store_dwordx2 v20, v[24:25], {WSP} offset:16 sc1")
    a("s_mov_b64 exec, -1")
def mode_load():
    my_block(sT2)
    a(f"s_add_u32 s{sT2}, s{sT2}, 16")
    a(f"s_load_dwordx2 s[66:67], {WSP}, s{sT2} glc")
def mode_wait(first=False):
    l = a.newlabel("Lc"); d = a.newlabel("Lcd"); f_ = a.newlabel("Lcf")
    a(f"s_mov_b32 s{sSPIN}, 0")
    if first: a(f"s_branch {f_}")
    else:
        my_block(sT2)
        a(f"s_add_u32 s{sT2}, s{sT2}, 16")
    a.label(l)
    a(f"s_load_dwordx2 s[66:67], {WSP}, s{sT2} glc")
    a.label(f_)
    a("s_waitcnt lgkmcnt(0)")
    a(f"s_cmp_eq_u32 s66, s{sTAG}")
    a(f"s_cbranch_scc1 {d}")
    spin_tail(l, 4)
    a("s_mov_b32 s67, 2")
    a.label(d)
    lds_set(F_MODE, "s67")
def tlb_touch():
    if not OPT["tlb"]: return
    a(f"s_lshl_b32 s{sT0}, s2, 7")
    a(f"s_add_u32 s{sT0}, s{sT0}, 0x1F8000")
    a(f"v_lshl_add_u32 v{vT0}, v{vLANE}, 21, s{sT0}")
    a(f"v_mov_b32 v{vT1}, 0")
    a("s_mov_b64 exec, 0x1e")
    a(f"global_atomic_or v{vT0}, v{vT1}, {WSP} sc1")
    a(f"s_mul_i32 s{sT0}, s{sOR}, {64*1280}")
    a(f"s_mul_i32 s{sT1}, s{sOC}, 160")
    a(f"s_add_u32 s{sT0}, s{sT0}, s{sT1}")
    a("s_mov_b64 exec, 1")
    a(f"v_mov_b32 v{vT0}, s{sT0}")
    a(f"global_atomic_or v{vT0}, v{vT1}, s[{sOUT}:{sOUT+1}] sc1")
    a("s_mov_b64 exec, -1")
def pp(idn, wave, role=None):
    if OPT.get("pp") != idn: return
    lb = a.newlabel("Lpp")
    if wave is not None:
        a(f"s_cmp_lg_u32 s{sWV if wave >= 0 else sMT}, {wave if wave >= 0 else 3}")
        a(f"s_cbranch_scc1 {lb}")
    a("s_memrealtime s[88:89]")
    a("s_lshl_b32 s90, s2, 2")
    a(f"s_add_u32 s90, s90, {FSUM + 2048}")
    a(f"v_mov_b32 v{vT0}, s90")
    a("s_waitcnt lgkmcnt(0)")
    a(f"v_mov_b32 v{vT1}, s88")
    a("s_mov_b64 s[88:89], exec")
    a("s_mov_b64 exec, 1")
    a(f"global_store_dword v{vT0}, v{vT1}, {WSP} sc1")
    a("s_mov_b64 exec, s[88:89]")
    a("s_waitcnt vmcnt(0)")
    a.label(lb)

TT, SH, vJP, vSOF, vGA = 8, 144, 149, 150, 151
SRD_X, SRD_W, SRD_2 = 40, 44, 48
sSO, sCNT, sLST, sIMG = 59, 63, 57, 56
def img_setup(base):
    a(f"s_mov_b32 s{sIMG}, {base}")
    a(f"s_mul_i32 s{sT0}, s{sOC}, 160")
    for i in range(5):
        a(f"v_add_u32 v{vT0}, {64*i}, v{vLANE}")
        a(f"v_mul_u32_u24 v{vT1}, 6554, v{vT0}")
        a(f"v_lshrrev_b32 v{vT1}, 16, v{vT1}")
        a(f"v_mul_u32_u24 v{vT2}, 160, v{vT1}")
        a(f"v_lshl_add_u32 v{vT0}, v{vT0}, 4, s{sT0}")
        a(f"v_sub_u32 v{vT0}, v{vT0}, v{vT2}")
        a(f"v_and_b32 v{vT2}, 15, v{vT1}")
        a(f"v_mul_u32_u24 v{vT2}, 1280, v{vT2}")
        a(f"v_add_u32 v{TT+i}, v{vT0}, v{vT2}")
        a(f"v_lshrrev_b32 v{vT1}, 2, v{vT1}")
        a(f"v_lshlrev_b32 v{SH+i}, 1, v{vT1}")
    a(f"v_mov_b32 v{vJP}, 0x5500")
    for p in range(10):
        J = JT[p % 5]; e = p < 5
        jp = (J & 0xff) | ((J >> 24) << 8) if e else (J >> 8) & 0xffff
        a(f"s_mov_b32 exec_lo, {hex(0x21 << (p % 5 + 10 * (p // 5)))}")
        a(f"v_mov_b32 v{vJP}, {hex(jp)}")
    a("s_mov_b32 exec_lo, -1")
    a(f"v_subrev_u32 v{vT0}, 10, v{vLANE}")
    a(f"v_min_u32 v{vT0}, v{vT0}, v{vLANE}")
    a(f"v_mul_u32_u24 v{vSOF}, 81920, v{vT0}")
    a(f"s_mul_i32 s{sT0}, s{sOR}, 81920")
    a(f"v_writelane_b32 v{vSOF}, s{sT0}, 20")
    a(f"s_add_u32 s{sT0}, s{sT0}, 40960")
    a(f"v_writelane_b32 v{vSOF}, s{sT0}, 21")
    a(f"s_mov_b32 s{SRD_2+3}, 0x00020000")
    a("s_movk_i32 s58, 20480")
def img_group(dst=None):
    a(f"s_and_b32 s{sT0}, s{sLST}, 31")
    a(f"s_lshr_b32 s{sLST}, s{sLST}, 5")
    a(f"v_readlane_b32 s{sT1}, v{vJP}, s{sT0}")
    a(f"v_readlane_b32 s{sSO}, v{vSOF}, s{sT0}")
    a(f"s_cmp_ge_u32 s{sT0}, 20")
    a(f"s_cselect_b32 s{SRD_2}, s{sX}, s{sWO}")
    a(f"s_cselect_b32 s{SRD_2+1}, s{sX+1}, s{sWO+1}")
    a(f"s_cselect_b32 s{SRD_2+2}, 16, 5")
    a(f"s_and_b32 s{SRD_2+1}, s{SRD_2+1}, 0xffff")
    a(f"s_mul_i32 s{SRD_2+2}, s{SRD_2+2}, {128*1280}")
    if dst is None:
        a(f"s_mul_i32 s{sT0}, s{sT0}, 5120")
        a(f"s_add_u32 m0, s{sT0}, s{sIMG}")
    for i in range(5): a(f"v_bfe_u32 v{vGA+i}, s{sT1}, v{SH+i}, 2")
    for i in range(5): a(f"v_mad_u32_u24 v{vGA+i}, v{vGA+i}, s58, v{TT+i}")
    for i in range(5):
        if dst is None:
            a(f"buffer_load_dwordx4 v{vGA+i}, s[{SRD_2}:{SRD_2+3}], s{sSO} offen lds")
            if i < 4: a("s_add_u32 m0, m0, 1024")
        else: a(f"buffer_load_dwordx4 {v(dst+4*i,4)}, v{vGA+i}, s[{SRD_2}:{SRD_2+3}], s{sSO} offen")
def img_list(per_wave):
    for w, ps in enumerate(per_wave):
        val = 1
        for p in reversed(ps): val = (val << 5) | p
        if w == 0: a(f"s_mov_b32 s{sLST}, {hex(val)}")
        else:
            a(f"s_cmp_eq_u32 s{sWV}, {w}")
            a(f"s_cselect_b32 s{sLST}, {hex(val)}, s{sLST}")
def img_run(per_wave, depth=None, dst=None):
    img_list(per_wave)
    l = a.newlabel("Lim")
    a.label(l)
    img_group(dst)
    if depth is not None: a(f"s_waitcnt vmcnt({depth})")
    a(f"s_cmp_gt_u32 s{sLST}, 1")
    a(f"s_cbranch_scc1 {l}")

a.label("L_entry")
if STAMPS_ON:
    a("s_memrealtime s[72:73]"); a("s_memtime s[74:75]")
elif OPT.get("probe"): a("s_memrealtime s[72:73]")
a("s_load_dwordx16 s[4:19], s[0:1], 0")
a("s_load_dwordx8 s[20:27], s[0:1], 64")
a("s_load_dwordx2 s[28:29], s[0:1], 96")
a("s_cmp_ge_u32 s2, 256")
a("s_cbranch_scc1 L_end")
a(f"v_lshrrev_b32 v{vT0}, 6, v0")
a(f"v_and_b32 v{vLANE}, 63, v0")
a(f"v_readfirstlane_b32 s{sWV}, v{vT0}")
a("s_getpc_b64 s[46:47]")
a.label("L_pc")
a(f"s_lshr_b32 s{sI}, s2, 3")
a(f"s_mul_i32 s{sT0}, s{sI}, {OPT['pfl']*128}")
a(f"s_cmp_lg_u32 s{sWV}, 2")
a("s_cbranch_scc1 L_nopf")
a(f"v_lshl_add_u32 v{vT0}, v{vLANE}, 7, s{sT0}")
a(f"v_min_u32 v{vT0}, L_codeend-L_pc-4, v{vT0}")
a(f"s_mov_b64 exec, {hex((1 << OPT['pfl']) - 1)}")
a(f"global_load_dword v20, v{vT0}, s[46:47]")
a("s_mov_b64 exec, -1")
a.label("L_nopf")
a(f"v_mov_b32 v{vFL}, {FL}")
a(f"v_lshl_add_u32 v{vT1}, v{vLANE}, 3, v{vFL}")
a(f"v_mov_b32 v{vT2}, 0"); a(f"v_mov_b32 v{vT3}, 0")
a(f"ds_write_b64 v{vT1}, {v(vT2,2)}")
a(f"v_lshrrev_b32 v{vG}, 4, v{vLANE}")
a(f"v_and_b32 v{vN}, 15, v{vLANE}")
if STAMPS_ON:
    a(f"v_mov_b32 v{vTR}, 0"); a("s_mov_b32 s95, 63"); a("s_mov_b32 s94, 0"); a("s_mov_b32 s70, 0")
a(f"s_and_b32 s{sGRP}, s2, 7")
if OPT["afirst"]:
    a(f"s_add_u32 s{sI}, s{sI}, 20")
    a(f"s_and_b32 s{sI}, s{sI}, 31")
a(f"s_and_b32 s{sOC}, s{sI}, 7")
a(f"s_lshr_b32 s{sOR}, s{sI}, 3")
a(f"s_lshl2_add_u32 s{sOR}, s{sGRP}, s{sOR}")
a(f"s_cmp_ge_u32 s{sI}, 20")
a(f"s_cselect_b32 s{sROLE}, 1, 0")
a(f"s_cselect_b32 s{sT0}, 20, 0")
a(f"s_cselect_b32 s{sT1}, 5, 10")
a(f"s_sub_u32 s{sCG}, s{sI}, s{sT0}")
a(f"s_cmp_ge_u32 s{sCG}, s{sT1}")
a(f"s_cselect_b32 s{sT1}, s{sT1}, 0")
a(f"s_cselect_b32 s{sT0}, 1, 0")
a(f"s_sub_u32 s{sCG}, s{sCG}, s{sT1}")
a(f"s_lshl1_add_u32 s{sRB}, s{sGRP}, s{sT0}")
a(f"s_mul_i32 s{sXM}, s{sRB}, {128*1280}")
a("s_setprio 3")
a(f"s_cmp_lt_u32 s{sWV}, 4")
a("s_cbranch_scc1 L_service")
a(f"s_cmp_eq_u32 s{sROLE}, 0")
a("s_cbranch_scc1 L_compute")
TAP = 42
a(f"s_min_u32 s{sT3}, s{sCG}, 4")
a(f"s_lshl3_add_u32 s58, s{sT3}, s{sWV}")
a("s_sub_u32 s58, s58, 4")
a(f"s_lshl_b32 s{sT0}, s58, 7")
a(f"v_sub_u32 v{vT0}, v{vN}, v{vG}")
a(f"v_and_b32 v{vT0}, 3, v{vT0}")
a(f"v_and_or_b32 v{vT0}, v{vN}, 12, v{vT0}")
a(f"v_lshl_add_u32 v{vT0}, v{vT0}, 1, s{sT0}")
a("s_waitcnt lgkmcnt(0)")
for q in range(4): a(f"global_load_ushort v{TAP+q}, v{vT0}, s[{sSH}:{sSH+1}] offset:{32*q}")
a("s_branch L_awave")
a.label("L_service")
a(f"s_cmp_lg_u32 s{sROLE}, 0")
a("s_cbranch_scc1 L_aserv")
a(f"s_setprio {OPT['lprio']}")

vAa, vAb = 13, 14
sX1, sX2, sSL, sST = 52, 53, 54, 55
a(f"v_lshrrev_b32 v{vT0}, 3, v{vLANE}")
a(f"v_and_b32 v{vT1}, 7, v{vLANE}")
sRS = 65
a(f"s_mul_i32 s{sRS}, s{sGRP}, {OPT['rg']}")
a(f"s_lshr_b32 s{sRS}, s{sRS}, 2")
a(f"s_mul_i32 s{sT0}, s{sCG}, {OPT['rc']}")
a(f"s_lshr_b32 s{sT0}, s{sT0}, 2")
a(f"s_add_u32 s{sRS}, s{sRS}, s{sT0}")
a(f"s_sub_u32 s{sT0}, s{sRS}, 10")
a(f"s_cselect_b32 s{sRS}, s{sRS}, s{sT0}")
a(f"s_and_b32 s{sT0}, s{sWV}, 1")
a(f"s_cmp_ge_u32 s{sWV}, 2")
a("s_cbranch_scc1 L_lw")
vGX, vGWA, GAC, GD = 15, 17, 20, 24
def gate_setup():
    a(f"v_lshrrev_b32 v{vT1}, 1, v{vN}")
    a(f"v_xor_b32 v{vT1}, v{vT1}, v{vG}")
    a(f"v_lshlrev_b32 v{vT1}, 4, v{vT1}")
    a(f"v_lshl_add_u32 v{vT1}, v{vN}, 7, v{vT1}")
    a(f"s_lshl_b32 s{sT1}, s{sWV}, 6")
    a(f"v_xor_b32 v{vT1}, s{sT1}, v{vT1}")
    a(f"s_and_b32 s{sT0}, s{sCG}, 7")
    a(f"s_lshl_b32 s{sT0}, s{sT0}, 11")
    a(f"s_add_u32 s{sT0}, s{sT0}, 2048")
    a(f"v_add_u32 v18, s{sT0}, v{vT1}")
    a(f"s_add_u32 s{sT1}, s{sT1}, {GW}")
    a(f"v_lshl_add_u32 v{vGWA}, v{vG}, 4, s{sT1}")
    a("s_mov_b32 s64, 0")
    for r in range(GAC, GD + 8, 2): a(f"v_mov_b64 {v(r,2)}, 0")
def gate_reads():
    a(f"v_add_u32 v{vGX}, s64, v18")
    a(f"v_add_u32 v{vGX+1}, s68, v{vGWA}")
    a(f"ds_read_b128 {v(GD,4)}, v{vGX}")
    a(f"ds_read_b128 {v(GD+4,4)}, v{vGX+1}")
    a("s_add_u32 s68, s68, 128")
    a("s_cmp_eq_u32 s68, 1280")
    a("s_cselect_b32 s68, 0, s68")
    a(f"s_add_u32 s64, s64, {SLOT}")
    a(f"s_cmp_eq_u32 s64, {3*SLOT}")
    a("s_cselect_b32 s64, 0, s64")
def gate_dot():
    a("s_waitcnt lgkmcnt(0)")
    a(f"{MF} {v(GAC,4)}, {v(GD+4,4)}, {v(GD,4)}, {v(GAC,4)}")
def loader(tag, n, issue):
    L = f"L_ld_{tag}"
    a(f"s_load_dword s{sTAG}, {WSP}, {EPOCH}")
    trace()
    if tag == "x":
        a(f"s_cmp_lg_u32 s{sWV}, 0")
        a("s_cbranch_scc1 L_nogw")
        srd(a, SRD_2, sGW, sGW + 1, 1280)
        a(f"v_lshlrev_b32 v{vT0}, 4, v{vLANE}")
        a(f"s_mov_b32 m0, {GW}")
        a(f"buffer_load_dwordx4 v{vT0}, s[{SRD_2}:{SRD_2+3}], 0 offen lds")
        a("s_mov_b64 exec, 0xffff")
        a(f"buffer_load_dwordx4 v{vT0}, s[{SRD_2}:{SRD_2+3}], 0 offen offset:1024 lds")
        a("s_mov_b64 exec, -1")
        a.label("L_nogw")
    issue()
    a(f"s_add_u32 s62, s{sSL}, {3*SLOT}")
    a(f"s_mov_b32 s61, s{sSL}")
    a(f"s_add_u32 s{sSL}, s{sSL}, {SLOT}")
    a(f"s_mov_b32 s{sST}, 1")
    img_setup(IMG_B)
    if tag == "x": gate_setup()
    a("s_waitcnt lgkmcnt(0)")
    make_tag()
    if tag == "x": a(f"s_branch {L}_i")
    a.label(L)
    if tag == "x":
        gate_reads()
        a.label(f"{L}_i")
    issue(True)
    a(f"s_add_u32 s{sSL}, s{sSL}, {SLOT}")
    a(f"s_cmp_eq_u32 s{sSL}, s62")
    a(f"s_cselect_b32 s{sSL}, s61, s{sSL}")
    a(f"s_add_u32 s{sST}, s{sST}, 1")
    trace()
    a(f"s_waitcnt vmcnt({n})" + (" lgkmcnt(0)" if STAMPS_ON else ""))
    trace()
    a("s_barrier")
    a(f"s_cmp_lt_u32 s{sST}, 10")
    a(f"s_cbranch_scc1 {L}")
def issue_x(dots=False):
    a(f"s_mov_b32 m0, s{sSL}")
    a(f"s_mov_b32 s{sSO}, s{sX1}")
    for i in range(9):
        if i == 2: a(f"s_mov_b32 s{sSO}, s{sX2}")
        a(f"buffer_load_dwordx4 v{vAa if i % 2 == 0 else vAb}, s[{SRD_X}:{SRD_X+3}], s{sSO} offen lds")
        if i < 8: a("s_add_u32 m0, m0, 1024")
        if i != 1 and i < 8: a(f"s_add_u32 s{sSO}, s{sSO}, 10240")
        if dots and i == 4: gate_dot()
    a(f"s_add_u32 s{sRS}, s{sRS}, 1")
    a(f"s_cmp_eq_u32 s{sRS}, 10")
    a(f"s_cselect_b32 s{sSO}, -9, 1")
    a(f"s_lshl_b32 s{sSO}, s{sSO}, 7")
    a(f"s_add_u32 s{sX1}, s{sX1}, s{sSO}")
    a(f"s_add_u32 s{sX2}, s{sX2}, s{sSO}")
def issue_w(dots=False):
    a(f"s_mov_b32 m0, s{sSL}")
    for blk in range(4):
        for sec in range(3):
            a(f"buffer_load_dwordx4 v{vAa if blk % 2 == 0 else vAb}, s[{SRD_W}:{SRD_W+3}], s{sSO} offen lds")
            if (blk, sec) != (3, 2): a("s_add_u32 m0, m0, 1024")
            a(f"s_add_u32 s{sSO}, s{sSO}, {1280 if sec < 2 else (8*3840 if blk < 3 else 40*3840) - 2560}")
    a(f"s_sub_u32 s{sT0}, s{sSO}, {640*3840}")
    a(f"s_cselect_b32 s{sSO}, s{sSO}, s{sT0}")
a(f"v_mul_u32_u24 v{vT2}, 1280, v{vT0}")
a(f"v_xor_b32 v{vT3}, v{vT1}, v{vG}")
a(f"v_lshl_add_u32 v{vAa}, v{vT3}, 4, v{vT2}")
a(f"s_lshl_b32 s{sT1}, s{sT0}, 6")
a(f"v_xor_b32 v{vAa}, s{sT1}, v{vAa}")
a(f"v_xor_b32 v{vAb}, 64, v{vAa}")
a(f"s_sub_u32 s{sX1}, s{sXM}, {16*1280}")
a(f"s_cmp_eq_u32 s{sRB}, 0")
a(f"s_cselect_b32 s{sX1}, 0, s{sX1}")
a(f"s_add_u32 s{sT1}, s{sXM}, {7*10240}")
a(f"s_add_u32 s{sT2}, s{sXM}, {9*10240}")
a(f"s_cmp_eq_u32 s{sT0}, 0")
a(f"s_cselect_b32 s{sX1}, s{sX1}, s{sT1}")
a(f"s_cselect_b32 s{sX2}, s{sXM}, s{sT2}")
a(f"s_mul_i32 s{sSL}, s{sT0}, 9216")
a(f"s_lshl_b32 s68, s{sRS}, 7")
a(f"s_add_u32 s{sX1}, s{sX1}, s68")
a(f"s_add_u32 s{sX2}, s{sX2}, s68")
a("s_waitcnt lgkmcnt(0)")
srd(a, SRD_X, sX, sX + 1, 2048 * 1280)
loader("x", 9, issue_x)
gate_reads()
gate_dot()
a("s_branch L_ld_end")
a.label("L_lw")
a(f"v_and_b32 v{vT3}, 2, v{vT0}")
a(f"v_xor_b32 v{vT3}, v{vT3}, v{vT1}")
a(f"v_mul_u32_u24 v{vT2}, 3840, v{vT0}")
a(f"v_lshl_add_u32 v{vAa}, v{vT3}, 4, v{vT2}")
a(f"s_lshl_b32 s{sT1}, s{sCG}, 7")
a(f"v_add_u32 v{vAa}, s{sT1}, v{vAa}")
a(f"v_xor_b32 v{vAb}, 64, v{vAa}")
a(f"s_mul_i32 s{sSL}, s{sT0}, {WHALF}")
a(f"s_add_u32 s{sSL}, s{sSL}, {WPART}")
a(f"s_lshl1_add_u32 s{sSO}, s{sRS}, s{sT0}")
a(f"s_mul_i32 s{sSO}, s{sSO}, {32*3840}")
a("s_waitcnt lgkmcnt(0)")
srd(a, SRD_W, sWQ, sWQ + 1, 640 * 3840)
loader("w", 12, issue_w)
a.label("L_ld_end")
trace_at(24)
pp(21, 3)
img_run([[9], [10], [11], [12]])
a(f"s_cmp_lg_u32 s{sWV}, 2")
a("s_cbranch_scc1 L_wo_nc")
if not OPT["gsolo"]: mode_load()
a.label("L_wo_nc")
a("s_waitcnt vmcnt(5)")
a("s_barrier")
if OPT["gsolo"]: finish()
a(f"s_cmp_lg_u32 s{sWV}, 2")
a("s_cbranch_scc1 L_wo_nm")
mode_wait(first=True)
a.label("L_wo_nm")
a(f"s_cmp_ge_u32 s{sWV}, 2")
a("s_cbranch_scc1 L_wo_ng")
gate_reads()
gate_dot()
a(f"v_lshlrev_b32 v{vT1}, 2, v{vLANE}")
a(f"v_add_u32 v{vT1}, {YS}, v{vT1}")
a(f"s_cmp_eq_u32 s{sWV}, 0")
a("s_cbranch_scc1 L_wo_g0")
a(f"ds_write_b32 v{vT1}, v{GAC}")
lds_set(F_PV + 12, 1)
a("s_branch L_wo_ng")
a.label("L_wo_g0")
lds_set(F_PV + 8, 1)
lds_wait(F_PV + 12, 1)
a(f"ds_read_b32 v{GAC+1}, v{vT1}")
a("s_waitcnt lgkmcnt(0)")
a(f"v_add_f32 v{GAC}, v{GAC}, v{GAC+1}")
a(f"v_cvt_pk_bf16_f32 v{GAC}, v{GAC}, v{GAC}")
a(f"v_and_b32 v{GAC}, 0xffff0000, v{GAC}")
a(f"v_mul_f32 v{GAC}, 0xbfb8aa3b, v{GAC}")
a(f"v_exp_f32 v{GAC}, v{GAC}")
a(f"v_add_f32 v{GAC}, 1.0, v{GAC}")
a(f"v_rcp_f32 v{GAC}, v{GAC}")
a(f"v_cvt_pk_bf16_f32 v{GAC}, v{GAC}, v{GAC}")
a(f"v_and_b32 v{GAC+1}, 0xffff0000, v{GAC}")
a(f"v_mov_b32 v{GAC}, s{sTAG}")
a(f"s_lshl3_add_u32 s{sT0}, s{sRB}, s{sCG}")
a(f"s_lshl_b32 s{sT0}, s{sT0}, 7")
a(f"s_add_u32 s{sT0}, s{sT0}, {GWS}")
a(f"v_lshl_add_u32 v{vT1}, v{vN}, 3, s{sT0}")
a(f"s_cmp_ge_u32 s{sCG}, 8")
a("s_cbranch_scc1 L_wo_ng")
a("s_mov_b64 exec, 0xffff")
a(f"global_store_dwordx2 v{vT1}, {v(GAC,2)}, {WSP} sc1")
a("s_mov_b64 exec, -1")
a.label("L_wo_ng")
img_run([[6, 7], [13, 17, 8], [14, 18, 20], [15, 19, 21, 16]], OPT["bwd"] if OPT["bwd"] >= 0 else None)
trace()
a(f"v_lshl_add_u32 v19, v{vN}, 2, v{vFL}")
a(f"v_add_u32 v19, {F_PQ}, v19")
a("s_movk_i32 s62, 0xcff")
a("s_waitcnt vmcnt(0)")
lds_add(F_WOL)
trace()
mask_wait(19, 62, sleep=1)
if OPT["wo3"]: lds_wait(F_EXR, OPT["wo3"], sleep=1)
img_run([[0], [1], [2, 4], [3, 5]])
a(f"s_cmp_eq_u32 s{sWV}, 3")
a("s_cbranch_scc1 L_help")
a("s_waitcnt vmcnt(0)")
lds_add(F_WOL + 4)
trace()
a(f"s_cmp_lt_u32 s{sWV}, 2")
a("s_cbranch_scc1 L_aux")
finish()

a.label("L_help")
a(f"s_lshl_b32 s{sT0}, s{sOR}, 9")
a(f"s_add_u32 s{sT0}, s{sT0}, {GWS}")
a(f"v_lshl_add_u32 v14, v{vLANE}, 3, s{sT0}")
a(f"v_lshl_add_u32 v13, v{vLANE}, 2, v{vFL}")
a(f"s_mov_b32 s{sSPIN}, 0")
a(f"global_load_dwordx2 v[18:19], v14, {WSP} sc1")
a("s_waitcnt vmcnt(0)")
lds_add(F_WOL + 4)
a("s_branch L_gchk1")
a.label("L_gchk")
a(f"global_load_dwordx2 v[18:19], v14, {WSP} sc1")
a("s_waitcnt vmcnt(0)")
a.label("L_gchk1")
a(f"v_cmp_ne_u32 vcc, s{sTAG}, v18")
a("s_cbranch_vccz L_gok")
spin_tail("L_gchk", 8)
a.label("L_gok")
a("v_sub_f32 v18, 1.0, v19")
a(f"ds_write_b32 v13, v19 offset:{GOM - FL + 256}")
a(f"ds_write_b32 v13, v18 offset:{GOM - FL}")
lds_add(F_GRD)
trace()
a("s_cmp_lg_u32 s2, 0")
a("s_cbranch_scc1 L_th_exit")
lds_wait(F_MODE, 1, sleep=2)
a(f"v_mov_b32 v{vT0}, {EPOCH}")
a(f"v_mov_b32 v{vT1}, s{sTAG}")
a("s_mov_b64 exec, 1")
a(f"global_store_dword v{vT0}, v{vT1}, {WSP} sc1")
a("s_mov_b64 exec, -1")
if OPT.get("probe"):
    a("s_sleep 127")
    a(f"v_lshlrev_b32 v8, 4, v{vLANE}")
    a(f"v_add_u32 v8, {FSUM}, v8")
    a(f"global_load_dwordx4 v[12:15], v8, {WSP} offset:1024 sc1")
    a("s_waitcnt vmcnt(0)")
    for j in range(4): a(f"v_subrev_u32 v{12+j}, s72, v{12+j}")
    a("v_min3_i32 v16, v12, v13, v14"); a("v_min_i32 v16, v16, v15")
    a("s_mov_b32 s50, 0")
    for l in range(64):
        a(f"v_readlane_b32 s52, v16, {l}"); a("s_min_i32 s50, s50, s52")
    a("s_add_u32 s50, s50, s72")
    if OPT.get("pp"):
        a("s_add_u32 s55, s50, 2500")
        a.label("L_probe0")
        a("s_memrealtime s[52:53]"); a("s_waitcnt lgkmcnt(0)")
        a("s_sub_u32 s54, s52, s55"); a("s_cmp_lt_i32 s54, 0"); a("s_cbranch_scc1 L_probe0")
        a(f"global_load_dwordx4 v[12:15], v8, {WSP} offset:2048 sc1")
        a("s_waitcnt vmcnt(0)")
        for j in range(4): a(f"v_subrev_u32 v{12+j}, s50, v{12+j}")
        lanes = range(40, 60) if OPT.get("prole") else range(0, 40)
        if OPT.get("prole") == 2: lanes = range(64)
        if OPT.get("pmax"):
            a("v_max3_u32 v16, v12, v13, v14"); a("v_max_u32 v16, v16, v15")
        else:
            a("v_add3_u32 v16, v12, v13, v14"); a("v_add_u32 v16, v16, v15")
        a("s_mov_b32 s51, 0")
        for l in lanes:
            a(f"v_readlane_b32 s52, v16, {l}")
            a("s_max_u32 s51, s51, s52" if OPT.get("pmax") else "s_add_u32 s51, s51, s52")
        if OPT.get("pmax"): a("s_lshl_b32 s51, s51, 1")
        else:
            a(f"s_mul_i32 s51, s51, {round(65536 * 2 / (4 * len(lanes)))}"); a("s_lshr_b32 s51, s51, 16")
        a("s_min_u32 s51, s51, 10000")
        a("s_add_u32 s50, s50, s51")
    a("s_add_u32 s50, s50, 3000")
    a.label("L_probe")
    a("s_memrealtime s[52:53]"); a("s_waitcnt lgkmcnt(0)")
    a("s_sub_u32 s54, s52, s50"); a("s_cmp_lt_i32 s54, 0"); a("s_cbranch_scc1 L_probe")
a.label("L_th_exit")
finish()

a.label("L_aserv")
SRD_K, SRD_V = 84, 80
vKa = 13
a(f"v_mul_u32_u24 v{vT1}, 1280, v{vG}")
a(f"v_lshl_add_u32 v{vT0}, v{vN}, 4, v{vT1}")
a(f"s_lshl_b32 s{sT0}, s{sCG}, 8")
a(f"v_add_u32 v{vT0}, s{sT0}, v{vT0}")
a(f"s_lshl_b32 s{sT1}, s{sWV}, 6")
a(f"v_xor_b32 v{vKa}, s{sT1}, v{vT0}")
for j in range(1, 4): a(f"v_xor_b32 v{vKa+j}, {16*j}, v{vKa}")
a(f"s_mul_i32 s{sT0}, s{sWV}, {32*1280}")
a(f"s_add_u32 s52, s{sXM}, s{sT0}")
a(f"s_lshl_b32 s53, s{sWV}, 13")
a(f"s_sub_u32 s{sT0}, s{sXM}, {4*1280}")
a(f"v_xor_b32 v{vT0}, 0xf0, v{vT0}")
a(f"v_add_u32 v17, s{sT0}, v{vT0}")
a("s_waitcnt lgkmcnt(0)")
srd(a, SRD_K, sK, sK + 1, 2048 * 1280)
srd(a, SRD_V, sV, sV + 1, 2048 * 1280)
a(f"s_load_dword s{sTAG}, {WSP}, {EPOCH}")
if OPT["gsolo"]:
    a("s_barrier"); finish()
a(f"s_cmp_ge_u32 s{sCG}, 5")
a("s_cbranch_scc1 L_as_nokv")
a(f"s_cmp_lg_u32 s{sWV}, 0")
a("s_cbranch_scc1 L_as_nohalo")
a(f"s_mov_b32 m0, {KT}")
a(f"buffer_load_dwordx4 v17, s[{SRD_K}:{SRD_K+3}], 0 offen lds")
a.label("L_as_nohalo")
a(f"s_add_u32 m0, s53, {KT + 1024}")
a(f"s_mov_b32 s{sSO}, s52")
for i in range(8):
    a(f"buffer_load_dwordx4 v{vKa + i//2}, s[{SRD_K}:{SRD_K+3}], s{sSO} offen lds")
    if i < 7:
        a("s_add_u32 m0, m0, 1024")
        a(f"s_add_u32 s{sSO}, s{sSO}, 5120")
a(f"s_add_u32 m0, s53, {VT}")
for i in range(8):
    a(f"buffer_load_dwordx4 v{vKa + i//2}, s[{SRD_V}:{SRD_V+3}], s52 offen lds")
    if i < 7:
        a("s_add_u32 m0, m0, 1024")
        a("s_add_u32 s52, s52, 5120")
a.label("L_as_nokv")
trace()
a("s_waitcnt vmcnt(0) lgkmcnt(0)")
a("s_barrier")
trace()
make_tag()
sNCH = 64
a(f"s_sub_u32 s{sT0}, s{sI}, 20")
a(f"s_lshr_b32 s{sT0}, {hex(sum(1 << q for q in range(12) if q % 3 == 2))}, s{sT0}")
a(f"s_and_b32 s{sT0}, s{sT0}, 1")
a(f"s_sub_u32 s{sNCH}, 7, s{sT0}")
a(f"s_cmp_eq_u32 s{sWV}, 3")
a("s_cbranch_scc1 L_ahelp")
a("s_setprio 1")
img_setup(IMG_A)
a(f"s_mul_i32 s{sT0}, s{sWV}, {3*5120}")
a(f"s_add_u32 s{sT0}, s{sT0}, {IMG_A}")
a(f"v_lshl_add_u32 v20, v{vLANE}, 4, s{sT0}")
a("s_setprio 3")
lds_wait(F_UDN, 8, sleep=2)
a(f"s_cmp_lg_u32 s{sI}, {OPT['cenw']}")
a("s_cbranch_scc1 L_nohold")
lds_wait(F_KV, 1, sleep=8)
a.label("L_nohold")
trace()
img_run([[9, 12], [10, 13], [11]], OPT["wodepth"], dst=24)
img_run([[14, 17, 20], [15, 18, 21], [16, 19]], OPT["wodepth"])
img_list([[0, 1, 2], [3, 4, 5], [6, 7, 8]])
for k in range(3):
    img_group(24 + 20 * k)
    a(f"s_waitcnt vmcnt({OPT['wodepth']})")
a("s_waitcnt vmcnt(0)")
trace()
lds_wait(F_PB + 20, 1, sleep=8)
lds_wait(F_MRG, f"s{sNCH}", sleep=2)
img_run([[10, 13], [11, 9], [12]])
a("s_waitcnt vmcnt(0)")
lds_add(F_WOL)
trace()
lds_wait(F_CVD, 8, sleep=1)
for i in range(15):
    a(f"ds_write_b128 v20, {v(24+4*i,4)} offset:{1024*i}")
    if i >= 12: a("s_waitcnt lgkmcnt(8)")
lds_add(F_WOL + 4)
trace()
a(f"s_cmp_lt_u32 s{sWV}, 2")
a("s_cbranch_scc1 L_aux")
finish()

a.label("L_ahelp")
a(f"v_lshlrev_b32 v{vT0}, 2, v{vLANE}")
a(f"v_add_u32 v{vT0}, {YS}, v{vT0}")
a(f"v_mov_b32 v{vT1}, 0")
a(f"ds_write_b32 v{vT0}, v{vT1}")
a(f"s_sub_u32 s52, s{sI}, 20")
a(f"s_mul_i32 s{sT0}, s{sGRP}, {XGRP}")
a(f"s_mul_i32 s{sT1}, s52, {129*128}")
a(f"s_add_u32 s{sT0}, s{sT0}, s{sT1}")
a(f"s_add_u32 s{sT0}, s{sT0}, {XLW}")
a(f"v_lshl_add_u32 v15, v{vLANE}, 7, s{sT0}")
a("v_add_u32 v16, 8192, v15")
a("v_add_u32 v17, 16384, v15")
lds_wait(F_UDN, 8, sleep=2)
if OPT.get("probe"):
    a(f"s_lshl_b32 s{sT0}, s2, 2"); a(f"s_add_u32 s{sT0}, s{sT0}, {FSUM + 1024}")
    a(f"v_mov_b32 v{vT0}, s{sT0}"); a(f"v_mov_b32 v{vT1}, s72")
    a(f"global_store_dword v{vT0}, v{vT1}, {WSP} sc1")
cell_init()
trace()
a(f"s_cmp_lg_u32 s{sI}, {OPT['cenw']}")
a("s_cbranch_scc1 L_nocen")
census()
lds_set(F_KV, 1)
a.label("L_nocen")
trace()
for i in range(3):
    if i == 2: a("s_mov_b64 exec, 1")
    a(f"global_load_dword v18, v{15+i}, {WSP} sc1")
a("s_mov_b64 exec, -1")
tlb_touch()
a("s_sleep 20")
mode_wait()
trace()
lds_add(F_WOL)
lds_wait(F_MRG, 1, sleep=8)
a("s_branch L_help")

a.label("L_aux")
a("s_setprio 3")
my_block(sT0)
a(f"s_lshl3_add_u32 s{sT0}, s{sWV}, s{sT0}")
a(f"s_add_u32 s40, s{sWS}, s{sT0}")
a(f"s_addc_u32 s41, s{sWS+1}, 0")
a(f"s_mul_i32 s{sT0}, s{sOC}, {80*4096}")
a(f"s_mul_i32 s{sT1}, s{sWV}, {40*4096}")
a(f"s_add_u32 s{sT0}, s{sT0}, s{sT1}")
a(f"s_lshl_b32 s{sT1}, s{sOR}, 7")
a(f"s_add_u32 s{sT0}, s{sT0}, s{sT1}")
a(f"s_add_u32 s{sT0}, s{sT0}, {YWS}")
a(f"v_lshrrev_b32 v13, 3, v{vLANE}")
a(f"v_and_b32 v12, 7, v{vLANE}")
a("v_and_b32 v15, 6, v13")
a("v_xor_b32 v15, v15, v12")
a("v_lshlrev_b32 v15, 4, v15")
a("v_lshl_add_u32 v15, v13, 7, v15")
a(f"s_mul_i32 s{sT1}, s{sWV}, 5120")
a(f"s_add_u32 s{sT1}, s{sT1}, {YT}")
a(f"v_add_u32 v15, s{sT1}, v15")
a("v_lshlrev_b32 v13, 12, v13")
a("v_lshl_add_u32 v13, v12, 4, v13")
a(f"v_add_u32 v20, s{sT0}, v13")
for i in range(1, 5): a(f"v_add_u32 v{20+i}, {8*4096*i}, v20")
a(f"s_and_b32 s44, s{sTAG}, 0xffffff00")
a("s_add_u32 s44, s44, 0x600")
a(f"s_mov_b32 s{sSPIN}, 0")
a.label("L_yp")
a("s_load_dwordx2 s[42:43], s[40:41], 0 glc")
a("s_waitcnt lgkmcnt(0)")
a("s_and_b32 s43, s43, 0xffffff00")
a("s_cmp_eq_u32 s43, s44")
a("s_cbranch_scc1 L_ypd")
spin_tail("L_yp", OPT["ysleep"])
a.label("L_ypd")
trace_at(16)
pp(9, 0)
a(f"s_mov_b32 s{sSPIN}, 0")
a.label("L_yretry")
for i in range(5): a(f"global_load_dwordx4 {v(28+4*i,4)}, v{20+i}, {WSP} sc1")
a("v_mov_b32 v16, 0")
for i in range(5):
    a(f"s_waitcnt vmcnt({4-i})")
    a(f"ds_write_b128 v15, {v(28+4*i,4)} offset:{1024*i}")
    a(f"v_add3_u32 v16, v16, v{28+4*i}, v{29+4*i}")
    a(f"v_add3_u32 v16, v16, v{30+4*i}, v{31+4*i}")
wave_sum_eq(16, "s42")
a("s_cbranch_scc1 L_yok")
spin_tail("L_yretry", 2)
a.label("L_yok")
lds_add(F_YLD)
pp(26, 0)
trace()
if STAMPS_ON:
    a(f"s_add_u32 s{sSPIN}, s{sSPIN}, s72"); a(f"s_add_u32 s{sSPIN}, s{sSPIN}, 1"); a(f"v_writelane_b32 v{vTR}, s{sSPIN}, 20")
finish()

a.label("L_compute")
a("s_waitcnt lgkmcnt(0)")
a(f"s_load_dword s{sTAG}, {WSP}, {EPOCH}")


sGW_, sT, sMH, sPH, sSLOT, sINF, sCGP, sB1 = 40, 41, 42, 43, 44, 45, 46, 47
sNQ, sNV, sOWN, sRM, sSC, sFLO = 48, 49, 50, 52, 54, 55
sMT, sE = 56, 57
ACC = 8; XF = 68; WF = 108
vXB, vWB, vXA, vWA, vFA, vINC, vPW, vCNT, vFG = 132, 133, 134, 136, 137, 138, 139, 140, 141
BO, BP, MK = 144, 148, 152
vEXW, vQM, vXS, vXR, vOA, vOX, vVX, vPF, vBND, vPQ = 156, 157, 158, 159, 160, 161, 162, 163, 164, 165
NEG = 0xf149f2ca
a(f"s_setprio {OPT['phi']}")
a(f"s_sub_u32 s{sGW_}, s{sWV}, 4")
a(f"s_lshr_b32 s{sMH}, s{sGW_}, 2")
a(f"s_and_b32 s{sMT}, s{sGW_}, 3")
a(f"s_xor_b32 s{sT}, s{sMT}, s{sMH}")
a(f"s_sub_u32 s{sCGP}, s{sCG}, 5")
a(f"s_cselect_b32 s{sCGP}, s{sCG}, s{sCGP}")
a(f"s_mov_b32 s{sT0}, {hex(JT[0])}"); a(f"s_mov_b32 s{sINF}, {hex(INFO[0])}")
for c in range(1, 5):
    a(f"s_cmp_eq_u32 s{sCGP}, {c}")
    a(f"s_cselect_b32 s{sT0}, {hex(JT[c])}, s{sT0}")
    a(f"s_cselect_b32 s{sINF}, {hex(INFO[c])}, s{sINF}")
a(f"s_lshl_b32 s{sT1}, s{sT}, 3")
a(f"s_lshr_b32 s{sT0}, s{sT0}, s{sT1}")
a(f"s_lshr_b32 s{sINF}, s{sINF}, s{sT1}")
a(f"s_and_b32 s{sINF}, s{sINF}, 0xff")
a(f"v_lshrrev_b32 v{vT1}, 1, v{vN}")
a(f"v_xor_b32 v{vT1}, v{vT1}, v{vG}")
a(f"v_lshlrev_b32 v{vT1}, 4, v{vT1}")
a(f"v_lshl_add_u32 v{vXB}, v{vN}, 7, v{vT1}")
a(f"s_lshl_b32 s{sT1}, s{sMH}, 13")
a(f"v_add_u32 v{vXB}, s{sT1}, v{vXB}")
a(f"v_and_b32 v{vT0}, 3, v{vLANE}")
a(f"v_lshlrev_b32 v{vT1}, 1, v{vT0}")
a(f"v_bfe_u32 v{vT1}, s{sT0}, v{vT1}, 2")
a(f"v_bfe_u32 v{vT2}, v{vLANE}, 3, 2")
a(f"v_xor_b32 v{vT1}, v{vT1}, v{vT2}")
a(f"v_lshl_add_u32 v{vT1}, v{vT1}, 2, v{vT0}")
a(f"v_bfe_u32 v{vT2}, v{vLANE}, 2, 2")
a(f"v_mad_u32_u24 v{vT2}, v{vG}, 24, v{vT2}")
a(f"v_lshlrev_b32 v{vT2}, 7, v{vT2}")
a(f"v_lshl_add_u32 v{vWB}, v{vT1}, 3, v{vT2}")
a(f"v_add_u32 v{vWB}, {WPART}, v{vWB}")
for r in range(ACC, ACC + 60): a(f"v_mov_b32 v{r}, 0")
a(f"s_mov_b32 s{sPH}, 0")
a(f"s_mov_b32 s{sSLOT}, 0")
a(f"v_mov_b32 v{vXA}, v{vXB}")
a(f"v_xor_b32 v{vXA+1}, 64, v{vXB}")
a(f"v_mov_b32 v{vWA}, v{vWB}")
a(f"v_mov_b32 v{vT3}, {hex(NEG)}")
a(f"v_lshlrev_b32 v{vT0}, 2, v{vG}")
a(f"v_sub_u32 v{vT0}, v{vN}, v{vT0}")
for r in range(4):
    a(f"v_subrev_u32 v{vT1}, {r}, v{vT0}")
    a(f"v_and_b32 v{vT1}, 0x80000001, v{vT1}")
    a(f"v_cmp_eq_u32 vcc, 0, v{vT1}")
    a(f"v_cndmask_b32 v{BO+r}, v{vT3}, 0, vcc")
    a(f"v_cmp_eq_u32 vcc, 0x80000000, v{vT1}")
    a(f"v_cndmask_b32 v{BP+r}, v{vT3}, 0, vcc")
a(f"v_and_b32 v{vT1}, 1, v{vN}")
a(f"v_lshlrev_b32 v{vT2}, 4, v{vT1}")
a(f"v_mov_b32 v{vT3}, 0xffff")
a(f"v_lshlrev_b32 v{vT3}, v{vT2}, v{vT3}")
a(f"v_sub_u32 v{vT1}, v{vT0}, v{vT1}")
a(f"v_cmp_le_i32 vcc, 0, v{vT1}")
a(f"v_cndmask_b32 v{MK}, 0, v{vT3}, vcc")
a(f"v_cndmask_b32 v{MK+2}, v{vT3}, 0, vcc")
a(f"v_cmp_le_i32 vcc, 2, v{vT1}")
a(f"v_cndmask_b32 v{MK+1}, 0, v{vT3}, vcc")
a(f"v_cndmask_b32 v{MK+3}, v{vT3}, 0, vcc")
a(f"s_mov_b32 s{sSC}, {hex(f2u((20 ** -0.5) * math.log2(math.e)))}")
a(f"v_bfe_i32 v{vQM}, s{sINF}, v{vG}, 1")
a(f"v_cmp_ne_u32 s[{sOWN}:{sOWN+1}], 0, v{vQM}")
a(f"s_bfe_u32 s60, s{sINF}, {4 | (2 << 16)}")
a(f"v_cmp_eq_u32 s[{sRM}:{sRM+1}], s60, v{vG}")
a(f"s_bfe_u32 s61, s{sINF}, {6 | (1 << 16)}")
a(f"s_lshr_b32 s62, s{sT}, 1")
a(f"s_add_u32 s{sT0}, s{sT}, 1")
a(f"s_bfe_u32 s{sT0}, s{sT0}, {1 | (1 << 16)}")
a(f"s_xor_b32 s{sE}, s{sT0}, 1")
a(f"s_bitcmp1_b32 s{sINF}, 7")
a(f"s_cselect_b32 s63, s62, s61")
a(f"s_mul_i32 s{sT0}, s63, {EXT}")
a(f"s_lshl_b32 s{sT1}, s{sMH}, 11")
a(f"s_add_u32 s{sT0}, s{sT0}, s{sT1}")
a(f"s_add_u32 s{sT0}, s{sT0}, {EX}")
a(f"v_lshl_add_u32 v{vEXW}, v{vLANE}, 3, s{sT0}")
a(f"v_and_b32 v{vT0}, 0x33, v{vLANE}")
a(f"s_lshl_b32 s{sT1}, s60, 5")
a(f"s_add_u32 s{sT0}, s{sT0}, s{sT1}")
a(f"v_lshl_add_u32 v{vVX}, v{vT0}, 3, s{sT0}")
a(f"s_lshl_b32 s{sT0}, s{sT}, 10")
a(f"s_add_u32 s{sT0}, s{sT0}, {EXB}")
a(f"v_lshl_add_u32 v{vBND}, v{vLANE}, 3, s{sT0}")
a(f"v_min_u32 v{vT0}, 16, v{vLANE}")
a(f"v_lshl_add_u32 v{vPF}, v{vT0}, 2, v{vFL}")
a(f"v_add_u32 v{vPF}, {F_PQ}, v{vPF}")
a(f"s_lshl1_add_u32 s{sT0}, s{sT}, s{sMH}")
a(f"s_lshl_b32 s{sT0}, s{sT0}, 2")
a(f"v_add_u32 v{vPQ}, s{sT0}, v{vFL}")
a(f"s_lshl_b32 s{sT0}, s{sT}, 1")
a(f"s_lshl_b32 s{sT0}, s{sMH}, s{sT0}")
a(f"s_lshl1_add_u32 s{sT1}, s{sMH}, 1")
a(f"s_mul_i32 s{sT2}, s61, 6")
a(f"s_lshl_b32 s{sT1}, s{sT1}, s{sT2}")
a(f"s_or_b32 s{sT2}, s{sT0}, s{sT1}")
a(f"s_bitcmp1_b32 s{sINF}, 7")
a(f"s_cselect_b32 s{sNQ}, s{sT0}, s{sT2}")
a(f"s_cselect_b32 s{sNV}, s{sT0}, s{sT1}")
a(f"s_lshl_b32 s{sNV}, s{sNV}, 8")
a(f"s_or_b32 s{sNQ}, s{sNQ}, 0x10000")
a(f"s_and_b32 s64, s{sRB}, 1")
a(f"s_lshl1_add_u32 s65, s64, s{sMH}")
a(f"s_mul_i32 s{sT0}, s65, {2*40960}")
a(f"s_mul_i32 s{sT1}, s{sGRP}, {OGRP}")
a(f"s_add_u32 s{sT0}, s{sT0}, s{sT1}")
a(f"s_lshl_b32 s{sT1}, s{sCG}, 11")
a(f"s_add_u32 s{sT0}, s{sT0}, s{sT1}")
a(f"s_add_u32 s{sT0}, s{sT0}, {UWS}")
a(f"s_mul_i32 s{sT1}, s{sE}, 20480")
a(f"s_lshl3_add_u32 s{sT1}, s62, s{sT1}")
a(f"s_add_u32 s{sT1}, s{sT1}, s{sT0}")
a(f"v_lshl_add_u32 v{vOA}, v{vLANE}, 4, s{sT1}")
a(f"s_lshl_b32 s{sT1}, s60, 8")
a(f"s_lshl3_add_u32 s{sT1}, s61, s{sT1}")
a(f"s_add_u32 s{sT1}, s{sT1}, 20480")
a(f"s_add_u32 s{sT1}, s{sT1}, s{sT0}")
a(f"v_lshrrev_b32 v{vT0}, 1, v{vG}")
a(f"v_mul_u32_u24 v{vT0}, {40960 - 2048}, v{vT0}")
a(f"v_lshl_add_u32 v{vT0}, v{vG}, 10, v{vT0}")
a(f"v_lshl_add_u32 v{vT0}, v{vN}, 4, v{vT0}")
a(f"v_add_u32 v{vOX}, s{sT1}, v{vT0}")
a(f"s_mul_i32 s66, s{sGRP}, {XGRP}")
a(f"s_add_u32 s66, s66, {XLW}")
a(f"s_lshl_b32 s{sT0}, s65, 8")
a(f"s_lshl_b32 s{sT1}, s{sE}, 7")
a(f"s_add_u32 s{sT0}, s{sT0}, s{sT1}")
a(f"s_lshl1_add_u32 s{sT1}, s{sCG}, s62")
a(f"s_lshl2_add_u32 s{sT0}, s{sT1}, s{sT0}")
a(f"s_add_u32 s{sT0}, s{sT0}, s66")
a(f"s_add_u32 s{sFLO}, s{sT0}, {XFLG}")
a(f"s_cmp_ge_u32 s{sCG}, 5")
a(f"s_cselect_b32 s{sT0}, 3, -1")
a(f"s_add_u32 s{sT0}, s{sT0}, s{sCGP}")
a(f"s_add_u32 s{sT0}, s{sT0}, s62")
a(f"s_and_b32 s{sT0}, s{sT0}, 7")
a(f"s_lshl3_add_u32 s{sT0}, s64, s{sT0}")
a(f"s_lshl1_add_u32 s{sT0}, s{sT0}, s62")
a(f"s_lshl1_add_u32 s{sT0}, s{sT0}, s{sMH}")
a(f"s_xor_b32 s{sT1}, s{sT0}, 2")
a(f"s_mul_i32 s{sT0}, s{sT0}, 3072")
a(f"s_mul_i32 s{sT1}, s{sT1}, 3072")
a(f"s_add_u32 s{sT0}, s{sT0}, s66")
a(f"s_add_u32 s{sT1}, s{sT1}, s66")
a(f"v_lshl_add_u32 v{vXR}, v{vLANE}, 4, s{sT0}")
a(f"v_lshl_add_u32 v{vXS}, v{vLANE}, 4, s{sT1}")
a("s_waitcnt lgkmcnt(0)")
a(f"s_mul_i32 s{sTAG}, s{sTAG}, 1664525")
a(f"s_add_u32 s{sTAG}, s{sTAG}, 1013904223")
trace_at(0)

def gemm_loop(js, tag):
    L = f"L_gemm_{tag}"
    def reads(b):
        w = lambda s_: [f"ds_read_b64_tr_b16 {v(WF+12*b+4*s_+2*e,2)}, v{vWA} offset:{WHALF*b + 1024*s_ + 512*e}" for e in range(2)]
        x = lambda j: [f"ds_read_b128 {v(XF+20*b+4*j,4)}, v{vXA+b} offset:{2048*j}"]
        out = x(js[0]) + w(1) + w(2) + x(js[1]) + w(0)
        for j in js[2:]: out += x(j)
        return out
    def mf(b):
        out = []
        for j in js:
            for s_ in (1, 2, 0):
                if s_ == 0 and j == 0: continue
                acc = v(ACC + 20 * s_ + 4 * j, 4); w_, x_ = v(WF+12*b+4*s_, 4), v(XF+20*b+4*j, 4)
                out.append(f"{MF} {acc}, {x_ if s_ == 2 else w_}, {w_ if s_ == 2 else x_}, {acc}")
        return out
    mh = int(js[0] == 1)
    def phase(b, pend, kind):
        m = mf(b)
        gaps = [[] for _ in m]
        k = OPT["r0"]
        def lateprio():
            lp = a.newlabel("Llp")
            return [f"s_bitcmp1_b32 s{sINF}, 7", "s_setprio 3", f"s_cbranch_scc1 {lp}", "s_setprio 1", f"{lp}:"]
        if kind == 0 and b == 1:
            k = OPT["bk"]
            gaps[k] = ["s_barrier"]
            gaps[0] = [f"s_add_u32 s{sSLOT}, s{sSLOT}, {SLOT}", f"s_cmp_eq_u32 s{sSLOT}, {3*SLOT}", f"s_cselect_b32 s{sSLOT}, 0, s{sSLOT}",
                       f"v_add_u32 v{vXA}, s{sSLOT}, v{vXB}", f"v_add_u32 v{vWA}, s{sSLOT}, v{vWB}"] + gaps[0]
            gaps[k] += [f"s_setprio {OPT['pa%d' % mh]}"]
            gaps[k + 2] += [f"v_xor_b32 v{vXA+1}, 64, v{vXA}"]
            gaps[-3] += [f"s_add_u32 s{sPH}, s{sPH}, 1"]
            gaps[-2] += [f"s_cmp_lt_u32 s{sPH}, 9"]
        elif kind == 0: gaps[0] = [f"s_setprio {OPT['pb%d' % mh]}"]
        elif kind == 1: gaps[0] = lateprio() if OPT["lrun"] >= 2 else [f"s_setprio {OPT['pb%d' % mh]}"]
        elif OPT["lrun"] == 1: gaps[0] = lateprio()
        while pend:
            gaps[k] += pend[:OPT["rpg"]]; pend = pend[OPT["rpg"]:]; k += 1
        if kind == 0 and b == 1: gaps[-1] += [f"s_cbranch_scc1 {L}"]
        a("s_waitcnt lgkmcnt(0)")
        for k in range(len(m)):
            a(m[k])
            if b == 1 and k == 8 and OPT["ltr"]: trace()
            for x in gaps[k]: a(x)
    a.label(f"{L}0")
    a("s_barrier")
    trace()
    if mh: pp(20, 8)
    for r in reads(0): a(r)
    if mh and not OPT["gsolo"]:
        a(f"s_cmp_lg_u32 s{sWV}, 11")
        a(f"s_cbranch_scc1 {L}")
        if OPT.get("probe"):
            a(f"s_lshl_b32 s{sT0}, s2, 2"); a(f"s_add_u32 s{sT0}, s{sT0}, {FSUM + 1024}")
            a(f"v_mov_b32 v{vT0}, s{sT0}"); a(f"v_mov_b32 v{vT1}, s72")
            a(f"global_store_dword v{vT0}, v{vT1}, {WSP} sc1")
        cell_init()
        tlb_touch()
    a.label(L)
    phase(0, reads(1), 0)
    phase(1, reads(0), 0)
    phase(0, reads(1), 1)
    phase(1, [], 2)
    if not mh: a("s_branch L_gdone")
a(f"s_cmp_lg_u32 s{sMH}, 0")
a("s_cbranch_scc1 L_gemm_40")
gemm_loop([0, 1, 2, 3, 4], "5")
gemm_loop([1, 2, 3, 4], "4")
a.label("L_gdone")
trace()
if OPT["gsolo"]: finish()
pp(2, 8)
QOP, KOP, VM, VXX, XG, BF = 68, 84, 104, 114, 124, 136
SO, SP = 8, 24
XR, M, PP, OM, OX, OPK, XP = 68, 80, 84, 8, 24, 40, 100
AQ, AK, AV = ACC, ACC + 20, ACC + 40
LR = [XG, XG+1, XG+2, XG+4, XG+5, XG+6, XG+8, XG+9]
LA = [LR[2*h] for h in range(4)]; LB = [LR[2*h+1] for h in range(4)]
def bf_setup():
    a(f"s_or_b32 s{sT0}, s{sRB}, s{sMH}")
    a(f"s_cmp_eq_u32 s{sT0}, 0")
    a(f"s_cselect_b32 s{sT0}, {hex(NEG)}, 0")
    for r in range(4): a(f"v_add_f32 v{BF+r}, s{sT0}, v{BP+r}")
def select(h):
    a(f"v_max3_f32 v{LA[h]}, v{SO+4*h}, v{SO+4*h+1}, v{SP+4*h}")
    a(f"v_max3_f32 v{LB[h]}, v{SO+4*h+2}, v{SO+4*h+3}, v{SP+4*h+2}")
    a(f"v_max_f32 v{LA[h]}, v{LA[h]}, v{SP+4*h+1}")
    a(f"v_max_f32 v{LB[h]}, v{LB[h]}, v{SP+4*h+3}")
def get_mode(vt=vT0):
    a(f"v_readlane_b32 s{sMODE}, v{vt}, 16")
    set_mode()
a(f"s_bitcmp0_b32 s{sINF}, 7")
a("s_cbranch_scc1 L_full")
a("s_setprio 3")
for j in (4, 3, 2, 1):
    pack(KOP + 4 * j, AK + 4 * j)
    a(f"ds_write_b64 v{vEXW}, {v(KOP+4*j,2)} offset:{(9+j)*512}")
a(f"s_cmp_lg_u32 s{sMH}, 0")
a("s_cbranch_scc1 L_l_nk0")
pack(KOP, AK)
a(f"ds_write_b64 v{vEXW}, {v(KOP,2)} offset:{9*512}")
a.label("L_l_nk0")
for i in range(4):
    pack(QOP + 4 * i, AQ + 4 * (i + 1))
    a(f"ds_write_b64 v{vEXW}, {v(QOP+4*i,2)} offset:{(i+1)*512}")
lds_set(F_PQ, 1, vaddr=vPQ, vt=vT1)
for i in range(4):
    for e in range(2): a(f"v_and_b32 v{QOP+4*i+e}, v{vQM}, v{QOP+4*i+e}")
for i in (3, 2, 1, 0):
    a(f"{MH} {v(SO+4*i,4)}, {v(KOP+4*(i+1),2)}, {v(QOP+4*i,2)}, {v(BO,4)}")
    if i: a(f"{MH} {v(SP+4*i,4)}, {v(KOP+4*i,2)}, {v(QOP+4*i,2)}, {v(BP,4)}")
bf_setup()
mask_wait(vPF, sNQ)
get_mode()
a(f"s_cmp_eq_u32 s{sMH}, 0")
a("s_cbranch_scc1 L_l_k0")
a(f"ds_read_b64 {v(KOP,2)}, v{vEXW} offset:{9*512}")
a.label("L_l_k0")
for r in (3, 7, 11): a(f"v_mov_b32 v{XG+r}, s{sTAG}")
for h in (3, 2): select(h)
a("s_waitcnt lgkmcnt(0)")
a(f"{MH} {v(SP,4)}, {v(KOP,2)}, {v(QOP,2)}, {v(BF,4)}")
select(1)
pack(VM, AV + 16)
a(f"ds_write_b64 v{vEXW}, {v(VM,2)} offset:{(18+4)*512}")
select(0)
dual(lambda f: [a(f"global_store_dwordx4 v{vXS}, {v(XG+4*q,4)}, {LBP} offset:{1024*q}{f}") for q in (2, 1, 0)])
trace()
for j in (3, 2, 1):
    pack(VM + 2 * (4 - j), AV + 4 * j)
    a(f"ds_write_b64 v{vEXW}, {v(VM+2*(4-j),2)} offset:{(18+j)*512}")
a(f"s_cmp_lg_u32 s{sMH}, 0")
a("s_cbranch_scc1 L_l_nv0")
pack(VM + 8, AV)
a(f"ds_write_b64 v{vEXW}, {v(VM+8,2)} offset:{18*512}")
lds_set(F_PV, 1, vaddr=vPQ, vt=vT1)
a("s_branch L_l_v0")
a.label("L_l_nv0")
lds_set(F_PV, 1, vaddr=vPQ, vt=vT1)
mask_wait(vPF, sNV)
a(f"ds_read_b64 {v(VM+8,2)}, v{vEXW} offset:{18*512}")
a.label("L_l_v0")
a(f"s_mov_b32 s{sSPIN}, 0")
a.label("L_xp")
for q in range(3): a(f"global_load_dwordx4 {v(XR+4*q,4)}, v{vXR}, {LBP} offset:{1024*q} sc1")
a("s_waitcnt vmcnt(0)")
a(f"v_cmp_ne_u32 vcc, s{sTAG}, v{XR+3}")
a(f"v_cmp_ne_u32 s[60:61], s{sTAG}, v{XR+7}")
a(f"v_cmp_ne_u32 s[62:63], s{sTAG}, v{XR+11}")
a("s_or_b64 vcc, vcc, s[60:61]")
a("s_or_b64 vcc, vcc, s[62:63]")
a("s_cbranch_scc0 L_xpd")
spin_tail("L_xp")
a.label("L_xpd")
trace()
for r in LR: a(f"v_add_f32 v{r}, v{r}, v{r - XG + XR}")
a("s_branch L_soft")
a.label("L_full")
pack(KOP + 16, AK + 16); pack(VM, AV + 16)
a(f"s_cmp_lg_u32 s{sMH}, 0")
a("s_cbranch_scc1 L_f_nb")
a(f"ds_write_b64 v{vBND}, {v(KOP+16,2)}")
a(f"ds_write_b64 v{vBND}, {v(VM,2)} offset:512")
pack(KOP, AK); pack(VM + 8, AV)
a.label("L_f_nb")
lds_set(F_PQ, 1, vaddr=vPQ, vt=vT1)
for i in range(4):
    pack(QOP + 4 * i, AQ + 4 * (i + 1))
    a(f"v_mov_b32 v{QOP+4*i+2}, 0"); a(f"v_mov_b32 v{QOP+4*i+3}, 0")
for j in (1, 2, 3): pack(KOP + 4 * j, AK + 4 * j)
bf_setup()
mask_wait(vPF, sNQ)
get_mode()
trace()
a(f"s_cmp_eq_u32 s{sMH}, 0")
a("s_cbranch_scc1 L_f_nr")
a(f"ds_read_b64 {v(KOP,2)}, v{vBND}")
a(f"ds_read_b64 {v(VM+8,2)}, v{vBND} offset:512")
a.label("L_f_nr")
a(f"s_mov_b64 exec, s[{sRM}:{sRM+1}]")
for i in range(4): a(f"ds_read_b64 {v(QOP+4*i+2,2)}, v{vEXW} offset:{(i+1)*512}")
a("s_mov_b64 exec, -1")
for j in range(5): a(f"ds_read_b64 {v(KOP+4*j+2,2)}, v{vEXW} offset:{(9+j)*512}")
for j in (1, 2, 3): pack(VM + 2 * (4 - j), AV + 4 * j)
for i in range(4):
    a(f"s_waitcnt lgkmcnt({3-i})")
    a(f"{MF} {v(SO+4*i,4)}, {v(KOP+4*(i+1),4)}, {v(QOP+4*i,4)}, {v(BO,4)}")
    a(f"{MF} {v(SP+4*i,4)}, {v(KOP+4*i,4)}, {v(QOP+4*i,4)}, {v(BF if i == 0 else BP,4)}")
mask_wait(vPF, sNV)
for j in range(5): a(f"ds_read_b64 {v(VXX+2*(4-j),2)}, v{vVX} offset:{(18+j)*512}")
for h in range(4): select(h)
trace()
a.label("L_soft")
for h in range(4): a(f"v_max_f32 v{M+h}, v{LA[h]}, v{LB[h]}")
def xreduce(op, mid):
    a(f"v_permlane32_swap_b32 v{M}, v{M+1}")
    a(f"v_permlane32_swap_b32 v{M+2}, v{M+3}")
    a(f"{op} v{M}, v{M}, v{M+1}")
    a(f"{op} v{M+2}, v{M+2}, v{M+3}")
    a(f"v_permlane16_swap_b32 v{M}, v{M+2}")
    a(f"{op} v{M}, v{M}, v{M+2}")
    mid(M)
    a(f"v_mov_b32 v{M+2}, v{M}")
    a(f"v_permlane16_swap_b32 v{M}, v{M+2}")
    a(f"v_mov_b32 v{M+1}, v{M}")
    a(f"v_mov_b32 v{M+3}, v{M+2}")
    a(f"v_permlane32_swap_b32 v{M}, v{M+1}")
    a(f"v_permlane32_swap_b32 v{M+2}, v{M+3}")
xreduce("v_max_f32", lambda r: a(f"v_mul_f32 v{r}, s{sSC}, v{r}"))
for h in range(4):
    a(f"v_fma_f32 v{LA[h]}, v{LA[h]}, s{sSC}, -v{M+h}")
    a(f"v_fma_f32 v{LB[h]}, v{LB[h]}, s{sSC}, -v{M+h}")
for h in range(4):
    a(f"v_exp_f32 v{LA[h]}, v{LA[h]}")
    a(f"v_exp_f32 v{LB[h]}, v{LB[h]}")
for h in range(4): a(f"v_add_f32 v{M+h}, v{LA[h]}, v{LB[h]}")
xreduce("v_add_f32", lambda r: a(f"v_rcp_f32 v{r}, v{r}"))
a("s_waitcnt lgkmcnt(0)")
lds_add(F_EXR)
for h in range(4):
    a(f"v_mul_f32 v{LA[h]}, v{LA[h]}, v{M+h}")
    a(f"v_mul_f32 v{LB[h]}, v{LB[h]}, v{M+h}")
    a(f"v_cvt_pk_bf16_f32 v{LA[h]}, v{LA[h]}, v{LA[h]}")
    a(f"v_cvt_pk_bf16_f32 v{LB[h]}, v{LB[h]}, v{LB[h]}")
    a(f"v_and_b32 v{PP+4*h}, v{LA[h]}, v{MK}")
    a(f"v_and_b32 v{PP+4*h+1}, v{LB[h]}, v{MK+1}")
    a(f"v_and_b32 v{PP+4*h+2}, v{LA[h]}, v{MK+2}")
    a(f"v_and_b32 v{PP+4*h+3}, v{LB[h]}, v{MK+3}")
    if h > 0: a(f"{MF} {v(OM+4*(h-1),4)}, {v(VM+2*(4-h),4)}, {v(PP+4*(h-1),4)}, 0")
a(f"v_add_u32 v{vEXW}, 40960, v{vOA}")
a(f"{MF} {v(OM+12,4)}, {v(VM,4)}, {v(PP+12,4)}, 0")
a(f"s_bitcmp1_b32 s{sINF}, 7")
a("s_cbranch_scc1 L_norem")
for i in range(4): a(f"{MF} {v(OX+4*i,4)}, {v(VXX+2*(3-i),4)}, {v(PP+4*i,4)}, 0")
a.label("L_norem")
for i in range(4): pack(OPK + 2 * i, OM + 4 * i)
a(f"s_mov_b64 exec, s[{sOWN}:{sOWN+1}]")
dual(lambda f: [a(f"global_store_dwordx2 v{vOA if i < 2 else vEXW}, {v(OPK+2*i,2)}, {LBP} offset:{1024*(i&1)}{f}") for i in range(4)])
a("s_mov_b64 exec, -1")
a(f"s_bitcmp1_b32 s{sINF}, 7")
a("s_cbranch_scc1 L_norem2")
pack(XP, OX)
a("s_mov_b32 exec_lo, 0xffff0000")
pack(XP, OX + 4)
a("s_mov_b32 exec_lo, 0")
pack(XP, OX + 8)
a("s_mov_b32 exec_hi, 0xffff0000")
pack(XP, OX + 12)
a("s_mov_b64 exec, -1")
dual(lambda f: a(f"global_store_dwordx2 v{vOX}, {v(XP,2)}, {LBP}{f}"))
a.label("L_norem2")
trace_at(16)
pp(3, 4)

ACCB, OF, WB, GQ = 8, 28, 68, 128
NB = 15
vWM, vO4, vPL, vRD, vFM, vGAD, vSTG = 148, 158, 159, 160, 161, 162, 164
vOUT = [165, 166, vT3]
sOP = 60
vWF = 149
def tail_setup(img, red):
    a(f"v_bfe_u32 v{vT1}, v{vLANE}, 2, 2")
    a(f"v_lshl_add_u32 v{vT1}, v{vG}, 2, v{vT1}")
    a(f"v_mul_u32_u24 v{vT1}, 160, v{vT1}")
    a(f"v_and_b32 v{vT2}, 3, v{vLANE}")
    a(f"v_lshl_add_u32 v{vT1}, v{vT2}, 3, v{vT1}")
    a(f"s_mul_i32 s{sT0}, s{sE}, 51200")
    a(f"s_sub_u32 s{sT0}, {img + 51200}, s{sT0}")
    a(f"v_add_u32 v{vWM}, s{sT0}, v{vT1}")
    a(f"s_mul_i32 s59, s{sMT}, 2560")
    a(f"s_add_u32 s59, s59, {img + 20*5120}")
    a(f"s_lshl_b32 s{sT0}, s{sE}, 2")
    a(f"v_add_u32 v{vWF}, s{sT0}, v{vFL}")
    a(f"s_and_b32 s{sT2}, s{sOR}, 3")
    a(f"s_lshr_b32 s{sT0}, s{sMT}, 1")
    a(f"s_lshl1_add_u32 s{sT0}, s{sT2}, s{sT0}")
    a(f"s_lshl1_add_u32 s{sT0}, s{sT0}, s{sE}")
    a(f"s_mul_i32 s{sT0}, s{sT0}, 20480")
    a(f"s_and_b32 s{sT1}, s{sMT}, 1")
    a(f"s_lshl_b32 s{sT1}, s{sT1}, 10")
    a(f"s_add_u32 s{sT0}, s{sT0}, s{sT1}")
    a(f"s_mul_i32 s{sT1}, s{sGRP}, {OGRP}")
    a(f"s_add_u32 s{sT0}, s{sT0}, s{sT1}")
    a(f"s_add_u32 s{sT0}, s{sT0}, {UWS + 4096}")
    a(f"v_lshl_add_u32 v{vO4}, v{vLANE}, 4, s{sT0}")
    for q in range(1, 3):
        a(f"s_add_u32 s{sOP+2*q}, s{sLB}, {8192*q}")
        a(f"s_addc_u32 s{sOP+2*q+1}, s{sLB+1}, 0")
    a(f"s_mul_i32 s{sT0}, s{sGRP}, {XGRP}")
    a(f"s_lshl_b32 s{sT2}, s{sT2}, 8")
    a(f"s_add_u32 s{sT0}, s{sT0}, s{sT2}")
    a(f"s_add_u32 s{sT0}, s{sT0}, {XLW + XFLG}")
    a(f"v_lshl_add_u32 v{vPL}, v{vLANE}, 2, s{sT0}")
    a(f"s_mul_i32 s58, s{sMT}, 5120")
    a(f"s_add_u32 s58, s58, {red}")
    a(f"v_lshl_add_u32 v{vRD}, v{vLANE}, 4, s58")
    a(f"s_lshl_b32 s{sT0}, s{sMT}, 2")
    a(f"v_add_u32 v{vFM}, s{sT0}, v{vFL}")
    a(f"v_mul_u32_u24 v{vSTG}, 160, v{vN}")
    a(f"v_lshl_add_u32 v{vSTG}, v{vG}, 3, v{vSTG}")
tail_setup(IMG_B, RED_B)
a(f"v_mov_b32 v{vT0}, s{sFLO}")
a(f"v_mov_b32 v{vT1}, s{sTAG}")
a("s_mov_b64 exec, 1")
a("s_waitcnt vmcnt(0)")
dual(lambda f: a(f"global_store_dword v{vT0}, v{vT1}, {LBP}{f}"))
a("s_mov_b64 exec, -1")
a.label("L_tail")
trace_at(20)
a(f"s_lshl2_add_u32 s{sT0}, s{sOR}, s{sMT}")
a(f"s_mul_i32 s{sT0}, s{sT0}, {16*1280}")
a(f"s_mul_i32 s{sT1}, s{sOC}, 160")
a(f"s_add_u32 s{sT0}, s{sT0}, s{sT1}")
for i in range(3): t10(vOUT[i], 64 * i, f"s{sT0}", vT1)
loads = [f"global_load_dwordx4 {v(OF+4*c,4)}, v{vO4}, {LBP if c < 4 else 's[%d:%d]' % (sOP+2*(c//4), sOP+2*(c//4)+1)} offset:{2048*(c%4) - 4096} sc1" for c in range(10)]
reads, gate, work, users = [], [], [], []
fc = 0
for c in range(10):
    for T in range(5):
        b = WB + 4 * (fc % NB)
        g = users[fc - NB] if fc >= NB else -1
        for e in range(2):
            reads.append(f"ds_read_b64_tr_b16 {v(b+2*e,2)}, v{vWM} offset:{5120*c + 2560*e + 32*T}"); gate.append(g)
        txt = f"{MF} {v(ACCB+4*T,4)}, {v(b,4)}, {v(OF+4*c,4)}, {v(ACCB+4*T,4) if c else 0}"
        if T == 0: txt = f"s_waitcnt vmcnt({9 - c})\n" + txt
        users.append(len(work)); work.append((len(reads) - 1, txt)); fc += 1
lds_wait(F_WOL, 4, vaddr=vWF, sleep=1)
trace()
PRE = 2 * NB
for i in range(PRE):
    a(reads[i])
    if i >= 12 and i % 4 == 0: a("s_waitcnt lgkmcnt(8)")
a(f"s_mul_i32 exec_hi, s{sE}, 0xfffff")
a("s_mov_b32 exec_lo, 0xfffff")
a(f"s_mov_b32 s{sSPIN}, 0")
a.label("L_op")
a(f"global_load_dword v{vT0}, v{vPL}, {LBP} sc1")
a("s_waitcnt vmcnt(0)")
a(f"v_cmp_ne_u32 vcc, s{sTAG}, v{vT0}")
a("s_cbranch_vccz L_opd")
spin_tail("L_op", OPT["osleep"])
a.label("L_opd")
a("s_mov_b64 exec, -1")
for x in loads: a(x)
trace()
pp(7, 4)
a(f"s_lshl_b32 s{sT0}, s{sMT}, 6")
a(f"s_add_u32 s{sT0}, s{sT0}, {GOM}")
a(f"v_lshl_add_u32 v{vT1}, v{vN}, 2, s{sT0}")
lds_wait(F_GRD, 1)
a(f"ds_read2st64_b32 {v(vGAD,2)}, v{vT1} offset0:0 offset1:1")
a(f"s_cmp_lg_u32 s{sE}, 0")
a("s_cbranch_scc1 L_nogq")
a(f"v_add_u32 v{vT1}, s59, v{vSTG}")
for T in range(5): a(f"ds_read_b64 {v(ACCB+2*T,2)}, v{vT1} offset:{32*T}")
for i in range(10):
    if i % 2 == 0: a(f"s_waitcnt lgkmcnt({4 - i//2})")
    a(f"v_lshlrev_b32 v{GQ+2*i}, 16, v{ACCB+i}")
    a(f"v_and_b32 v{GQ+2*i+1}, 0xffff0000, v{ACCB+i}")
    a(f"v_mul_f32 v{GQ+2*i}, v{vGAD+1}, v{GQ+2*i}")
    a(f"v_mul_f32 v{GQ+2*i+1}, v{vGAD+1}, v{GQ+2*i+1}")
a.label("L_nogq")
a("s_waitcnt lgkmcnt(0)")
a(f"v_add_u32 v{vSTG}, s58, v{vSTG}")
lds_pipe(reads, work, gate, maxfly=14, pre=PRE, eager=True)
trace()
pp(8, 4)
a(f"s_cmp_lg_u32 s{sE}, 0")
a("s_cbranch_scc1 L_noy")
a(f"v_bfe_u32 v{vT1}, v{vLANE}, 2, 3")
a(f"v_and_b32 v{vT1}, 6, v{vT1}")
a(f"v_bfe_u32 v{vT2}, v{vLANE}, 1, 1")
a(f"s_lshl_b32 s{sT0}, s{sMT}, 1")
a(f"v_or_b32 v{vT2}, s{sT0}, v{vT2}")
a(f"v_xor_b32 v{vT1}, v{vT1}, v{vT2}")
a(f"v_lshlrev_b32 v{vT1}, 4, v{vT1}")
a(f"v_lshrrev_b32 v{vT2}, 2, v{vLANE}")
a(f"v_lshl_add_u32 v{vT1}, v{vT2}, 7, v{vT1}")
a(f"v_and_b32 v{vT2}, 1, v{vLANE}")
a(f"v_lshl_add_u32 v{vT1}, v{vT2}, 3, v{vT1}")
for r in range(20): a(f"v_mul_f32 v{ACCB+r}, v{vGAD}, v{ACCB+r}")
a(f"v_mov_b32 v{vGAD}, 1.0")
lds_wait(F_YLD, 2)
trace()
for T in range(5): a(f"ds_read_b64_tr_b16 {v(48+2*T,2)}, v{vT1} offset:{YT + 2048*T}")
for i in range(10):
    if i % 2 == 0: a(f"s_waitcnt lgkmcnt({4 - i//2})")
    a(f"v_lshlrev_b32 v58, 16, v{48+i}")
    a(f"v_and_b32 v59, 0xffff0000, v{48+i}")
    a(f"v_fmac_f32 v{ACCB+2*i}, v58, v{GQ+2*i}")
    a(f"v_fmac_f32 v{ACCB+2*i+1}, v59, v{GQ+2*i+1}")
a.label("L_noy")
QQ = 28
a(f"v_mov_b32 v{vT0}, 1")
a("s_mov_b64 exec, 1")
a(f"ds_add_rtn_u32 v{vT0}, v{vFM}, v{vT0} offset:{F_RED}")
a("s_mov_b64 exec, -1")
a(f"s_mov_b32 s{sSPIN}, 0")
a.label("L_fb")
a(f"ds_read_b32 v{vT1}, v{vFM} offset:{F_QRD}")
for T in range(5): a(f"ds_read_b128 {v(QQ+4*T,4)}, v{vRD} offset:{1024*T}")
a("s_waitcnt lgkmcnt(5)")
a(f"v_readfirstlane_b32 s{sT2}, v{vT0}")
a(f"v_readfirstlane_b32 s{sT0}, v{vT1}")
a(f"s_cmp_eq_u32 s{sT2}, 0")
a("s_cbranch_scc1 L_first")
a(f"s_cmp_lg_u32 s{sT0}, 0")
a("s_cbranch_scc1 L_fin")
a("s_waitcnt lgkmcnt(0)")
spin_tail("L_fb", 1)
a.label("L_fin")
trace_at(26)
for T in range(5):
    a(f"s_waitcnt lgkmcnt({4-T})")
    for r in range(4): a(f"v_fmac_f32 v{QQ+4*T+r}, v{vGAD}, v{ACCB+4*T+r}")
    pack(48 + 2 * T, QQ + 4 * T)
for T in range(5): a(f"ds_write_b64 v{vSTG}, {v(48+2*T,2)} offset:{32*T}")
for i in range(3): a(f"ds_read_b128 {v(72+4*i,4)}, v{vRD} offset:{1024*i}")
for i in range(3):
    a(f"s_waitcnt lgkmcnt({2-i})")
    if i == 2: a("s_mov_b64 exec, 0xffffffff")
    a(f"global_store_dwordx4 v{vOUT[i]}, {v(72+4*i,4)}, s[{sOUT}:{sOUT+1}]" + ["", " sc1", " nt", " sc0 sc1"][OPT.get("osc", 0)])
trace()
if OPT.get("pp") == 25:
    a("s_waitcnt vmcnt(0)"); pp(25, -1)
finish()
a.label("L_first")
for r in range(20): a(f"v_mul_f32 v{ACCB+r}, v{vGAD}, v{ACCB+r}")
lds_wait(F_EXR, 8)
for T in range(5): a(f"ds_write_b128 v{vRD}, {v(ACCB+4*T,4)} offset:{1024*T}")
lds_set(F_QRD, 1, vaddr=vFM)
trace_at(28)
finish()

a.label("L_awave")
if OPT["gsolo"]:
    a("s_waitcnt lgkmcnt(0)"); a("s_barrier"); finish()
SRD_H = 48
sA, sC0, sHB, sUB, sNST, sAIN, sBIN, sOWNR, sDV = 40, 41, 42, 43, 44, 46, 47, 52, 53
a(f"s_sub_u32 s{sA}, s{sWV}, 4")
if OPT["ktr"]: trace()
a(f"s_load_dword s{sTAG}, {WSP}, {EPOCH}")
a("s_setprio 2")
a(f"s_and_b32 s{sMT}, s{sA}, 3")
a(f"s_lshr_b32 s{sE}, s{sA}, 2")
a(f"s_sub_u32 s{sT0}, s{sI}, 20")
a(f"s_mul_i32 s{sT1}, s{sT0}, 43")
a(f"s_lshr_b32 s{sT1}, s{sT1}, 7")
a(f"s_mul_i32 s{sC0}, s{sT0}, 7")
a(f"s_sub_u32 s{sC0}, s{sC0}, s{sT1}")
a(f"s_mul_i32 s{sT1}, s{sT1}, 3")
a(f"s_sub_u32 s{sT1}, s{sT0}, s{sT1}")
a(f"s_cmp_eq_u32 s{sT1}, 2")
a(f"s_cselect_b32 s{sNCH}, 6, 7")
a(f"s_mul_i32 s{sT1}, s{sGRP}, 80")
a(f"s_add_u32 s{sC0}, s{sC0}, s{sT1}")
a(f"s_cmp_lt_u32 s{sA}, s{sNCH}")
a(f"s_cselect_b32 s{sOWNR}, 1, 0")
a(f"s_cselect_b32 s{sT2}, s{sA}, 0")
a(f"s_cselect_b32 s{sNST}, 7, s{sNCH}")
a(f"s_cselect_b32 s54, 0, {7*64}")
a(f"s_add_u32 s{sC0}, s{sC0}, s{sT2}")
a(f"s_mul_i32 s{sHB}, s{sT2}, {HCH}")
a(f"s_mul_i32 s{sUB}, s{sT2}, {ULCH}")
a(f"s_add_u32 s{sUB}, s{sUB}, {UL}")
a(f"s_lshl_b32 s55, s{sC0}, 12")
a(f"s_add_u32 s{SRD_H}, s{sSSM}, s55")
a(f"s_addc_u32 s{SRD_H+1}, s{sSSM+1}, 0")
a(f"s_and_b32 s{SRD_H+1}, s{SRD_H+1}, 0xffff")
a(f"s_mov_b32 s{SRD_H+2}, 4096")
a(f"s_mov_b32 s{SRD_H+3}, 0x00020000")
vL16, vKA, vVA, vUW, vUR, vUG, vEE, vEP = 8, 9, 11, 12, 13, 14, 148, 149
vUS, vUD, vHW, vYG, vYS, vCEL, vPBA, vPBF = 150, 151, 152, 153, 159, 160, 161, 162
AB, vBB = 154, 158
CACC, CA, CB0, CB1, AD, SEL = 16, 48, 80, 112, 144, 164
WK = 16
a(f"s_lshr_b32 s{sT0}, s{sC0}, 1")
a(f"s_lshl_b32 s{sT0}, s{sT0}, 2")
a(f"s_load_dword s{sDV}, s[{sDD}:{sDD+1}], s{sT0}")
a(f"v_lshlrev_b32 v{vL16}, 4, v{vLANE}")
a(f"v_lshl_add_u32 v{vT1}, v{vN}, 3, v{vG}")
a(f"v_lshlrev_b32 v{vT1}, 8, v{vT1}")
a(f"v_add_u32 v{vT1}, {KT}, v{vT1}")
a(f"s_lshl_b32 s{sT0}, s{sA}, 1")
a(f"v_xor_b32 v{vT2}, s{sT0}, v{vN}")
a(f"v_lshl_add_u32 v{vKA}, v{vT2}, 4, v{vT1}")
a(f"v_add_u32 v{vT2}, 15, v{vN}")
a(f"v_and_b32 v{vT2}, 15, v{vT2}")
a(f"v_xor_b32 v{vT2}, s{sT0}, v{vT2}")
a(f"v_lshl_add_u32 v{vKA+2}, v{vT2}, 4, v{vT1}")
a(f"v_xor_b32 v{vKA+1}, 16, v{vKA}")
a(f"v_xor_b32 v{vKA+3}, 16, v{vKA+2}")
a(f"s_lshl_b32 s{sT0}, s58, 16")
a(f"s_lshl_b32 s{sT1}, s{sRB}, 8")
a(f"s_add_u32 s{sT0}, s{sT0}, s{sT1}")
a(f"s_add_u32 s{sT0}, s{sT0}, {UWS}")
a(f"v_lshlrev_b32 v{vT1}, 12, v{vG}")
a(f"v_lshl_add_u32 v{vT1}, v{vN}, 4, v{vT1}")
a(f"v_add_u32 v{vUG}, s{sT0}, v{vT1}")
for q in range(1, 4):
    a(f"s_add_u32 s{58+2*q}, s{sWS}, {16384*q}") if q != 3 else a(f"s_add_u32 s66, s{sWS}, {16384*q}")
    a(f"s_addc_u32 s{59+2*q}, s{sWS+1}, 0") if q != 3 else a(f"s_addc_u32 s67, s{sWS+1}, 0")
UBASE = [WSP, "s[60:61]", "s[62:63]", "s[66:67]"]
a(f"s_lshl4_add_u32 s{sT0}, s58, s{sRB}")
a(f"s_lshl_b32 s{sT0}, s{sT0}, 7")
a(f"s_add_u32 s{sT0}, s{sT0}, {EU}")
a(f"v_add_u32 v{vT1}, v{vN}, v{vG}")
a(f"v_lshl_add_u32 v{vEE}, v{vT1}, 3, s{sT0}")
a(f"s_lshr_b32 s{sT0}, s{sC0}, 4")
a(f"s_lshl_b32 s{sT0}, s{sT0}, 11")
a(f"s_and_b32 s{sT1}, s{sC0}, 15")
a(f"s_lshl3_add_u32 s{sT0}, s{sT1}, s{sT0}")
a(f"s_add_u32 s{sT0}, s{sT0}, {EU}")
a(f"v_lshl_add_u32 v{vEP}, v{vN}, 7, s{sT0}")
SRD_U = 76
a(f"s_add_u32 s{sT0}, s55, {UWS}")
a(f"s_add_u32 s{SRD_U}, s{sWS}, s{sT0}")
a(f"s_addc_u32 s{SRD_U+1}, s{sWS+1}, 0")
a(f"s_and_b32 s{SRD_U+1}, s{SRD_U+1}, 0xffff")
a(f"s_mov_b32 s{SRD_U+2}, 4096")
a(f"s_mov_b32 s{SRD_U+3}, 0x00020000")
a(f"s_add_u32 s{sT0}, s{sHB}, {HC + 4080 - 3072}")
a(f"v_sub_u32 v{vHW}, s{sT0}, v{vL16}")
a(f"v_sub_u32 v{vT1}, 2031, v{vN}")
a(f"v_and_b32 v{vT2}, 1, v{vT1}")
a(f"v_lshrrev_b32 v{vT1}, 1, v{vT1}")
a(f"v_lshl_add_u32 v{vT1}, v{vG}, 2, v{vT1}")
a(f"v_lshlrev_b32 v{vT1}, 2, v{vT1}")
a(f"v_mul_u32_u24 v{vT2}, {HOO}, v{vT2}")
a(f"s_sub_u32 s{sT0}, s{sHB}, s54")
a(f"v_add3_u32 v{vT1}, v{vT1}, v{vT2}, s{sT0}")
for j in range(4): a(f"v_subrev_u32 v{AB+j}, {512*7 - 1024*j - HC}, v{vT1}")
a(f"v_lshlrev_b32 v{vT1}, 5, v{vN}")
a(f"v_lshl_add_u32 v{vT1}, v{vG}, 4, v{vT1}")
a(f"s_sub_u32 s{sT0}, s{sUB}, s54")
a(f"s_add_u32 s{sT0}, s{sT0}, 480")
a(f"v_add_u32 v{vBB}, s{sT0}, v{vT1}")
a(f"v_and_b32 v{vT1}, 1, v{vG}")
a(f"v_lshlrev_b32 v{vT1}, 9, v{vT1}")
a(f"v_lshl_add_u32 v{vT1}, v{vN}, 5, v{vT1}")
a(f"v_lshrrev_b32 v{vT2}, 1, v{vG}")
a(f"v_lshl_add_u32 v{vT1}, v{vT2}, 4, v{vT1}")
a(f"s_add_u32 s{sT0}, s55, {YWS}")
a(f"v_add_u32 v{vYG}, s{sT0}, v{vT1}")
a(f"v_and_b32 v{vT1}, 1, v{vN}")
a(f"v_lshl_add_u32 v{vT1}, v{vT1}, 2, v{vG}")
a(f"v_lshrrev_b32 v{vT2}, 2, v{vN}")
a(f"v_lshl_add_u32 v{vT1}, v{vT1}, 2, v{vT2}")
a(f"v_lshlrev_b32 v{vT1}, 2, v{vT1}")
a(f"v_add_u32 v{vYS}, {YS}, v{vT1}")
a(f"s_cmp_ge_u32 s{sI}, 26")
a(f"s_cselect_b32 s{sT0}, 8, 0")
a(f"s_lshl_b32 s{sT1}, s{sGRP}, 8")
a(f"s_add_u32 s{sT0}, s{sT0}, s{sT1}")
a(f"s_add_u32 s{sT0}, s{sT0}, {FB}")
a(f"v_and_b32 v{vT1}, 31, v{vLANE}")
a(f"v_lshl_add_u32 v{vCEL}, v{vT1}, 11, s{sT0}")
a(f"s_lshl_b32 s{sT0}, s{sT2}, 12")
a(f"s_add_u32 s{sT0}, s{sT0}, {PB}")
a(f"v_add_u32 v{vPBA}, s{sT0}, v{vL16}")
a(f"s_lshl_b32 s{sT0}, s{sT2}, 2")
a(f"v_add_u32 v{vPBF}, s{sT0}, v{vFL}")
a(f"v_and_b32 v{vT1}, 1, v{vN}")
a(f"v_lshlrev_b32 v{vT1}, 4, v{vT1}")
a(f"v_mov_b32 v{vT2}, 0x3f80")
a(f"v_lshlrev_b32 v{vT2}, v{vT1}, v{vT2}")
a(f"v_lshrrev_b32 v{vT3}, 1, v{vN}")
a(f"v_lshlrev_b32 v{vT0}, 1, v{vG}")
a(f"v_sub_u32 v{vT0}, v{vT3}, v{vT0}")
for j in range(2):
    a(f"v_cmp_eq_u32 vcc, {j}, v{vT0}")
    a(f"v_cndmask_b32 v{SEL+j}, 0, v{vT2}, vcc")
a("s_waitcnt lgkmcnt(0)")
make_tag()
a(f"s_lshl_b32 s{sT0}, s{sC0}, 4")
a(f"s_lshr_b32 s{sDV}, s{sDV}, s{sT0}")
a(f"s_and_b32 s{sDV}, s{sDV}, 0xffff")
a(f"v_lshlrev_b32 v{vT2}, v{vT1}, s{sDV}")
a(f"v_lshlrev_b32 v{vT0}, 2, v{vG}")
a(f"v_sub_u32 v{vT0}, v{vT3}, v{vT0}")
for j in range(4):
    a(f"v_cmp_eq_u32 vcc, {j-8}, v{vT0}")
    a(f"v_cndmask_b32 v{AD+j}, 0, v{vT2}, vcc")
SV = 40
a(f"v_bfe_u32 v{vT1}, v{vN}, 2, 1")
a(f"v_lshlrev_b32 v{vT1}, 4, v{vT1}")
a(f"v_and_b32 v{vT2}, 3, v{vN}")
a(f"v_lshrrev_b32 v{vT3}, 3, v{vN}")
a(f"v_mov_b32 v{vT0}, 0x3f80")
a(f"v_lshlrev_b32 v{vT0}, v{vT1}, v{vT0}")
a(f"v_cmp_eq_u32 vcc, v{vT2}, v{vG}")
a(f"v_cndmask_b32 v{vT0}, 0, v{vT0}, vcc")
a(f"v_cmp_eq_u32 vcc, 0, v{vT3}")
a(f"v_cndmask_b32 v{SV}, 0, v{vT0}, vcc")
a(f"v_cndmask_b32 v{SV+1}, v{vT0}, 0, vcc")
a(f"v_or_b32 v{vT0}, 2, v{vT3}")
a(f"v_cmp_ge_u32 vcc, v{vT2}, v{vG}")
a(f"v_cndmask_b32 v{vT3}, v{vT3}, v{vT0}, vcc")
if OPT["ktr"]: trace()
a("s_waitcnt vmcnt(0)")
if OPT["ktr"]:
    a("s_waitcnt lgkmcnt(0)"); trace()
for q in range(4): a(f"v_lshlrev_b32 v{TAP+q}, v{vT1}, v{TAP+q}")
for r in range(4):
    a(f"v_cmp_eq_u32 vcc, {r}, v{vT3}")
    for q in range(4):
        a(f"v_cndmask_b32 v{WK+6*q+r}, 0, v{TAP+q}, vcc")
        if r < 2: a(f"v_cndmask_b32 v{WK+6*q+4+r}, 0, v{TAP+q}, vcc")
HN, HM, HE, HOD = 128, 112, 80, 96
def h_loads():
    lb = a.newlabel("Lnh")
    a(f"s_cmp_eq_u32 s{sOWNR}, 0")
    a(f"s_cbranch_scc1 {lb}")
    for c in range(4): a(f"buffer_load_dwordx4 {v(HN+4*c,4)}, v{vL16}, s[{SRD_H}:{SRD_H+3}], 0 offen offset:{1024*c}")
    a.label(lb)
if OPT["hat"] == 0:
    a(f"s_sleep {OPT['hsl']}")
    h_loads()
trace()
a("s_barrier")
trace()
pp(22, 8)
a(f"s_cmp_ge_u32 s{sCG}, 5")
a("s_cbranch_scc1 L_nokv")
KD = [48, 68]
KS = [88, 48]; VF = 104; UO = [120, 68]; CS = 76
for o in range(2):
    a(f"ds_read_b128 {v(KD[o],4)}, v{vKA+2+o}")
    a(f"ds_read_b128 {v(KD[o]+4,4)}, v{vKA+o} offset:1024")
    a(f"ds_read_b128 {v(KD[o]+8,4)}, v{vKA+o} offset:2048")
    for e in range(2): a(f"ds_read_b128 {v(KD[o]+12+4*e,4)}, v{vKA+o} offset:{VT - KT + 1024*e}")
if OPT["hat"] == 1: h_loads()
def kv_k(o):
    d = KD[o]
    a(f"s_waitcnt lgkmcnt({8 - 5*o})")
    for r in range(2): a(f"v_swap_b32 v{d+2+r}, v{d+4+r}")
    for hi in range(2): a(f"{MF} {v(KS[o]+8*hi,4)}, {v(WK+6*(2*o+hi),4)}, {v(d+4*hi,4)}, 0")
    a(f"s_waitcnt lgkmcnt({7 - 5*o})")
    for hi in range(2): a(f"v_mov_b64 {v(d+4*hi,2)}, {v(d+8+2*hi,2)}")
    for hi in range(2): a(f"{MF} {v(KS[o]+8*hi+4,4)}, {v(WK+6*(2*o+hi)+2,4)}, {v(d+4*hi,4)}, 0")
def kv_v(o):
    a(f"s_waitcnt lgkmcnt({5 - 5*o})")
    for hi in range(2):
        for e in range(2): a(f"{MH} {v(VF+8*hi+4*e,4)}, {v(SV,2)}, {v(KD[o]+12+4*e+2*hi,2)}, 0")
def kv_mul(o):
    for r in range(0, 16, 2): a(f"v_pk_mul_f32 {v(KS[o]+r,2)}, {v(KS[o]+r,2)}, {v(VF+r,2)}")
def kv_out(o):
    for hi in range(2):
        u = UO[o] + 4 * hi
        for r in range(4): a(f"v_cvt_pk_bf16_f32 v{u+r}, v{KS[o]+8*hi+2*r}, v{KS[o]+8*hi+2*r+1}")
        a(f"global_store_dwordx4 v{vUG}, {v(u,4)}, {UBASE[2*o+hi]} sc1")
    for hi in range(2):
        u = UO[o] + 4 * hi
        a(f"v_add_u32 v{CS+2*o+hi}, v{u}, v{u+1}")
        a(f"v_add3_u32 v{CS+2*o+hi}, v{CS+2*o+hi}, v{u+2}, v{u+3}")
kv_k(0); kv_v(0); kv_k(1); kv_mul(0); kv_v(1); kv_out(0); kv_mul(1); kv_out(1)
for r in range(2): a(f"v_add_u32_dpp v{CS+4+r}, v{CS+r}, v{CS+r} row_ror:8 row_mask:0xf bank_mask:0xf")
for r in range(2): a(f"v_add_u32_dpp v{CS+4+r}, v{CS+2+r}, v{CS+2+r} row_ror:8 row_mask:0xf bank_mask:0xc")
a(f"v_mov_b32 v{CS}, s{sTAG}")
a(f"v_add_u32_dpp v{CS+1}, v{CS+4}, v{CS+4} row_half_mirror row_mask:0xf bank_mask:0xf")
a(f"v_add_u32_dpp v{CS+1}, v{CS+5}, v{CS+5} row_half_mirror row_mask:0xf bank_mask:0xa")
for qp in ("[1,0,3,2]", "[2,3,0,1]"): a(f"v_add_u32_dpp v{CS+1}, v{CS+1}, v{CS+1} quad_perm:{qp} row_mask:0xf bank_mask:0xf")
a("s_mov_b32 exec_lo, 0x11111111"); a("s_mov_b32 exec_hi, 0x11111111")
a(f"global_store_dwordx2 v{vEE}, {v(CS,2)}, {WSP} sc1")
a("s_mov_b64 exec, -1")
trace()
pp(10, 8)
if OPT["hat"] == 2:
    h_loads(); a("s_waitcnt vmcnt(0)")
else: a("s_waitcnt vmcnt(5)")
a("s_branch L_kvd")
a.label("L_nokv")
if OPT["hat"]:
    a("s_sleep 24")
    h_loads()
a("s_waitcnt vmcnt(0)")
a.label("L_kvd")
def cb(st, z): return (CB1 if st else CB0) + 4 * z
def rdA(m):
    j, b = (7 - m) // 2, (7 - m) % 2
    return [f"ds_read2_b32 {v(CA+4*m+2*e,2)}, v{AB+j} offset0:{128*b+2*e} offset1:{128*b+2*e+1}" for e in range(2)]
def rdB(st, z): return f"ds_read_b128 {v(cb(st,z),4)}, v{vBB} offset:{512*z}"
def PRE_A():
    n = 0
    for m in range(8):
        for x in rdA(m):
            a(x); n += 1
            if n == 12: a("s_waitcnt lgkmcnt(6)")
a(f"s_cmp_lg_u32 s{sOWNR}, 0")
a("s_cbranch_scc1 L_owner")
a("s_waitcnt vmcnt(0)")
lds_add(F_UDN)
a(f"s_cmp_lg_u32 s{sA}, 7")
a("s_cbranch_scc1 L_cdone")
lds_wait(F_HRD, 1)
PRE_A()
a("s_setprio 3")
a(f"v_mov_b32 v{vT1}, 1")
lds_wait(F_UDN, 8)
for z in range(8): a(rdB(0, z))
a("s_waitcnt lgkmcnt(0)")
trace_at(12)
a(f"s_setprio {OPT['hprio']}")
a("s_branch L_hloop")
a.label("L_owner")
a(f"s_mov_b32 s{sT2}, 0xffff")
for c in range(3): a(f"v_readlane_b32 s{60+c}, v{HN+4*c+3}, 63")
for c in range(4): a(f"v_mov_b32_dpp v{HM+c}, v{HN+4*c+3} wave_shr:1 row_mask:0xf bank_mask:0xf")
a(f"v_writelane_b32 v{HM}, 0, 0")
for c in range(3): a(f"v_writelane_b32 v{HM+1+c}, s{60+c}, 0")
for c in range(4):
    for d in range(4):
        src = HN + 4 * c + 3 - d
        a(f"v_alignbit_b32 v{HE+4*c+d}, v{src}, v{src}, 16")
        lower = (HN + 4 * c + 2 - d) if d < 3 else (HM + c)
        a(f"v_bfi_b32 v{HOD+4*c+d}, s{sT2}, v{src}, v{lower}")
    a(f"ds_write_b128 v{vHW}, {v(HE+4*c,4)} offset:{1024*(3-c)}")
    a(f"ds_write_b128 v{vHW}, {v(HOD+4*c,4)} offset:{1024*(3-c)+HOO}")
a(f"v_mov_b32 v44, 0"); a(f"v_mov_b32 v45, 0")
a(f"v_lshl_add_u32 v{vT1}, v{vN}, 2, s{sHB}")
a(f"ds_write_b32 v{vT1}, v44 offset:{HC+4096}")
a(f"ds_write_b32 v{vT1}, v44 offset:{HC+4096+HOO}")
lds_set(F_HRD, 1, vaddr=vPBF)
a(f"v_lshl_add_u32 v{vT1}, v{vLANE}, 3, s{sUB}")
a(f"ds_write_b64 v{vT1}, v[44:45]")
PRE_A()
trace()
a("s_mov_b64 exec, 0xffff")
a(f"s_mov_b32 s{sSPIN}, 0")
a.label("L_ep")
a(f"global_atomic_or_x2 v[46:47], v{vEP}, v[44:45], {WSP} sc0 sc1")
a("s_waitcnt vmcnt(0)")
a(f"v_cmp_ne_u32 vcc, s{sTAG}, v46")
a("s_cbranch_vccz L_epd")
a("s_mov_b64 exec, vcc")
spin_tail("L_ep")
a.label("L_epd")
a("s_mov_b64 exec, -1")
a("s_setprio 3")
trace()
pp(24, 8)
a(f"s_mov_b32 s{sSPIN}, 0")
a(f"s_add_u32 m0, s{sUB}, 512")
def u_loads():
    for c in range(4): a(f"buffer_load_dwordx4 v{vL16}, s[{SRD_U}:{SRD_U+3}], 0 offen offset:{1024*c} sc1 lds")
u_loads()
row_allreduce(47)
a("v_readfirstlane_b32 s60, v47")
a.label("L_uretry")
a("s_waitcnt vmcnt(0) lgkmcnt(0)")
if OPT["ktr"]: trace()
for z in range(7, -1, -1): a(rdB(0, z))
for t in range(7, -1, -1):
    a(f"s_waitcnt lgkmcnt({t})")
    a(f"{MF} {v(CACC+4*t,4)}, {v(AD,4)}, {v(cb(0,t),4)}, 0")
    b = cb(0, t)
    a(f"v_add3_u32 v9, v9, v{b}, v{b+1}" if t < 7 else f"v_add_u32 v9, v{b}, v{b+1}")
    a(f"v_add3_u32 v9, v9, v{b+2}, v{b+3}")
row_allreduce(9)
a(f"v_readlane_b32 s{sT0}, v9, 32")
a(f"v_readlane_b32 s{sT1}, v9, 48")
a(f"v_mov_b32 v{vT0}, 1")
a(f"s_add_u32 s{sT0}, s{sT0}, s{sT1}")
a(f"s_cmp_eq_u32 s{sT0}, s60")
a("s_cbranch_scc1 L_uok")
u_loads()
spin_tail("L_uretry")
a.label("L_uok")
a("s_mov_b64 exec, 1")
a(f"ds_add_u32 v{vFL}, v{vT0} offset:{F_UDN}")
a("s_mov_b64 exec, -1")
trace_at(12)
pp(5, 8)
PR0 = OPT["pr0"]
XSET = [(m, t) for t in range(2 * PR0) for m in range(t + 1)] + [(7, 7), (6, 7), (6, 6), (5, 7), (5, 6), (5, 5)][:OPT["xhi"]]
def conv_loop(helper):
    P = "L_h" if helper else "L_c"
    seq = []
    def dump(pr):
        b = 8 + 4 * (pr & 1)
        txt = [f"v_cvt_pk_bf16_f32 v{b+r}, v{CACC+8*pr+2*r}, v{CACC+8*pr+2*r+1}" for r in range(4)]
        return [("v", x) for x in txt] + [("r", f"ds_write_b128 v{vPBA}, {v(b,4)} offset:{1024*pr}", ("W", pr))]
    for st in range(2):
        seq.append(("adv", st))
        pend = [("r", rdB(1 - st, z), ("B", z, 1 - st)) for z in range(7, -1, -1)]
        side = []
        for m in range(8):
            for k_, t in enumerate(range(7, m - 1, -1)):
                if helper and (m, t) in XSET: continue
                c = "0" if helper and m == 0 else v(CACC+4*t, 4)
                seq.append(("m", f"{MF} {v(CACC+4*t,4)}, {v(CA+4*m,4)}, {v(cb(st,t-m),4)}, {c}", [("A", m, st), ("B", t - m, st)]))
                if pend and k_ % 2 == 1: seq.append(pend.pop(0))
                if side and k_ >= 2: seq += side[:2]; side = side[2:]
            seq += side; side = []
            if not helper or any((m, t) not in XSET for t in range(m, 8)): pend = [("r", x, ("A", m, 1 - st)) for x in rdA(m)] + pend
            if m >= 5:
                while pend: seq.append(pend.pop(0))
            if helper and m in (1, 3) and m // 2 >= PR0: side = dump(m // 2)
        assert not pend
        if helper:
            seq += dump(2) + dump(3)
            seq.append(("r", f"ds_write_b32 v{vPBF}, v{vT1} offset:{F_PB}", ("F",)))
            seq += [("v", f"v_add_u32 v{vPBA}, 4096, v{vPBA}"), ("v", f"v_add_u32 v{vPBF}, 4, v{vPBF}")]
        seq.append(("chk", st))
    n = len(seq)
    a.label(f"{P}loop")
    out_cnt = 99
    for i, it in enumerate(seq):
        if it[0] == "v": a(it[1]); continue
        if it[0] == "adv":
            if it[1] == 0 and OPT["cprio"] and not helper:
                lb = a.newlabel("Lcp")
                for k, th in OPT_CP:
                    a(f"s_setprio {k}")
                    a(f"s_cmp_gt_u32 s{sNST}, {th}")
                    a(f"s_cbranch_scc1 {lb}")
                a("s_setprio 0")
                a.label(lb)
            for j in range(4): a(f"v_add_u32 v{AB+j}, {HCH}, v{AB+j}" if helper else f"v_subrev_u32 v{AB+j}, 64, v{AB+j}")
            a(f"v_add_u32 v{vBB}, {ULCH}, v{vBB}" if helper else f"v_subrev_u32 v{vBB}, 64, v{vBB}")
            continue
        if it[0] == "chk":
            a(f"s_sub_u32 s{sNST}, s{sNST}, 1")
            if it[1] == 1 and not helper:
                a(f"s_cmp_lg_u32 s{sNST}, {OPT['mat']}")
                a("s_cbranch_scc1 L_cloop")
                lds_wait(F_PB, 1, vaddr=vPBF)
                MT = [8, 12, 144, 148]
                for q in range(PR0, 4): a(f"ds_read_b128 {v(MT[q],4)}, v{vPBA} offset:{1024*q}")
                for t in range(2 * PR0, 8):
                    if t % 2 == 0: a(f"s_waitcnt lgkmcnt({3 - t//2})")
                    a(f"{MH} {v(CACC+4*t,4)}, {v(SEL,2)}, {v(MT[t//2]+2*(t&1),2)}, {v(CACC+4*t,4)}")
                lds_add(F_MRG)
                a("s_branch L_cloop")
            else:
                a(f"s_cmp_eq_u32 s{sNST}, 0")
                a(f"s_cbranch_scc1 {P}exit" if it[1] == 0 else f"s_cbranch_scc0 {P}loop")
            continue
        if it[0] == "r":
            if out_cnt >= 14:
                a("s_waitcnt lgkmcnt(12)"); out_cnt = 12
            a(it[1]); out_cnt += 1
            continue
        best = None; cnt = 0
        for back in range(1, n + 1):
            p = seq[(i - back) % n]
            if p[0] == "r":
                if p[2] in it[2]:
                    best = cnt; break
                cnt += 1
        assert best is not None
        if best < out_cnt:
            w = min(best, 15)
            a(f"s_waitcnt lgkmcnt({w})"); out_cnt = w
        a(it[1])
conv_loop(False)
a.label("L_cexit")
trace_at(13)
pp(23, 8)
a("s_setprio 3")
a("s_waitcnt lgkmcnt(0)")
for m, t in XSET: a(f"{MF} {v(CACC+4*t,4)}, {v(CA+4*m,4)}, {v(cb(1,t-m),4)}, {v(CACC+4*t,4)}")
for pr in (1, 2, 0, 3):
    b = CB0 + 4 * pr
    pack(b, CACC + 8 * pr)
    pack(b + 2, CACC + 8 * pr + 4)
    a(f"v_permlane16_swap_b32 v{b}, v{b+2}")
    a(f"v_permlane16_swap_b32 v{b+1}, v{b+3}")
    a(f"global_store_dwordx4 v{vYG}, {v(b,4)}, {WSP} offset:{1024*pr} sc1")
TS = 96
for pr in range(4): a(f"v_add_u32 v{TS+pr}, v{CB0+4*pr}, v{CB0+4*pr+1}")
for pr in range(4): a(f"v_add3_u32 v{TS+pr}, v{TS+pr}, v{CB0+4*pr+2}, v{CB0+4*pr+3}")
a(f"v_permlane32_swap_b32 v{TS}, v{TS+1}")
a(f"v_permlane32_swap_b32 v{TS+2}, v{TS+3}")
a(f"v_add_u32 v{TS}, v{TS}, v{TS+1}")
a(f"v_add_u32 v{TS+2}, v{TS+2}, v{TS+3}")
for qp in ("[1,0,3,2]", "[2,3,0,1]"):
    for r in (TS, TS + 2): a(f"v_add_u32_dpp v{r}, v{r}, v{r} quad_perm:{qp} row_mask:0xf bank_mask:0xf")
a("s_mov_b32 exec_lo, 0x22222222"); a("s_mov_b32 exec_hi, 0x22222222")
a(f"v_mov_b32 v{TS}, v{TS+2}")
a("s_mov_b32 exec_lo, 0x33333333"); a("s_mov_b32 exec_hi, 0x33333333")
a(f"ds_add_u32 v{vYS}, v{TS}")
a(f"v_mov_b32 v{vT0}, 1")
a("s_mov_b64 exec, 1")
a(f"ds_add_u32 v{vFL}, v{vT0} offset:{F_CVD}")
a(f"ds_add_rtn_u32 v{vT0}, v{vFL}, v{vT0} offset:{F_YST}")
a("s_mov_b64 exec, -1")
a(f"v_lshlrev_b32 v{vT1}, 2, v{vLANE}")
a(f"v_add_u32 v{vT1}, {YS}, v{vT1}")
cRET, cVAL = 28, 30
a(f"ds_read_b32 v{cVAL}, v{vT1}")
a(f"v_mov_b32 v{cVAL+1}, 0x100")
a("s_waitcnt lgkmcnt(0)")
a(f"v_readfirstlane_b32 s{sT2}, v{vT0}")
a(f"s_add_u32 s{sT2}, s{sT2}, 1")
a(f"s_cmp_lg_u32 s{sT2}, s{sNCH}")
a("s_cbranch_scc1 L_ynf")
a("s_mov_b64 exec, 0xffffffff")
a(f"s_mov_b32 s{sSPIN}, 0")
a(f"s_and_b32 s60, s{sTAG}, 0xffffff00")
a.label("L_ca")
a(f"global_atomic_add_x2 {v(cRET,2)}, v{vCEL}, {v(cVAL,2)}, {WSP} sc0 sc1")
a("s_waitcnt vmcnt(0)")
a(f"v_subrev_u32 v{cRET}, s60, v{cRET+1}")
a(f"v_cmp_le_u32 vcc, 0x600, v{cRET}")
a("s_cbranch_vccz L_cad")
a("s_mov_b64 exec, vcc")
spin_tail("L_ca", 8)
a.label("L_cad")
a("s_mov_b64 exec, -1")
a.label("L_ynf")
trace_at(14)
pp(6, 8)
a("s_branch L_cjoin")
conv_loop(True)
a.label("L_hexit")
trace_at(13)
a.label("L_cdone")
a("s_waitcnt lgkmcnt(0)")
lds_add(F_CVD)
a("s_setprio 0")
lds_wait(F_CVD, 4, sleep=6)
a.label("L_cjoin")
a("s_setprio 2")
lds_wait(F_MODE, 1)
a(f"s_mov_b32 s{sMODE}, s{sT3}")
set_mode()
tail_setup(IMG_A, RED_A)
a("s_branch L_tail")
if STAMPS_ON:
    a.label("L_finish")
    a("s_mov_b64 exec, -1")
    a("s_waitcnt lgkmcnt(0)")
    a("s_mov_b32 m0, s95")
    a(f"v_writelane_b32 v{vTR}, s70, m0")
    a("s_memtime s[76:77]")
    a("s_memrealtime s[78:79]")
    a(f"s_mul_i32 s{sT0}, s2, {NW}")
    a(f"s_add_u32 s{sT0}, s{sT0}, s{sWV}")
    a(f"s_lshl_b32 s{sT1}, s{sT0}, 8")
    a(f"s_add_u32 s{sT1}, s{sT1}, {TRACE}")
    a(f"v_lshl_add_u32 v{vT0}, v{vLANE}, 2, s{sT1}")
    a(f"global_store_dword v{vT0}, v{vTR}, {WSP}")
    a(f"s_lshl_b32 s{sT1}, s{sT0}, 7")
    a(f"s_add_u32 s{sT1}, s{sT1}, {STAMPS}")
    a("s_mov_b64 exec, 1")
    a(f"v_mov_b32 v{vT0}, s{sT1}")
    a("s_waitcnt lgkmcnt(0)")
    for j in range(8): a(f"v_mov_b32 v{8+j}, s{72+j}")
    a(f"global_store_dwordx4 v{vT0}, v[8:11], {WSP}")
    a(f"global_store_dwordx4 v{vT0}, v[12:15], {WSP} offset:16")
a.label("L_end")
a("s_endpgm")
a.label("L_codeend")

lines, nn = hazard.run(a.lines)
hdr = open("/code/" + NAME + ".s.ref").read().split("; Override launch geometry")[0]
sys.stdout.write(hdr + header([f"@launch grid=(256,1,1) block=({64*NW},1,1) lds={LDS_BYTES}"]) + kernel_begin(KNAME) + "\n".join(lines) + "\n"
                 + kernel_desc(KNAME, NVGPR, 102, NVGPR).replace(".end_amdhsa_kernel\n.text\n", ".end_amdhsa_kernel\n"))
sys.stderr.write(f"instructions: {len(lines)}, nop states inserted: {nn}\n")
```

```python
import sys, subprocess, re
NAME = "gated_mix__ssm_conv_h3__sliding_local_dilated__prompt"
slot, base, stride, warm, n = [int(x, 0) for x in sys.argv[1:6]]
fl = sys.argv[6] if len(sys.argv) > 6 else ""
main = subprocess.run(["python3", "gen.py"], capture_output=True, text=True).stdout
m = re.search(r"; @launch (grid=\S+ block=\S+ lds=\d+)", main)
geo = m.group(1)
XOFF = 0x3000
def desc(n, vg=16):
    return (f'.section .rodata,"a"\n.p2align 6\n.amdhsa_kernel {n}\n  .amdhsa_next_free_vgpr {vg}\n  .amdhsa_next_free_sgpr 64\n  .amdhsa_accum_offset {vg}\n'
            "  .amdhsa_group_segment_fixed_size 0\n  .amdhsa_kernarg_size 104\n  .amdhsa_user_sgpr_count 2\n"
            "  .amdhsa_user_sgpr_kernarg_segment_ptr 1\n  .amdhsa_system_sgpr_workgroup_id_x 1\n.end_amdhsa_kernel\n")
w = f"""    v_mov_b32 v3, {base - 128}
    global_load_dword v4, v3, s[6:7]
    s_waitcnt vmcnt(0)
""" if warm else ""
tstart = f""".text
.globl tstart_kernel
.p2align 8
.type tstart_kernel,@function
tstart_kernel:
    s_memrealtime s[8:9]
    s_load_dwordx2 s[4:5], s[0:1], 96
    s_load_dwordx2 s[6:7], s[0:1], {slot*8}
    s_cmp_lg_u32 s2, 0
    s_cbranch_scc1 Lts_end
    s_waitcnt lgkmcnt(0)
    s_mov_b64 exec, 1
{w}    v_mov_b32 v3, {base}
    s_mov_b32 s14, 0
    s_memrealtime s[10:11]
    s_waitcnt lgkmcnt(0)
Lts_l:
    global_load_dword v4, v3, s[6:7] {fl}
    v_add_u32 v3, {stride}, v3
    s_add_u32 s14, s14, 1
    s_cmp_lt_u32 s14, {n}
    s_waitcnt vmcnt(0)
    s_cbranch_scc1 Lts_l
    s_memrealtime s[12:13]
    s_waitcnt lgkmcnt(0)
    s_sub_u32 s12, s12, s10
    s_mul_i32 s12, s12, {32 // n}
    s_add_u32 s8, s8, s12
    v_mov_b32 v1, {XOFF}
    v_mov_b32 v2, s8
    global_store_dword v1, v2, s[4:5]
    v_mov_b32 v2, s12
    global_store_dword v1, v2, s[4:5] offset:4
Lts_end:
    s_endpgm
""" + desc("tstart_kernel")
tspin = f""".text
.globl tspin_kernel
.p2align 8
.type tspin_kernel,@function
tspin_kernel:
    s_load_dwordx2 s[4:5], s[0:1], 96
    s_cmp_lg_u32 s2, 0
    s_cbranch_scc1 Lsp_end
    s_waitcnt lgkmcnt(0)
    s_load_dword s10, s[4:5], {XOFF}
    s_waitcnt lgkmcnt(0)
    s_add_u32 s10, s10, 5000
    s_mov_b32 s14, 0
Lsp:
    s_memrealtime s[8:9]
    s_waitcnt lgkmcnt(0)
    s_add_u32 s14, s14, 1
    s_cmp_ge_u32 s14, 0x100000
    s_cbranch_scc1 Lsp_end
    s_sub_u32 s12, s8, s10
    s_cmp_lt_i32 s12, 0
    s_cbranch_scc1 Lsp
Lsp_end:
    s_endpgm
""" + desc("tspin_kernel")
K = NAME + "_kernel"
T = "grid=(1,1,1) block=(64,1,1) lds=0"
L = [f"kernel=tstart_kernel {T}", f"kernel={K} {geo}", f"kernel=tspin_kernel {T}"]
sys.stdout.write(main.replace(m.group(0), "\n".join("; @launch " + l for l in L)) + tstart + tspin)
```
